```python
import torch

def _softmax(x, axis=-1):
    return torch.softmax(x, dim=axis)
def _gelu(x):
    return torch.nn.functional.gelu(x, approximate="tanh")
def _silu(x):
    return torch.nn.functional.silu(x)
def _sigmoid(x):
    return torch.sigmoid(x)
def _layernorm(x, axis=-1, eps=1e-5):
    m = x.mean(dim=axis, keepdim=True)
    v = x.var(dim=axis, keepdim=True, unbiased=False)
    return (x - m) / torch.sqrt(v + eps)
def _scatter_add(tgt, idx, src, axis=0):
    return tgt.clone().index_add_(axis, idx, src)
def _segment_sum(src, seg, n):
    out = torch.zeros((n,) + src.shape[1:], dtype=src.dtype)
    return out.index_add_(0, seg, src)
def _pad(x, pw):
    flat = tuple(v for pair in reversed(pw) for v in pair)
    return torch.nn.functional.pad(x, flat)

kernel_name = 'recurrent_scan__ssm_conv_s5__dense_activation_silu__prompt'

def setup_inputs():

    _w = (lambda a: (lambda t: t.to(torch.bfloat16) if t.is_floating_point() else t)(torch.as_tensor(a)))
    def _A_setup():
        B, S, D = 1, 2048, 512
        P = D
        Lambda_re = -0.5 * (lambda _x: torch.exp(torch.as_tensor(_x)))((lambda *s: torch.randn(*s, dtype=torch.bfloat16) * 0.8)(P))
        Lambda_im = (lambda *s: torch.randn(*s, dtype=torch.bfloat16) * 0.8)(P) * 1.0
        B_re = (lambda *s: torch.randn(*s, dtype=torch.bfloat16) * 0.8)(P, D) * (D ** -0.5)
        B_im = (lambda *s: torch.randn(*s, dtype=torch.bfloat16) * 0.8)(P, D) * (D ** -0.5)
        C_re = (lambda *s: torch.randn(*s, dtype=torch.bfloat16) * 0.8)(D, P) * (P ** -0.5)
        C_im = (lambda *s: torch.randn(*s, dtype=torch.bfloat16) * 0.8)(D, P) * (P ** -0.5)
        log_dt = (lambda *s: torch.randn(*s, dtype=torch.bfloat16) * 0.8)(P) * 0.3 - 2.0
        Dskip = (lambda *s: torch.randn(*s, dtype=torch.bfloat16) * 0.8)(D)
        return {
            "x": _w((lambda *s: torch.randn(*s, dtype=torch.bfloat16) * 0.05)(B, S, D)),
            "Lambda_re": _w(Lambda_re),
            "Lambda_im": _w(Lambda_im),
            "B_re": _w(B_re),
            "B_im": _w(B_im),
            "C_re": _w(C_re),
            "C_im": _w(C_im),
            "log_dt": _w(log_dt),
            "Dskip": _w(Dskip),
        }
    _A_in = _A_setup()

    def _B_setup():
        B, S, D, F = 1, 2048, 512, 1792
        return {
            "x": _w((lambda *s: torch.randn(*s, dtype=torch.bfloat16) * 0.05)(B, S, D)),
            "w1": _w((lambda *s: torch.randn(*s, dtype=torch.bfloat16) * 0.8)(D, F) * (D ** -0.5)),
            "w2": _w((lambda *s: torch.randn(*s, dtype=torch.bfloat16) * 0.2)(F, D) * (F ** -0.5)),
        }
    _B_in = _B_setup()

    return {
        "A_x": _A_in["x"],
        "A_Lambda_re": _A_in["Lambda_re"],
        "A_Lambda_im": _A_in["Lambda_im"],
        "A_B_re": _A_in["B_re"],
        "A_B_im": _A_in["B_im"],
        "A_C_re": _A_in["C_re"],
        "A_C_im": _A_in["C_im"],
        "A_log_dt": _A_in["log_dt"],
        "A_Dskip": _A_in["Dskip"],
        "B_x": _B_in["x"],
        "B_w1": _B_in["w1"],
        "B_w2": _B_in["w2"],
    }

def reference(A_x, A_Lambda_re, A_Lambda_im, A_B_re, A_B_im, A_C_re, A_C_im, A_log_dt, A_Dskip, B_x, B_w1, B_w2):
    def _A_ref(x, Lambda_re, Lambda_im, B_re, B_im, C_re, C_im, log_dt, Dskip):
        Bsz, L, H = x.shape
        Lam = Lambda_re + 1j * Lambda_im
        Bmat = B_re + 1j * B_im
        Cmat = C_re + 1j * C_im
        dt = torch.exp(log_dt)
        Lam_bar = torch.exp(dt * Lam)
        B_bar = ((Lam_bar - 1.0) / Lam)[:, None] * Bmat
        Bu = torch.einsum("bld,pd->blp", x + 0j, B_bar)
        h = torch.zeros_like(Bu[:, 0, :])
        hs = []
        for t in range(L):
            h = Lam_bar[None, :] * h + Bu[:, t, :]
            hs.append(h)
        hseq = torch.stack(hs, 1)
        y = 2.0 * torch.einsum("blp,dp->bld", hseq, Cmat).real + x * Dskip[None, None, :]
        return y

    def _B_ref(x, w1, w2):
        h = torch.einsum("bsd,df->bsf", x, w1)
        h = _silu(h)
        out = torch.einsum("bsf,fd->bsd", h, w2)
        return out

    x = A_x
    xn = _layernorm(x, axis=-1)
    s = _A_ref(xn, A_Lambda_re, A_Lambda_im, A_B_re, A_B_im, A_C_re, A_C_im, A_log_dt, A_Dskip)
    g = _silu(_B_ref(xn, B_w1, B_w2))
    return x + s * g
```

```python
import re

TRANS = ("v_exp_f32", "v_log_f32", "v_rcp_f32", "v_rsq_f32", "v_sqrt_f32", "v_sin_f32", "v_cos_f32")

def _regs(tok):
    tok = tok.strip()
    tok = tok.lstrip('-')
    m = re.fullmatch(r"abs\((.*)\)", tok)
    if m: tok = m.group(1)
    m = re.fullmatch(r"\|(.*)\|", tok)
    if m: tok = m.group(1)
    m = re.fullmatch(r"([vsa])\[(\d+):(\d+)\]", tok)
    if m:
        return {(m.group(1), i) for i in range(int(m.group(2)), int(m.group(3)) + 1)}
    m = re.fullmatch(r"([vsa])(\d+)", tok)
    if m:
        return {(m.group(1), int(m.group(2)))}
    if tok == "vcc": return {("s", 106), ("s", 107)}
    if tok == "m0": return {("s", 124)}
    if tok == "exec": return {("s", 126), ("s", 127)}
    return set()

class Ins:
    __slots__ = ("text", "op", "rd", "wr", "kind", "passes", "srcc", "dpp", "ws", "lds")
    def __init__(self, text):
        self.text = text
        t = text.split(";")[0].strip()
        parts = t.split(None, 1)
        self.op = op = parts[0]
        rest = parts[1] if len(parts) > 1 else ""
        ops = []
        depth = 0; cur = ""
        for ch in rest:
            if ch in "[(": depth += 1
            if ch in "])": depth -= 1
            if ch == "," and depth == 0:
                ops.append(cur); cur = ""
            else:
                cur += ch
        if cur.strip(): ops.append(cur)
        mods = ""
        if ops:
            last = ops[-1].strip().split(None, 1)
            ops[-1] = last[0]
            mods = last[1] if len(last) > 1 else ""
        ops = [o.strip() for o in ops]
        self.rd = set(); self.wr = set(); self.kind = "other"; self.passes = 0; self.srcc = set()
        self.dpp = ("row_" in mods or "quad_perm" in mods or "_dpp" in op)
        self.ws = 1
        self.lds = False
        R = [_regs(o) for o in ops]
        if op == "s_nop":
            self.ws = int(ops[0], 0) + 1; self.kind = "nop"
        elif op.startswith("v_mfma"):
            self.kind = "mfma"
            self.passes = 4 if "16x16x32" in op else 8
            self.wr = R[0]; self.rd = R[1] | R[2] | R[3]; self.srcc = R[3]
        elif op.startswith("v_permlane"):
            self.kind = "valu"; self.wr = R[0] | R[1]; self.rd = R[0] | R[1]
        elif op.startswith("v_cmp"):
            self.kind = "valu"; self.wr = R[0]; self.rd = set().union(*R[1:])
        elif op in ("v_readlane_b32", "v_readfirstlane_b32"):
            self.kind = "valu"; self.wr = R[0]; self.rd = set().union(*R[1:])
        elif op.startswith("v_"):
            self.kind = "valu"; self.wr = R[0]; self.rd = set().union(*R[1:]) if len(R) > 1 else set()
            if op.startswith(("v_fmac", "v_dot2c", "v_writelane")): self.rd |= R[0]
            if op.startswith("v_cndmask") and len(ops) == 3: self.rd |= _regs("vcc")
            if op.startswith(("v_add_co", "v_addc_co", "v_sub_co")): self.wr |= R[1]
        elif op.startswith("ds_read"):
            self.kind = "ds"; self.wr = R[0]; self.rd = set().union(*R[1:])
        elif op.startswith("ds_"):
            self.kind = "ds"; self.rd = set().union(*R)
        elif op.startswith("buffer_load"):
            self.kind = "vmem"
            if re.search(r"\blds\b", mods):
                self.lds = True
                self.rd = set().union(*R) | _regs("m0")
            else:
                self.wr = R[0]; self.rd = set().union(*R[1:])
        elif op.startswith("buffer_atomic"):
            self.kind = "vmem"; self.rd = set().union(*R)
            if re.search(r"\bsc0\b", mods): self.wr = R[0]
        elif op.startswith("buffer_store"):
            self.kind = "vmem"; self.rd = set().union(*R)
            if op.endswith(("x3", "x4")): self.kind = "vmem_wstore"; self.srcc = R[0]
        elif op.startswith("s_"):
            self.kind = "salu"
            if op.startswith(("s_cmp", "s_cbranch", "s_branch", "s_waitcnt", "s_barrier", "s_endpgm", "s_setprio", "s_sleep")):
                self.rd = set().union(*R) if R else set()
            else:
                self.wr = R[0] if R else set(); self.rd = set().union(*R[1:]) if len(R) > 1 else set()

class Asm:
    def __init__(self):
        self.lines = []
    def raw(self, s): self.lines.append(s)
    def __call__(self, s):
        for l in s.strip().split("\n"):
            l = l.strip()
            if not l: continue
            if l.startswith(";") or l.startswith("."):
                self.lines.append("    " + l); continue
            if l.endswith(":"):
                self.label(l[:-1]); continue
            self.lines.append(Ins(l))
    def label(self, name):
        self.lines.append(name + ":")
        self.lines.append(Ins("s_nop 7")); self.lines.append(Ins("s_nop 3"))
    def need(self, hist, ins):
        need = 0
        dist = 0
        for p in reversed(hist):
            if dist > 20: break
            req = 0
            vw = {r for r in p.wr if r[0] in "va"}
            sw = {r for r in p.wr if r[0] == "s"}
            if p.kind == "valu":
                if ins.kind == "mfma" and vw & ins.rd: req = max(req, 2)
                if sw:
                    if ins.kind in ("vmem", "vmem_wstore") and sw & ins.rd: req = max(req, 5)
                    if ins.kind == "valu" and sw & ins.rd:
                        req = max(req, 4 if ins.op in ("v_readlane_b32", "v_writelane_b32") else 2)
                    if ins.kind == "salu" and sw & ins.rd: req = max(req, 2)
                if ins.op in ("v_readlane_b32", "v_readfirstlane_b32") and vw & ins.rd: req = max(req, 1)
                if p.op in TRANS and ins.kind in ("valu", "mfma") and ins.op not in TRANS and vw & ins.rd: req = max(req, 1)
                if ins.kind == "valu" and (ins.dpp or ins.op.startswith("v_permlane")) and vw & ins.rd: req = max(req, 2)
            if p.op.startswith("v_dot2"):
                if ins.op != p.op and p.wr & (ins.rd | ins.wr): req = max(req, 3)
            if p.kind == "mfma":
                big = 8 if p.passes == 4 else 12
                if ins.kind == "mfma":
                    ab = ins.rd - ins.srcc if not (ins.srcc & (ins.rd - ins.srcc)) else ins.rd
                    if p.wr & (ins.rd - ins.srcc): req = max(req, big)
                    if p.wr & ins.srcc and p.wr != ins.srcc: req = max(req, big - 2)
                elif ins.kind in ("valu", "vmem", "vmem_wstore", "ds"):
                    if p.wr & (ins.rd | ins.wr): req = max(req, big)
                    if ins.kind == "valu" and p.srcc & ins.wr: req = max(req, 3 if p.passes == 4 else 7)
            if p.kind == "salu" and ("s", 124) in p.wr and ins.lds: req = max(req, 1)
            if p.kind == "vmem_wstore" and p.srcc & ins.wr: req = max(req, 2)
            if req - dist > need: need = req - dist
            dist += p.ws
        return need
    def text(self):
        out = []
        hist = []
        for l in self.lines:
            if isinstance(l, str):
                out.append(l); continue
            n = self.need(hist, l)
            while n > 0:
                k = min(n, 16)
                nop = Ins("s_nop %d" % (k - 1))
                out.append("    " + nop.text); hist.append(nop); n -= k
            out.append("    " + l.text); hist.append(l)
            if len(hist) > 64: hist = hist[-40:]
        return "\n".join(out) + "\n"

def kd(name, vgpr=256, sgpr=102):
    acc = ((vgpr + 3) // 4) * 4
    return f""".amdhsa_kernel {name}
  .amdhsa_next_free_vgpr {vgpr}
  .amdhsa_next_free_sgpr {sgpr}
  .amdhsa_accum_offset {acc}
  .amdhsa_group_segment_fixed_size 0
  .amdhsa_kernarg_size 120
  .amdhsa_user_sgpr_count 2
  .amdhsa_user_sgpr_kernarg_segment_ptr 1
  .amdhsa_system_sgpr_workgroup_id_x 1
.end_amdhsa_kernel
"""
```

```python
import sys
sys.path.insert(0, "dev")
from asmlib import Asm, kd

WS_XN  = 0
WS_BU  = 2 << 20
WS_H1  = 10 << 20
WS_S8  = 18 << 20
WS_TAB = 19 << 20
WS_SIZE = 20 << 20

def srd(a, d, base, nbytes):
    a(f"""
    s_mov_b32 s{d}, s{base}
    s_and_b32 s{d+1}, s{base+1}, 0xffff
    s_mov_b32 s{d+2}, {nbytes}
    s_mov_b32 s{d+3}, 0x00020000
    """)

def f2u(x):
    import struct
    return struct.unpack("<I", struct.pack("<f", x))[0]

def cplx_sq(a, d, s, t):
    a(f"""
    v_mul_f32 v{t}, v{s+1}, v{s+1}
    v_mul_f32 v{d+1}, v{s}, v{s+1}
    v_fma_f32 v{d}, v{s}, v{s}, -v{t}
    v_add_f32 v{d+1}, v{d+1}, v{d+1}
    """)

K1_SLOT = [131072, 0, 24576, 49152, 73728, 98304]
K1_STAGE_SLOT = [0, 1, 2, 3, 4, 5, 0, 1]
K1_TABL = 155648
K1_E8 = 156672
K1_LDS = 160768

def gen_k1(a):
    a.raw(".p2align 8\nk1_kernel:")
    a("""
    s_cmp_ge_u32 s2, 256
    s_cbranch_scc1 K1_done
    s_load_dwordx4 s[72:75], s[0:1], 0      ; x, Lre
    s_load_dwordx4 s[76:79], s[0:1], 16
    s_load_dwordx2 s[80:81], s[0:1], 32     ; B_im
    s_load_dwordx2 s[82:83], s[0:1], 56     ; log_dt
    s_load_dwordx2 s[84:85], s[0:1], 80     ; w1
    s_load_dwordx2 s[86:87], s[0:1], 112    ; ws
    v_lshrrev_b32 v1, 6, v0
    v_and_b32 v2, 63, v0                    ; lane
    v_readfirstlane_b32 s34, v1             ; wave
    s_and_b32 s32, s2, 7
    s_lshl_b32 s32, s32, 1
    s_bfe_u32 s88, s2, 0x10003
    s_add_u32 s32, s32, s88                 ; rt
    s_lshr_b32 s33, s2, 4                   ; cg
    s_and_b32 s35, s34, 3                   ; wrow
    s_lshr_b32 s36, s34, 2                  ; wcol
    s_waitcnt lgkmcnt(0)
    """)
    srd(a, 4, 72, 2048 * 1024)
    a("""
    s_cmp_lt_u32 s34, 4
    s_cselect_b32 s88, s78, s80
    s_cselect_b32 s89, s79, s81
    """)
    srd(a, 8, 88, 512 * 1024)
    srd(a, 12, 84, 512 * 3584)
    srd(a, 16, 86, WS_SIZE)
    srd(a, 20, 74, 1024)
    srd(a, 24, 76, 1024)
    srd(a, 28, 82, 1024)
    a("""
    v_and_b32 v4, 31, v2
    s_lshl_b32 s88, s33, 5
    v_add_u32 v4, s88, v4                   ; channel
    v_lshlrev_b32 v5, 1, v4
    buffer_load_ushort v6, v5, s[20:23], 0 offen
    buffer_load_ushort v7, v5, s[24:27], 0 offen
    buffer_load_ushort v8, v5, s[28:31], 0 offen
    """)
    XR = 16
    a("""
    s_lshl_b32 s88, s32, 7
    s_lshl_b32 s89, s34, 4
    s_add_u32 s88, s88, s89
    s_lshl_b32 s88, s88, 10
    v_lshl_add_u32 v3, v2, 4, s88
    """)
    for i in range(16):
        if i % 4 == 0:
            a(f"s_mov_b32 s{90 + i // 4}, {(i // 4) * 4096}")
    for i in range(16):
        a(f"buffer_load_dwordx4 v[{XR+4*i}:{XR+4*i+3}], v3, s[4:7], s{90 + i // 4} offen offset:{(i % 4) * 1024}")
    VB, VW = 240, 241
    a(f"""
    v_lshrrev_b32 v9, 3, v2
    s_lshl_b32 s88, s34, 3
    v_add_u32 v9, s88, v9                   ; row 0..63
    v_bfe_u32 v10, v9, 1, 3                 ; key
    v_and_b32 v11, 7, v2
    v_xor_b32 v10, v10, v11                 ; chunk
    v_and_b32 v9, 31, v9
    s_lshl_b32 s88, s33, 5
    v_add_u32 v9, s88, v9                   ; p
    v_lshlrev_b32 v9, 10, v9
    v_lshl_add_u32 v{VB}, v10, 4, v9
    v_lshrrev_b32 v9, 4, v2                 ; l>>4  (0..3)
    s_and_b32 s88, s34, 1
    s_lshl_b32 s88, s88, 2
    v_or_b32 v10, s88, v9                   ; s(k)
    v_bfe_u32 v11, v2, 1, 3                 ; pair'
    v_xor_b32 v10, v10, v11                 ; pair
    v_lshlrev_b32 v10, 5, v10
    v_and_b32 v11, 1, v2
    v_lshl_add_u32 v10, v11, 4, v10
    s_lshl_b32 s88, s34, 3
    v_add_u32 v9, s88, v9                   ; k local (j=0)
    s_movk_i32 s89, 3584
    v_mul_lo_u32 v9, v9, s89
    s_mul_i32 s88, s33, 224
    v_add3_u32 v{VW}, v9, v10, s88
    """)
    def dma_stage(st):
        base = K1_SLOT[K1_STAGE_SLOT[st]]
        a(f"""
        s_lshl_b32 s88, s34, 10
        s_add_u32 s88, s88, {base}
        s_mov_b32 m0, s88
        s_mov_b32 s89, {st * 128}
        buffer_load_dwordx4 v{VB}, s[8:11], s89 offen lds
        s_lshl_b32 s88, s34, 11
        s_add_u32 s88, s88, {base + 8192}
        s_mov_b32 m0, s88
        s_mov_b32 s89, {st * 64 * 3584}
        buffer_load_dwordx4 v{VW}, s[12:15], s89 offen lds
        s_add_u32 s88, s88, 1024
        s_mov_b32 m0, s88
        s_mov_b32 s89, {st * 64 * 3584 + 4 * 3584}
        buffer_load_dwordx4 v{VW}, s[12:15], s89 offen lds
        """)
    dma_stage(0)
    a(f"""
    s_waitcnt vmcnt(19)
    v_lshlrev_b32 v80, 16, v6               ; Lre
    v_lshlrev_b32 v81, 16, v7               ; Lim
    v_lshlrev_b32 v82, 16, v8               ; log_dt
    v_mul_f32 v82, {f2u(1.4426950408889634):#x}, v82
    v_exp_f32 v82, v82
    v_cvt_pk_bf16_f32 v82, v82, v82
    v_lshlrev_b32 v82, 16, v82
    v_mul_f32 v83, v82, v80                 ; a
    v_mul_f32 v84, v82, v81                 ; b
    v_mul_f32 v83, {f2u(1.4426950408889634):#x}, v83
    v_exp_f32 v83, v83                      ; e^a
    v_mul_f32 v85, {f2u(0.6366197723675814):#x}, v84
    v_rndne_f32 v85, v85                    ; n
    v_mov_b32 v86, {f2u(1.5703125):#x}
    v_fma_f32 v84, -v85, v86, v84
    v_mov_b32 v86, {f2u(4.837512969970703125e-4):#x}
    v_fma_f32 v84, -v85, v86, v84
    v_mov_b32 v86, {f2u(7.54978995489188216e-8):#x}
    v_fma_f32 v84, -v85, v86, v84           ; r
    v_cvt_i32_f32 v85, v85                  ; q
    v_mul_f32 v86, v84, v84                 ; z
    v_mov_b32 v87, {f2u(-1.9515295891e-4):#x}
    v_mov_b32 v88, {f2u(8.3321608736e-3):#x}
    v_fma_f32 v87, v87, v86, v88
    v_mov_b32 v88, {f2u(-1.6666654611e-1):#x}
    v_fma_f32 v87, v87, v86, v88
    v_mul_f32 v87, v87, v86
    v_fma_f32 v87, v87, v84, v84            ; sin r
    v_mov_b32 v88, {f2u(2.443315711809948e-5):#x}
    v_mov_b32 v89, {f2u(-1.388731625493765e-3):#x}
    v_fma_f32 v88, v88, v86, v89
    v_mov_b32 v89, {f2u(4.166664568298827e-2):#x}
    v_fma_f32 v88, v88, v86, v89
    v_mul_f32 v88, v88, v86
    v_fma_f32 v88, v88, v86, 1.0
    v_fma_f32 v88, v86, -0.5, v88           ; cos r
    v_and_b32 v89, 1, v85
    v_cmp_eq_u32 vcc, 1, v89
    v_cndmask_b32 v90, v87, v88, vcc
    v_cndmask_b32 v91, v88, v87, vcc
    v_lshlrev_b32 v89, 30, v85
    v_and_b32 v89, 0x80000000, v89          ; (q&2) -> sign
    v_xor_b32 v90, v90, v89                 ; sin b
    v_add_u32 v89, 1, v85
    v_lshlrev_b32 v89, 30, v89
    v_and_b32 v89, 0x80000000, v89
    v_xor_b32 v91, v91, v89                 ; cos b
    v_mul_f32 v92, v83, v91
    v_mul_f32 v93, v83, v90
    v_add_f32 v84, -1.0, v92                ; Lr-1
    v_mul_f32 v85, v93, v81
    v_fma_f32 v85, v84, v80, v85
    v_mul_f32 v86, v84, v81
    v_fma_f32 v86, v93, v80, -v86
    v_mul_f32 v87, v81, v81
    v_fma_f32 v87, v80, v80, v87            ; den
    v_rcp_f32 v88, v87
    v_fma_f32 v89, -v87, v88, 2.0
    v_mul_f32 v88, v88, v89
    v_mul_f32 v94, v85, v88
    v_mul_f32 v95, v86, v88
    """)
    cplx_sq(a, 98, 92, 84)
    cplx_sq(a, 100, 98, 84)
    cplx_sq(a, 96, 100, 84)
    cplx_sq(a, 98, 96, 84)
    cplx_sq(a, 100, 98, 84)
    cplx_sq(a, 98, 100, 84)
    cplx_sq(a, 100, 98, 84)
    a(f"""
    s_cmp_lg_u32 s34, 0
    s_cbranch_scc1 K1_notab
    v_and_b32 v84, 31, v2
    v_lshlrev_b32 v84, 5, v84
    v_add_u32 v84, {K1_TABL}, v84
    ds_write_b128 v84, v[92:95]
    ds_write_b64 v84, v[96:97] offset:16
    s_cmp_lg_u32 s32, 0
    s_cbranch_scc1 K1_notab
    v_lshlrev_b32 v84, 3, v4
    s_mov_b32 s88, {WS_TAB}
    buffer_store_dwordx2 v[92:93], v84, s[16:19], s88 offen
    s_mov_b32 s88, {WS_TAB + 4096}
    buffer_store_dwordx2 v[96:97], v84, s[16:19], s88 offen
    s_mov_b32 s88, {WS_TAB + 8192}
    buffer_store_dwordx2 v[98:99], v84, s[16:19], s88 offen
    s_mov_b32 s88, {WS_TAB + 12288}
    buffer_store_dwordx2 v[100:101], v84, s[16:19], s88 offen
    K1_notab:
    """)
    S1, S2 = 80, 96
    a("s_mov_b32 s88, 0x3f803f80")
    a("s_waitcnt vmcnt(0)")
    for i in range(16):
        x = XR + 4 * i
        a(f"v_dot2_f32_bf16 v{S1+i}, v{x}, s88, 0")
        a(f"v_dot2_f32_bf16 v{S2+i}, v{x}, v{x}, 0")
    for c in range(1, 4):
        for i in range(16):
            x = XR + 4 * i + c
            a(f"v_dot2_f32_bf16 v{S1+i}, v{x}, s88, v{S1+i}")
            a(f"v_dot2_f32_bf16 v{S2+i}, v{x}, v{x}, v{S2+i}")
    for S in (S1, S2):
        for i in range(8):
            a(f"v_permlane32_swap_b32 v{S+i}, v{S+i+8}")
        for i in range(8):
            a(f"v_add_f32 v{S+i}, v{S+i}, v{S+i+8}")
    for S in (S1, S2):
        for i in range(4):
            a(f"v_permlane16_swap_b32 v{S+i}, v{S+i+4}")
        for i in range(4):
            a(f"v_add_f32 v{S+i}, v{S+i}, v{S+i+4}")
    for mod in ("quad_perm:[1,0,3,2]", "quad_perm:[2,3,0,1]", "row_half_mirror", "row_mirror"):
        for S in (S1, S2):
            for i in range(4):
                a(f"v_add_f32_dpp v{S+i}, v{S+i}, v{S+i} {mod} row_mask:0xf bank_mask:0xf")
    for j in range(4):
        a(f"v_mul_f32 v{S1+j}, {f2u(1/512):#x}, v{S1+j}")
        a(f"v_mul_f32 v{S2+j}, {f2u(1/512):#x}, v{S2+j}")
    for j in range(4):
        a(f"v_fma_f32 v{S2+j}, -v{S1+j}, v{S1+j}, v{S2+j}")
    for j in range(4):
        a(f"v_max_f32 v{S2+j}, 0, v{S2+j}")
    for j in range(4):
        a(f"v_cvt_pk_bf16_f32 v{S1+4+j}, v{S1+j}, v{S2+j}")
    for j in range(4):
        a(f"v_lshlrev_b32 v{S1+j}, 16, v{S1+4+j}")
        a(f"v_and_b32 v{S2+j}, 0xffff0000, v{S1+4+j}")
    for j in range(4):
        a(f"v_add_f32 v{S2+j}, {f2u(1e-5):#x}, v{S2+j}")
    for j in range(4):
        a(f"v_cvt_pk_bf16_f32 v{S2+j}, v{S2+j}, v{S2+j}")
    for j in range(4):
        a(f"v_lshlrev_b32 v{S2+j}, 16, v{S2+j}")
    for j in range(4):
        a(f"v_sqrt_f32 v{S2+j}, v{S2+j}")
    for j in range(4):
        a(f"v_cvt_pk_bf16_f32 v{S2+j}, v{S2+j}, v{S2+j}")
    for j in range(4):
        a(f"v_lshlrev_b32 v{S2+j}, 16, v{S2+j}")
    for j in range(4):
        a(f"v_rcp_f32 v{S2+4+j}, v{S2+j}")
    for j in range(4):
        a(f"v_fma_f32 v{S2+8+j}, -v{S2+j}, v{S2+4+j}, 2.0")
    for j in range(4):
        a(f"v_mul_f32 v{S2+j}, v{S2+4+j}, v{S2+8+j}")
    for j in range(4):
        for q in range(4):
            row = j + 4 * q
            a(f"v_readlane_b32 s{40+2*row}, v{S1+j}, {16*q}")
            a(f"v_readlane_b32 s{41+2*row}, v{S2+j}, {16*q}")
    a("""
    s_lshl_b32 s88, s34, 3
    s_and_b32 s88, s88, 12
    v_xor_b32 v4, s88, v2
    v_lshlrev_b32 v4, 4, v4
    s_lshl_b32 s88, s34, 14
    v_add_u32 v4, s88, v4
    """)
    T = 112
    for i in range(16):
        sp = f"s[{40+2*i}:{41+2*i}]"
        for c in range(4):
            x = XR + 4 * i + c; t = T + 2 * c
            a(f"v_lshlrev_b32 v{t}, 16, v{x}")
            a(f"v_and_b32 v{t+1}, 0xffff0000, v{x}")
        for c in range(4):
            t = T + 2 * c
            a(f"v_pk_add_f32 v[{t}:{t+1}], v[{t}:{t+1}], {sp} op_sel_hi:[1,0] neg_lo:[0,1] neg_hi:[0,1]")
        for c in range(4):
            t = T + 2 * c
            a(f"v_cvt_pk_bf16_f32 v{T+8+c}, v{t}, v{t+1}")
        for c in range(4):
            t = T + 2 * c
            a(f"v_lshlrev_b32 v{t}, 16, v{T+8+c}")
            a(f"v_and_b32 v{t+1}, 0xffff0000, v{T+8+c}")
        for c in range(4):
            t = T + 2 * c
            a(f"v_pk_mul_f32 v[{t}:{t+1}], v[{t}:{t+1}], {sp} op_sel:[0,1] op_sel_hi:[1,1]")
        for c in range(4):
            x = XR + 4 * i + c; t = T + 2 * c
            a(f"v_cvt_pk_bf16_f32 v{x}, v{t}, v{t+1}")
        ki = (i & 3) | ((i >> 3) << 2)
        a(f"v_xor_b32 v{T+12+(i&1)}, {ki*16}, v4")
        a(f"ds_write_b128 v{T+12+(i&1)}, v[{XR+4*i}:{XR+4*i+3}] offset:{i*1024}")
    a("s_cmp_lg_u32 s33, 0\ns_cbranch_scc1 K1_noxn")
    for i in range(16):
        a(f"buffer_store_dwordx4 v[{XR+4*i}:{XR+4*i+3}], v3, s[16:19], s{90 + i // 4} offen offset:{(i % 4) * 1024}")
    a("K1_noxn:")
    a("s_waitcnt lgkmcnt(0)\ns_barrier")
    AF = 16
    a("""
    v_and_b32 v9, 15, v2                    ; m
    v_lshrrev_b32 v10, 4, v2                ; g
    v_and_b32 v11, 3, v9                    ; m&3
    v_lshrrev_b32 v12, 2, v9                ; m>>2
    v_lshl_add_u32 v13, v12, 3, v11         ; 8*(m>>2) + (m&3)
    s_lshl_b32 s88, s35, 5
    v_add_u32 v13, s88, v13                 ; R (T=0)
    v_lshlrev_b32 v13, 10, v13
    v_xor_b32 v14, v10, v11                 ; g ^ (m&3)
    v_lshl_add_u32 v13, v14, 4, v13
    """)
    for q in range(4):
        a(f"v_xor_b32 v14, {q}, v12")
        a(f"v_lshl_add_u32 v{5+q}, v14, 6, v13")
    for Tt in range(2):
        for ks in range(16):
            r = AF + (Tt * 16 + ks) * 4
            a(f"ds_read_b128 v[{r}:{r+3}], v{5+(ks&3)} offset:{(ks>>2)*256 + Tt*4096}")
    VA0, VA1, VF = 242, 243, 244
    a(f"""
    v_bfe_u32 v11, v9, 1, 3                 ; key = (n>>1)&7
    v_xor_b32 v11, v11, v10
    s_lshl_b32 s88, s36, 4
    v_add_u32 v12, s88, v9
    v_lshlrev_b32 v12, 7, v12
    v_lshl_add_u32 v{VA0}, v11, 4, v12
    v_xor_b32 v11, 4, v11
    v_lshl_add_u32 v{VA1}, v11, 4, v12
    v_bfe_u32 v11, v2, 2, 2                 ; r
    v_and_b32 v12, 1, v10
    v_lshl_or_b32 v12, v12, 2, v11          ; sw
    v_lshl_add_u32 v13, v10, 3, v11         ; 8g + r
    v_lshlrev_b32 v13, 8, v13
    v_and_b32 v14, 3, v2
    v_lshl_add_u32 v13, v14, 3, v13         ; + c*8
    v_add_u32 v13, 8192, v13
    s_lshl_b32 s88, s36, 2
    """)
    for p in range(4):
        a(f"""
        s_add_u32 s89, s88, {p}
        v_xor_b32 v14, s89, v12
        v_lshl_add_u32 v{VF+p}, v14, 5, v13
        """)
    ACC, BF = 144, 192
    for r in range(48):
        a(f"v_mov_b32 v{ACC+r}, 0")
    for r in (VA0, VA1, VF, VF+1, VF+2, VF+3):
        a(f"v_add_u32 v{r}, {K1_SLOT[0]}, v{r}")
    a("s_waitcnt vmcnt(0) lgkmcnt(0)\ns_barrier")
    for st in range(1, 6):
        dma_stage(st)
    a("s_cmp_lg_u32 s36, 0\ns_cbranch_scc1 K1_main1")
    waits = {1: 12, 2: 12, 3: 12, 4: 9, 5: 6, 6: 3, 7: 0}
    for wc in range(2):
        nf = 4 if wc == 0 else 3
        if wc == 1: a("K1_main1:")
        for st in range(8):
            if st > 0:
                a(f"s_waitcnt vmcnt({waits[st]})\ns_barrier")
                d = K1_SLOT[K1_STAGE_SLOT[st]] - K1_SLOT[K1_STAGE_SLOT[st-1]]
                for r in [VA0, VA1] + [VF + p for p in range(nf)]:
                    if d >= 0: a(f"v_add_u32 v{r}, {d}, v{r}")
                    else: a(f"v_subrev_u32 v{r}, {-d}, v{r}")
                if st in (1, 2): dma_stage(st + 5)
            for ks in range(2):
                b = BF + ks * 24
                va = VA0 if ks == 0 else VA1
                a(f"ds_read_b128 v[{b}:{b+3}], v{va}")
                a(f"ds_read_b128 v[{b+4}:{b+7}], v{va} offset:4096")
                for p in range(nf):
                    a(f"ds_read_b64_tr_b16 v[{b+8+4*p}:{b+9+4*p}], v{VF+p} offset:{ks*8192}")
                    a(f"ds_read_b64_tr_b16 v[{b+10+4*p}:{b+11+4*p}], v{VF+p} offset:{ks*8192+1024}")
            nrd = 2 + 2 * nf
            for ks in range(2):
                b = BF + ks * 24
                kk = st * 2 + ks
                a(f"s_waitcnt lgkmcnt({nrd if ks == 0 else 0})")
                for Tt in range(2):
                    af = AF + (Tt * 16 + kk) * 4
                    for t in range(2):
                        ac = ACC + (t * 2 + Tt) * 4
                        a(f"v_mfma_f32_16x16x32_bf16 v[{ac}:{ac+3}], v[{af}:{af+3}], v[{b+4*t}:{b+4*t+3}], v[{ac}:{ac+3}]")
                    for p in range(nf):
                        ac = ACC + 16 + (p * 2 + Tt) * 4
                        a(f"v_mfma_f32_16x16x32_bf16 v[{ac}:{ac+3}], v[{b+8+4*p}:{b+8+4*p+3}], v[{af}:{af+3}], v[{ac}:{ac+3}]")
        if wc == 0: a("s_branch K1_epi")
    a("K1_epi:")
    a(f"""
    v_and_b32 v9, 15, v2
    v_lshrrev_b32 v10, 4, v2
    s_lshl_b32 s88, s36, 4
    v_add_u32 v11, s88, v9
    v_lshlrev_b32 v12, 5, v11
    v_add_u32 v12, {K1_TABL}, v12
    ds_read_b128 v[4:7], v12
    s_lshl_b32 s88, s32, 7
    s_lshl_b32 s89, s35, 5
    s_add_u32 s88, s88, s89
    v_lshl_add_u32 v13, v10, 3, s88
    v_lshlrev_b32 v13, 12, v13
    s_lshl_b32 s89, s33, 5
    v_add_u32 v14, s89, v11
    v_lshl_add_u32 v13, v14, 3, v13
    s_waitcnt lgkmcnt(0)
    """)
    U = 16
    for Tt in range(2):
        for r in range(4):
            i = 4 * Tt + r
            re = ACC + (0 * 2 + Tt) * 4 + r
            im = ACC + (1 * 2 + Tt) * 4 + r
            a(f"""
            v_mul_f32 v{U+2*i}, v7, v{im}
            v_mul_f32 v{U+2*i+1}, v7, v{re}
            v_fma_f32 v{U+2*i}, v6, v{re}, -v{U+2*i}
            v_fma_f32 v{U+2*i+1}, v6, v{im}, v{U+2*i+1}
            """)
    for i in range(8):
        a(f"s_mov_b32 s88, {WS_BU + i * 4096}")
        a(f"buffer_store_dwordx2 v[{U+2*i}:{U+2*i+1}], v13, s[16:19], s88 offen")
    E = 32
    a(f"v_mov_b32 v{E}, v{U}\nv_mov_b32 v{E+1}, v{U+1}")
    for i in range(1, 8):
        a(f"v_pk_fma_f32 v[{E+2}:{E+3}], v[{E}:{E+1}], v[4:5], v[{U+2*i}:{U+2*i+1}] op_sel_hi:[1,0,1]")
        a(f"v_pk_fma_f32 v[{E}:{E+1}], v[{E}:{E+1}], v[4:5], v[{E+2}:{E+3}] op_sel:[1,1,0] op_sel_hi:[0,1,1] neg_lo:[0,1,0]")
    a(f"""
    s_lshl_b32 s88, s35, 2
    v_add_u32 v12, s88, v10
    v_lshlrev_b32 v12, 8, v12
    v_lshl_add_u32 v12, v11, 3, v12
    v_add_u32 v12, {K1_E8}, v12
    ds_write_b64 v12, v[{E}:{E+1}]
    """)
    a(f"""
    v_lshrrev_b32 v12, 2, v9
    v_and_b32 v14, 3, v9
    v_lshl_add_u32 v12, v12, 3, v14
    s_lshl_b32 s88, s32, 7
    s_lshl_b32 s89, s35, 5
    s_add_u32 s88, s88, s89
    v_add_u32 v12, s88, v12                 ; t
    s_movk_i32 s89, 3584
    v_mul_lo_u32 v12, v12, s89
    s_mul_i32 s88, s33, 224
    s_lshl_b32 s89, s36, 7
    s_add_u32 s88, s88, s89
    v_lshl_add_u32 v12, v10, 3, v12
    v_add_u32 v12, s88, v12
    s_mov_b32 s90, {WS_H1}
    s_mov_b32 s91, {WS_H1 + 4 * 3584}
    s_mov_b32 s92, {f2u(-1.4426950408889634):#x}
    """)
    def ffn_tile(p):
        for Tt in range(2):
            ac = ACC + 16 + (p * 2 + Tt) * 4
            t = 40 + Tt * 16
            a(f"""
            v_cvt_pk_bf16_f32 v{t}, v{ac}, v{ac+1}
            v_cvt_pk_bf16_f32 v{t+1}, v{ac+2}, v{ac+3}
            v_lshlrev_b32 v{t+4}, 16, v{t}
            v_and_b32 v{t+5}, 0xffff0000, v{t}
            v_lshlrev_b32 v{t+6}, 16, v{t+1}
            v_and_b32 v{t+7}, 0xffff0000, v{t+1}
            """)
            for r in range(4): a(f"v_mul_f32 v{t+8+r}, s92, v{t+4+r}")
            for r in range(4): a(f"v_exp_f32 v{t+8+r}, v{t+8+r}")
            for r in range(4): a(f"v_add_f32 v{t+8+r}, 1.0, v{t+8+r}")
            for r in range(4): a(f"v_rcp_f32 v{t+8+r}, v{t+8+r}")
            for r in range(4): a(f"v_mul_f32 v{t+4+r}, v{t+4+r}, v{t+8+r}")
            a(f"""
            v_cvt_pk_bf16_f32 v{t+2}, v{t+4}, v{t+5}
            v_cvt_pk_bf16_f32 v{t+3}, v{t+6}, v{t+7}
            buffer_store_dwordx2 v[{t+2}:{t+3}], v12, s[16:19], s{90+Tt} offen offset:{p*32}
            """)
    for p in range(3): ffn_tile(p)
    a("s_cmp_lg_u32 s36, 0\ns_cbranch_scc1 K1_no4")
    ffn_tile(3)
    a("K1_no4:")
    a("s_waitcnt lgkmcnt(0)\ns_barrier")
    a(f"""
    s_cmp_lg_u32 s34, 0
    s_cbranch_scc1 K1_done
    v_and_b32 v9, 31, v2
    v_lshlrev_b32 v10, 5, v9
    v_add_u32 v10, {K1_TABL}, v10
    ds_read_b64 v[4:5], v10 offset:16
    v_lshlrev_b32 v10, 3, v9
    v_add_u32 v11, {K1_E8}, v10
    """)
    for sgm in range(16):
        a(f"ds_read_b64 v[{16+2*sgm}:{17+2*sgm}], v11 offset:{sgm*256}")
    a(f"""
    s_lshl_b32 s88, s32, 16                 ; rt*16*512*8
    s_lshl_b32 s89, s33, 8                  ; cg*32*8
    s_add_u32 s88, s88, s89
    v_add_u32 v10, s88, v10
    v_cmp_gt_u32 vcc, 32, v2
    s_and_saveexec_b64 s[94:95], vcc
    s_waitcnt lgkmcnt(0)
    """)
    for sgm in range(16):
        if sgm > 0:
            c = 16 + 2 * sgm; p = c - 2
            a(f"v_pk_fma_f32 v[{c}:{c+1}], v[{p}:{p+1}], v[4:5], v[{c}:{c+1}] op_sel_hi:[1,0,1]")
            a(f"v_pk_fma_f32 v[{c}:{c+1}], v[{p}:{p+1}], v[4:5], v[{c}:{c+1}] op_sel:[1,1,0] op_sel_hi:[0,1,1] neg_lo:[0,1,0]")
        a(f"s_mov_b32 s88, {WS_S8 + sgm * 4096}")
        a(f"buffer_store_dwordx2 v[{16+2*sgm}:{17+2*sgm}], v10, s[16:19], s88 offen")
    a("K1_done:")
    a("s_endpgm")

K3_SLOT = [0, 40960, 81920]
K3_HB = 122880
K3_LDS = 155648

def cmul_acc(a, d, x, m, add):
    if add is None:
        a(f"v_pk_mul_f32 v[{d}:{d+1}], v[{x}:{x+1}], v[{m}:{m+1}] op_sel_hi:[1,0]")
    else:
        a(f"v_pk_fma_f32 v[{d}:{d+1}], v[{x}:{x+1}], v[{m}:{m+1}], v[{add}:{add+1}] op_sel_hi:[1,0,1]")
    a(f"v_pk_fma_f32 v[{d}:{d+1}], v[{x}:{x+1}], v[{m}:{m+1}], v[{d}:{d+1}] op_sel:[1,1,0] op_sel_hi:[0,1,1] neg_lo:[0,1,0]")

def gen_k3(a):
    ACC, WF, AF = 16, 80, 96
    VH0, VH1, VW0, VW1, VC = 112, 113, 114, 115, 116
    VB128, VTR = 117, 118
    VBU, VTAB, VHW = 122, 123, 124
    CAR = 128
    BUF = [160, 178]
    H, P, TT = 196, 212, 228
    a.raw(".p2align 8\nk3_kernel:")
    a("""
    s_cmp_ge_u32 s2, 256
    s_cbranch_scc1 K3_done
    s_load_dwordx2 s[72:73], s[0:1], 0      ; x
    s_load_dwordx4 s[76:79], s[0:1], 40
    s_load_dwordx2 s[80:81], s[0:1], 64     ; Dskip
    s_load_dwordx4 s[84:87], s[0:1], 88     ; w2, out
    s_load_dwordx2 s[82:83], s[0:1], 112    ; ws
    v_lshrrev_b32 v1, 6, v0
    v_and_b32 v2, 63, v0                    ; lane
    v_readfirstlane_b32 s34, v1             ; wave
    s_and_b32 s32, s2, 7
    s_lshl_b32 s32, s32, 2
    s_bfe_u32 s88, s2, 0x20003
    s_add_u32 s32, s32, s88                 ; rt64
    s_lshr_b32 s33, s2, 5                   ; ct
    s_and_b32 s35, s34, 3                   ; w4
    s_lshr_b32 s36, s34, 2                  ; role
    s_lshr_b32 s37, s32, 1                  ; tile128
    s_and_b32 s38, s32, 1                   ; half
    s_waitcnt lgkmcnt(0)
    """)
    srd(a, 4, 82, WS_SIZE)
    srd(a, 8, 84, 1792 * 1024)
    a("""
    s_cmp_lt_u32 s34, 4
    s_cselect_b32 s88, s76, s78
    s_cselect_b32 s89, s77, s79
    """)
    srd(a, 12, 88, 512 * 1024)
    srd(a, 16, 72, 2048 * 1024)
    srd(a, 20, 86, 2048 * 2048)
    srd(a, 24, 80, 1024)
    for i in range(8):
        a(f"s_mov_b32 s{40+i}, {i*4096}")
    a(f"""
    v_lshlrev_b32 v3, 3, v0                 ; ch*8
    s_mov_b32 s88, {WS_TAB + 4096}
    buffer_load_dwordx2 v[16:17], v3, s[4:7], s88 offen
    s_mov_b32 s88, {WS_TAB + 8192}
    buffer_load_dwordx2 v[18:19], v3, s[4:7], s88 offen
    s_mov_b32 s88, {WS_TAB + 12288}
    buffer_load_dwordx2 v[20:21], v3, s[4:7], s88 offen
    """)
    for i in range(15):
        a(f"s_mov_b32 s88, {WS_S8 + i * 65536 + 15 * 4096}")
        a(f"buffer_load_dwordx2 v[{22+2*i}:{23+2*i}], v3, s[4:7], s88 offen")
    a(f"""
    s_lshl_b32 s89, s32, 15                 ; rt64*8*4096
    s_add_u32 s89, s89, {WS_S8 - 4096}
    """)
    for q in range(8):
        a(f"s_add_u32 s88, s89, {q * 4096}")
        a(f"buffer_load_dwordx2 v[{52+2*q}:{53+2*q}], v3, s[4:7], s88 offen")
    a(f"""
    v_and_b32 v9, 15, v2                    ; n / m
    v_lshrrev_b32 v10, 4, v2                ; g
    s_lshl_b32 s88, s34, 3
    v_add_u32 v11, s88, v10                 ; row (j=0)
    s_lshl_b32 s89, s32, 6
    s_movk_i32 s90, 3584
    """)
    for j, V in ((0, VH0), (1, VH1)):
        a(f"""
        v_add_u32 v12, {4*j}, v11
        v_and_b32 v13, 15, v12
        v_xor_b32 v13, v13, v9
        v_add_u32 v12, s89, v12
        v_mul_lo_u32 v12, v12, s90
        v_lshl_add_u32 v12, v13, 4, v12
        v_add_u32 v{V}, {WS_H1}, v12
        """)
    a(f"""
    v_lshrrev_b32 v11, 3, v2
    s_lshl_b32 s88, s34, 4
    v_add_u32 v11, s88, v11
    v_lshlrev_b32 v11, 10, v11              ; k*1024 (j=0)
    s_lshl_b32 s88, s33, 7
    v_add_u32 v11, s88, v11
    v_and_b32 v12, 1, v2
    v_lshl_add_u32 v11, v12, 4, v11
    v_bfe_u32 v12, v2, 1, 2                 ; unit'
    v_and_b32 v13, 1, v10
    v_xor_b32 v12, v12, v13
    v_lshl_add_u32 v{VW0}, v12, 5, v11
    v_xor_b32 v12, 2, v12
    v_lshl_add_u32 v{VW1}, v12, 5, v11
    v_add_u32 v{VW1}, 8192, v{VW1}
    v_lshrrev_b32 v11, 2, v2
    s_lshl_b32 s88, s35, 4
    s_lshl_b32 s89, s33, 6
    s_add_u32 s88, s88, s89
    v_add_u32 v11, s88, v11
    v_lshlrev_b32 v11, 10, v11
    v_sub_u32 v12, 4, v10
    v_xor_b32 v12, v12, v2
    v_and_b32 v12, 3, v12
    v_lshl_add_u32 v{VC}, v12, 4, v11
    v_bfe_u32 v11, v2, 2, 2                 ; r
    v_lshl_add_u32 v12, v10, 3, v11         ; 8g + r
    v_lshlrev_b32 v12, 7, v12
    v_and_b32 v13, 3, v2
    v_lshl_add_u32 v12, v13, 3, v12         ; k*128 + c*8
    v_lshrrev_b32 v11, 1, v11
    v_and_b32 v13, 1, v10
    v_lshl_or_b32 v11, v13, 1, v11          ; s(k)
    """)
    def dma(r):
        base = K3_SLOT[r % 3]
        n = 0
        if r < 14:
            for j, V in ((0, VH0), (1, VH1)):
                a(f"""
                s_lshl_b32 s88, s34, 11
                s_add_u32 s88, s88, {base + j * 1024}
                s_mov_b32 m0, s88
                s_mov_b32 s89, {r * 256}
                buffer_load_dwordx4 v{V}, s[4:7], s89 offen lds
                """)
            for j, V in ((0, VW0), (1, VW1)):
                a(f"""
                s_lshl_b32 s88, s34, 11
                s_add_u32 s88, s88, {base + 16384 + j * 1024}
                s_mov_b32 m0, s88
                s_mov_b32 s89, {r * 131072}
                buffer_load_dwordx4 v{V}, s[8:11], s89 offen lds
                """)
            n = 4
        a(f"""
        s_lshl_b32 s88, s34, 10
        s_add_u32 s88, s88, {base + 32768}
        s_mov_b32 m0, s88
        s_mov_b32 s89, {r * 64}
        buffer_load_dwordx4 v{VC}, s[12:15], s89 offen lds
        """)
        return n + 1
    def bu_loads(r):
        b = BUF[r & 1]
        for i in range(8):
            a(f"buffer_load_dwordx2 v[{b+2*i}:{b+2*i+1}], v{VBU}, s[4:7], s{40+i} offen offset:{r*256}")
        a(f"buffer_load_dwordx2 v[{b+16}:{b+17}], v{VTAB}, s[4:7], s48 offen offset:{r*256}")
        return 9
    def scan_list(r):
        b = BUF[r & 1]; L = b + 16
        o = []
        prev = CAR + 2 * r
        for i in range(8):
            h = H + 2 * i
            o.append(f"v_pk_fma_f32 v[{h}:{h+1}], v[{prev}:{prev+1}], v[{L}:{L+1}], v[{b+2*i}:{b+2*i+1}] op_sel_hi:[1,0,1]")
            o.append(f"v_pk_fma_f32 v[{h}:{h+1}], v[{prev}:{prev+1}], v[{L}:{L+1}], v[{h}:{h+1}] op_sel:[1,1,0] op_sel_hi:[0,1,1] neg_lo:[0,1,0]")
            prev = h
        for q in range(4):
            h0, h1 = H + 4 * q, H + 4 * q + 2
            t = TT + 4 * (q & 1)
            o += [f"v_cvt_pk_bf16_f32 v{P+q}, v{h0}, v{h1}",
                  f"v_cvt_pk_bf16_f32 v{P+8+q}, -v{h0+1}, -v{h1+1}",
                  f"v_lshlrev_b32 v{t}, 16, v{P+q}",
                  f"v_lshlrev_b32 v{t+1}, 16, v{P+8+q}",
                  f"v_and_b32 v{t+2}, 0xffff0000, v{P+q}",
                  f"v_and_b32 v{t+3}, 0xffff0000, v{P+8+q}",
                  f"v_pk_add_f32 v[{t}:{t+1}], v[{h0}:{h0+1}], v[{t}:{t+1}] neg_lo:[0,1] neg_hi:[1,1]",
                  f"v_pk_add_f32 v[{t+2}:{t+3}], v[{h1}:{h1+1}], v[{t+2}:{t+3}] neg_lo:[0,1] neg_hi:[1,1]",
                  f"v_cvt_pk_bf16_f32 v{P+4+q}, v{t}, v{t+2}",
                  f"v_cvt_pk_bf16_f32 v{P+12+q}, v{t+1}, v{t+3}"]
        for pl in range(4):
            o.append(f"ds_write_b128 v{VHW}, v[{P+4*pl}:{P+4*pl+3}] offset:{(r & 1) * 16384 + pl * 4096}")
        return o

    a("s_cmp_lg_u32 s36, 0\ns_cbranch_scc1 K3_role1")
    for role in range(2):
        if role == 1: a("K3_role1:")
        if role == 0:
            a(f"""
            s_lshl_b32 s88, s35, 12
            s_add_u32 s88, s88, {K3_HB}
            v_add_u32 v12, s88, v12
            """)
            for tt in range(4):
                a(f"v_xor_b32 v13, {tt}, v11\nv_lshl_add_u32 v{VTR+tt}, v13, 5, v12")
            a(f"""
            v_lshrrev_b32 v13, 2, v9
            v_sub_u32 v13, 4, v13
            v_xor_b32 v13, v13, v10
            v_and_b32 v13, 3, v13
            v_lshlrev_b32 v13, 4, v13
            v_lshl_add_u32 v13, v9, 6, v13
            s_lshr_b32 s88, s35, 1
            s_lshl_b32 s88, s88, 12
            s_add_u32 s88, s88, 32768
            v_add_u32 v{VB128}, s88, v13
            v_and_b32 v13, 31, v2
            v_lshrrev_b32 v14, 5, v2
            s_lshl_b32 s88, s35, 1
            v_add_u32 v15, s88, v14                 ; sg
            s_lshl_b32 s88, s32, 6
            v_lshl_add_u32 v4, v15, 3, s88
            v_lshlrev_b32 v4, 12, v4
            v_lshl_add_u32 v4, v13, 3, v4
            v_add_u32 v{VBU}, {WS_BU}, v4
            v_lshlrev_b32 v{VTAB}, 3, v13
            s_mov_b32 s48, {WS_TAB}
            v_bfe_u32 v4, v13, 1, 1
            v_bfe_u32 v5, v13, 3, 1
            v_lshl_or_b32 v4, v5, 1, v4             ; s(chl)
            v_xor_b32 v4, s35, v4
            v_lshlrev_b32 v4, 5, v4
            v_lshl_add_u32 v4, v13, 7, v4
            v_lshl_add_u32 v4, v14, 4, v4
            v_add_u32 v{VHW}, {K3_HB}, v4
            v_lshlrev_b32 v15, 12, v15
            v_lshl_add_u32 v15, v13, 3, v15
            v_add_u32 v15, {K3_HB}, v15
            """)
            nb = bu_loads(0) + bu_loads(1)
        else:
            a(f"""
            s_lshl_b32 s88, s35, 12
            s_add_u32 s88, s88, 16384
            v_add_u32 v12, s88, v12
            """)
            for dt in range(4):
                a(f"v_xor_b32 v13, {dt}, v11\nv_lshl_add_u32 v{VTR+dt}, v13, 5, v12")
            a(f"""
            s_lshl_b32 s88, s35, 2
            v_add_u32 v13, s88, v10
            v_xor_b32 v13, v13, v9
            v_lshlrev_b32 v13, 4, v13
            v_lshl_add_u32 v{VB128}, v9, 8, v13
            """)
            nb = 0
        nd = dma(0) + dma(1)
        a(f"s_waitcnt vmcnt({nb + nd})")
        a("v_mov_b32 v68, 0\nv_mov_b32 v69, 0")
        for i in range(15):
            a(f"s_cmp_le_u32 s37, {i}\ns_cbranch_scc1 K3_hd{role}")
            src, dst = (68, 70) if i % 2 == 0 else (70, 68)
            cmul_acc(a, 70, 68, 20, 22 + 2 * i)
            a("v_mov_b32 v68, v70\nv_mov_b32 v69, v71")
        a(f"K3_hd{role}:")
        a(f"""
        s_cmp_lg_u32 s38, 0
        s_cbranch_scc1 K3_hf{role}
        v_mov_b32 v52, 0
        v_mov_b32 v53, 0
        s_branch K3_hg{role}
        K3_hf{role}:
        """)
        cmul_acc(a, 70, 68, 18, None)
        a("v_mov_b32 v68, v70\nv_mov_b32 v69, v71")
        a(f"K3_hg{role}:")
        a(f"v_add_u32 v4, {K3_HB}, v3")
        cur = 68
        for q in range(8):
            a(f"v_pk_add_f32 v[{52+2*q}:{53+2*q}], v[{52+2*q}:{53+2*q}], v[{cur}:{cur+1}]")
            a(f"ds_write_b64 v4, v[{52+2*q}:{53+2*q}] offset:{q*4096}")
            if q < 7:
                nxt = 70 if cur == 68 else 68
                cmul_acc(a, nxt, cur, 16, None)
                cur = nxt
        a("s_waitcnt lgkmcnt(0)\ns_barrier")
        if role == 0:
            for r in range(16):
                a(f"ds_read_b64 v[{CAR+2*r}:{CAR+2*r+1}], v15 offset:{r*256}")
        for r in range(64):
            a(f"v_mov_b32 v{ACC+r}, 0")
        a("s_waitcnt lgkmcnt(0)\ns_barrier")
        if role == 0:
            a(f"s_waitcnt vmcnt({9 + nd})")
            for l in scan_list(0): a(l)
            a("s_waitcnt lgkmcnt(0)")
        a(f"s_waitcnt vmcnt(5)\ns_barrier")
        for r in range(16):
            nn = 0
            if r + 2 <= 15:
                nn = dma(r + 2)
                if role == 0: nn += bu_loads(r + 2)
            if r > 0:
                d = K3_SLOT[r % 3] - K3_SLOT[(r - 1) % 3]
                regs = [VB128] if role == 0 else [VB128] + [VTR + i for i in range(4)]
                for v in regs:
                    if d >= 0: a(f"v_add_u32 v{v}, {d}, v{v}")
                    else: a(f"v_subrev_u32 v{v}, {-d}, v{v}")
            mf = []
            if role == 0 or r < 14:
                B, Tr = (WF, AF) if role == 0 else (AF, WF)
                step = 1024 if role == 0 else 4096
                ho = (r & 1) * 16384 if role == 0 else 0
                for i in range(4):
                    a(f"ds_read_b128 v[{B+4*i}:{B+4*i+3}], v{VB128} offset:{i*step}")
                    a(f"ds_read_b64_tr_b16 v[{Tr+4*i}:{Tr+4*i+1}], v{VTR+i} offset:{ho}")
                    a(f"ds_read_b64_tr_b16 v[{Tr+4*i+2}:{Tr+4*i+3}], v{VTR+i} offset:{ho+512}")
                a("s_waitcnt lgkmcnt(0)")
                for dt in range(4):
                    for tt in range(4):
                        ac = ACC + (dt * 4 + tt) * 4
                        mf.append(f"v_mfma_f32_16x16x32_bf16 v[{ac}:{ac+3}], v[{WF+4*dt}:{WF+4*dt+3}], v[{AF+4*tt}:{AF+4*tt+3}], v[{ac}:{ac+3}]")
            sc = []
            if role == 0 and r + 1 <= 15:
                a(f"s_waitcnt vmcnt({nn})")
                sc = scan_list(r + 1)
            per = (len(sc) + len(mf) - 1) // len(mf) if mf else 0
            k = 0
            for m in mf:
                a(m)
                for l in sc[k:k+per]: a(l)
                k += per
            for l in sc[k:]: a(l)
            if r < 15:
                if role == 0: a("s_waitcnt lgkmcnt(0)")
                else: a(f"s_waitcnt vmcnt({nn})")
                a("s_barrier")
        a(f"""
        v_lshrrev_b32 v4, 3, v0                 ; t
        v_and_b32 v5, 7, v0                     ; cp
        s_lshl_b32 s88, s32, 6
        v_add_u32 v6, s88, v4                   ; t glob
        v_lshlrev_b32 v7, 10, v6
        s_lshl_b32 s88, s33, 7
        v_lshl_add_u32 v8, v5, 4, s88
        v_add_u32 v7, v7, v8
        buffer_load_dwordx4 v[{WF}:{WF+3}], v7, s[16:19], 0 offen
        buffer_load_dwordx4 v[{WF+4}:{WF+7}], v7, s[4:7], 0 offen
        buffer_load_dwordx4 v[{WF+8}:{WF+11}], v8, s[24:27], 0 offen
        v_lshlrev_b32 v7, 1, v7
        s_barrier
        s_lshl_b32 s88, s34, 14
        v_lshl_add_u32 v11, v9, 8, s88
        v_and_b32 v12, 3, v9
        v_xor_b32 v12, v12, v10
        v_lshl_add_u32 v11, v12, 4, v11
        v_lshrrev_b32 v12, 2, v9
        """)
        for dt in range(4):
            a(f"v_xor_b32 v13, {dt}, v12\nv_lshl_add_u32 v13, v13, 6, v11")
            for tt in range(4):
                ac = ACC + (dt * 4 + tt) * 4
                a(f"ds_write_b128 v13, v[{ac}:{ac+3}] offset:{tt*4096}")
        a("s_waitcnt lgkmcnt(0)\ns_barrier")
        if role == 0: a("s_branch K3_fin")
    a("K3_fin:")
    a(f"""
    v_and_b32 v11, 15, v4
    v_lshlrev_b32 v12, 1, v5
    v_xor_b32 v12, v12, v11
    v_lshlrev_b32 v12, 4, v12
    v_lshl_add_u32 v12, v4, 8, v12
    v_xor_b32 v13, 16, v12
    v_add_u32 v14, 65536, v12
    v_add_u32 v15, 65536, v13
    """)
    for W in range(4):
        a(f"ds_read_b128 v[{16+8*W}:{19+8*W}], v12 offset:{W*16384}")
        a(f"ds_read_b128 v[{20+8*W}:{23+8*W}], v13 offset:{W*16384}")
    for W in range(4):
        a(f"ds_read_b128 v[{48+8*W}:{51+8*W}], v14 offset:{W*16384}")
        a(f"ds_read_b128 v[{52+8*W}:{55+8*W}], v15 offset:{W*16384}")
    a("s_waitcnt lgkmcnt(0)")
    for base in (16, 48):
        for e in range(0, 8, 2):
            a(f"v_pk_add_f32 v[{base+e}:{base+e+1}], v[{base+e}:{base+e+1}], v[{base+8+e}:{base+9+e}]")
            a(f"v_pk_add_f32 v[{base+16+e}:{base+17+e}], v[{base+16+e}:{base+17+e}], v[{base+24+e}:{base+25+e}]")
        for e in range(0, 8, 2):
            a(f"v_pk_add_f32 v[{base+e}:{base+e+1}], v[{base+e}:{base+e+1}], v[{base+16+e}:{base+17+e}]")
    a(f"s_mov_b32 s92, {f2u(-1.4426950408889634):#x}")
    for e in range(4): a(f"v_cvt_pk_bf16_f32 v{56+e}, v{48+2*e}, v{49+2*e}")
    for e in range(4):
        a(f"v_lshlrev_b32 v{48+2*e}, 16, v{56+e}\nv_and_b32 v{49+2*e}, 0xffff0000, v{56+e}")
    for e in range(8): a(f"v_mul_f32 v{56+e}, s92, v{48+e}")
    for e in range(8): a(f"v_exp_f32 v{56+e}, v{56+e}")
    for e in range(8): a(f"v_add_f32 v{56+e}, 1.0, v{56+e}")
    for e in range(8): a(f"v_rcp_f32 v{56+e}, v{56+e}")
    for e in range(8): a(f"v_mul_f32 v{48+e}, v{48+e}, v{56+e}")
    for e in range(4): a(f"v_cvt_pk_bf16_f32 v{56+e}, v{48+2*e}, v{49+2*e}")
    for e in range(4):
        a(f"v_lshlrev_b32 v{48+2*e}, 16, v{56+e}\nv_and_b32 v{49+2*e}, 0xffff0000, v{56+e}")
    a("s_waitcnt vmcnt(0)")
    for (src, dst) in ((WF, 24), (WF + 4, 32), (WF + 8, 40)):
        for e in range(4):
            a(f"v_lshlrev_b32 v{dst+2*e}, 16, v{src+e}\nv_and_b32 v{dst+2*e+1}, 0xffff0000, v{src+e}")
    for e in range(0, 8, 2): a(f"v_pk_mul_f32 v[{32+e}:{33+e}], v[{32+e}:{33+e}], v[{40+e}:{41+e}]")
    for e in range(4): a(f"v_cvt_pk_bf16_f32 v{56+e}, v{32+2*e}, v{33+2*e}")
    for e in range(4):
        a(f"v_lshlrev_b32 v{32+2*e}, 16, v{56+e}\nv_and_b32 v{33+2*e}, 0xffff0000, v{56+e}")
    for e in range(8): a(f"v_fma_f32 v{16+e}, v{16+e}, 2.0, v{32+e}")
    for e in range(8): a(f"v_mul_f32 v{16+e}, v{16+e}, v{48+e}")
    for e in range(8): a(f"v_add_f32 v{16+e}, v{16+e}, v{24+e}")
    a("""
    buffer_store_dwordx4 v[16:19], v7, s[20:23], 0 offen
    buffer_store_dwordx4 v[20:23], v7, s[20:23], 0 offen offset:16
    K3_done:
    s_endpgm
    """)

HEADER = open("recurrent_scan__ssm_conv_s5__dense_activation_silu__prompt.s.ref").read().split("; Override launch")[0]

def build(kernels):
    a = Asm()
    launches = []
    if "k1" in kernels: launches.append(f"; @launch kernel=k1_kernel grid=(256,1,1) block=(512,1,1) lds={K1_LDS}")
    if "k3" in kernels: launches.append(f"; @launch kernel=k3_kernel grid=(256,1,1) block=(512,1,1) lds={K3_LDS}")
    a.raw(HEADER.rstrip("\n"))
    for l in launches: a.raw(l)
    a.raw('.amdgcn_target "amdgcn-amd-amdhsa--gfx950"\n.text')
    if "k1" in kernels: gen_k1(a)
    if "k3" in kernels: gen_k3(a)
    a.raw('.section .rodata,"a"\n.p2align 6')
    if "k1" in kernels: a.raw(kd("k1_kernel", 256))
    if "k3" in kernels: a.raw(".p2align 6\n" + kd("k3_kernel", 256))
    return a.text()

if __name__ == "__main__":
    ks = sys.argv[2].split(",") if len(sys.argv) > 2 else ["k1", "k3"]
    open(sys.argv[1], "w").write(build(ks))
```

```python
import sys, struct
sys.path.insert(0, "dev")
from asmlib import Asm, kd

import os
PAD = int(os.environ.get("PAD", "1"))
BU_JS = 8192 + 512 * PAD
BU_SS = 4 * BU_JS + 256 * PAD
FT = 56 * 1024 + 256 * PAD
WS_BU  = 0
WS_H1F = 10 << 20
WS_W2F = 18 << 20
WS_S8X = 20 << 20
WS_E   = 21 << 20
WS_TP  = (21 << 20) + (64 << 10)
WS_TL  = (21 << 20) + (128 << 10)
WS_ST  = (21 << 20) + (192 << 10)
WS_DBG = 24 << 20
WS_SIZE = 28 << 20
STAMP = False

def stamp(a, i):
    if not STAMP: return
    a(f"""
    s_memtime s[96:97]
    s_waitcnt lgkmcnt(0)
    v_writelane_b32 v255, s96, {i}
    """)

def stamp_store(a, srd, k):
    if not STAMP: return
    a(f"""
    s_mov_b64 exec, -1
    v_and_b32 v254, 63, v0
    v_lshlrev_b32 v254, 2, v254
    s_lshl_b32 s96, s2, 3
    s_add_u32 s96, s96, s34
    s_lshl_b32 s96, s96, 8
    s_add_u32 s96, s96, {WS_DBG + k * (1 << 20)}
    buffer_store_dword v255, v254, s[{srd}:{srd+3}], s96 offen
    """)

def srd(a, d, base, nbytes):
    a(f"""
    s_mov_b32 s{d}, s{base}
    s_and_b32 s{d+1}, s{base+1}, 0xffff
    s_mov_b32 s{d+2}, {nbytes}
    s_mov_b32 s{d+3}, 0x00020000
    """)

def f2u(x):
    return struct.unpack("<I", struct.pack("<f", x))[0]

def cplx_sq(a, d, s, t):
    a(f"""
    v_mul_f32 v{t}, v{s+1}, v{s+1}
    v_mul_f32 v{d+1}, v{s}, v{s+1}
    v_fma_f32 v{d}, v{s}, v{s}, -v{t}
    v_add_f32 v{d+1}, v{d+1}, v{d+1}
    """)

def cmul_acc(a, d, x, m, add):
    if add is None:
        a(f"v_pk_mul_f32 v[{d}:{d+1}], v[{x}:{x+1}], v[{m}:{m+1}] op_sel_hi:[1,0]")
    else:
        a(f"v_pk_fma_f32 v[{d}:{d+1}], v[{x}:{x+1}], v[{m}:{m+1}], v[{add}:{add+1}] op_sel_hi:[1,0,1]")
    a(f"v_pk_fma_f32 v[{d}:{d+1}], v[{x}:{x+1}], v[{m}:{m+1}], v[{d}:{d+1}] op_sel:[1,1,0] op_sel_hi:[0,1,1] neg_lo:[0,1,0]")

class Cnt:
    def __init__(self): self.n = 0; self.tags = {}
    def issue(self, tag=None, k=1):
        self.n += k
        if tag is not None: self.tags[tag] = self.n
    def after(self, tag): return self.n - self.tags[tag]
    def copy(self):
        c = Cnt(); c.n = self.n; c.tags = dict(self.tags); return c

def interleave(a, main, fill, lead=0):
    k = 0
    for l in fill[:lead]: a(l)
    k = lead
    n = len(main)
    rest = len(fill) - k
    for i, m in enumerate(main):
        a(m)
        tgt = lead + (rest * (i + 1)) // n
        while k < tgt:
            a(fill[k]); k += 1

K1_BS = [32768 + i * 24576 for i in range(5)]
K1_TABL = 155648
K1_E8 = 156672
K1_LDS = 160768

def gen_k1(a):
    X, MR, TM, AFR, BF, ACC = 16, 80, 84, 108, 124, 172
    VB, VW, VA0, VA1, VF = 220, 221, 222, 223, 224
    VAW0, VAW1, VAR0, VAR1 = 228, 229, 230, 231
    vm = Cnt()
    a.raw(".p2align 8\nk1_kernel:")
    a("""
    s_cmp_ge_u32 s2, 256
    s_cbranch_scc1 K1_done
    s_load_dwordx4 s[72:75], s[0:1], 0      ; x, Lre
    s_load_dwordx4 s[76:79], s[0:1], 16
    s_load_dwordx4 s[80:83], s[0:1], 32
    s_load_dwordx4 s[84:87], s[0:1], 48
    s_load_dwordx4 s[88:91], s[0:1], 80     ; w1, w2
    s_load_dwordx2 s[92:93], s[0:1], 112    ; ws
    v_lshrrev_b32 v1, 6, v0
    v_and_b32 v2, 63, v0                    ; lane
    v_readfirstlane_b32 s34, v1             ; wave
    s_and_b32 s32, s2, 7
    s_lshl_b32 s32, s32, 1
    s_bfe_u32 s48, s2, 0x10003
    s_add_u32 s32, s32, s48                 ; rt
    s_lshr_b32 s33, s2, 4                   ; cg
    s_and_b32 s35, s34, 3                   ; wrow
    s_lshr_b32 s36, s34, 2                  ; wcol
    s_lshl_b32 s48, s32, 7
    s_lshl_b32 s49, s34, 4
    s_add_u32 s48, s48, s49
    v_lshrrev_b32 v8, 3, v2                 ; r
    v_and_b32 v9, 7, v2                     ; p
    v_add_u32 v10, s48, v8                  ; row (j=0)
    v_lshlrev_b32 v3, 10, v10
    v_lshl_add_u32 v3, v9, 4, v3
    s_movk_i32 s50, 8192
    s_waitcnt lgkmcnt(0)
    """)
    stamp(a, 0)
    srd(a, 4, 72, 2048 * 1024)
    srd(a, 16, 92, WS_SIZE)
    a("s_cmp_lg_u32 s34, 0\ns_cbranch_scc1 K1_nopar")
    srd(a, 20, 74, 1024)
    srd(a, 24, 76, 1024)
    srd(a, 28, 86, 1024)
    a("""
    v_and_b32 v4, 31, v2
    s_lshl_b32 s48, s33, 5
    v_add_u32 v4, s48, v4                   ; channel
    v_lshlrev_b32 v5, 1, v4
    buffer_load_ushort v6, v5, s[20:23], 0 offen
    buffer_load_ushort v7, v5, s[24:27], 0 offen
    buffer_load_ushort v11, v5, s[28:31], 0 offen
    K1_nopar:
    """)
    vm.issue("par")
    vm.n -= 1; vm.tags["par"] = 0
    for c in range(8):
        for j in range(2):
            r = X + (c * 2 + j) * 4
            so = "0" if j == 0 else "s50"
            a(f"buffer_load_dwordx4 v[{r}:{r+3}], v3, s[4:7], {so} offen offset:{c*128}")
            vm.issue(("x", c))
    a("""
    s_cmp_lt_u32 s34, 4
    s_cselect_b32 s48, s78, s80
    s_cselect_b32 s49, s79, s81
    """)
    srd(a, 8, 48, 512 * 1024)
    srd(a, 12, 88, 512 * 3584)
    srd(a, 40, 90, 1792 * 1024)
    W2R = 232
    a(f"""
    s_lshl_b32 s37, s2, 3
    s_add_u32 s37, s37, s34                 ; b
    s_cmp_ge_u32 s37, 1792
    s_cbranch_scc1 K1_now2a
    s_lshr_b32 s38, s37, 5                  ; kstep
    s_and_b32 s39, s37, 31                  ; dtile
    s_lshl_b32 s48, s38, 15
    s_lshl_b32 s49, s39, 5
    s_add_u32 s48, s48, s49
    v_lshrrev_b32 v12, 1, v2
    v_lshlrev_b32 v12, 10, v12
    v_and_b32 v13, 1, v2
    v_lshl_add_u32 v12, v13, 4, v12
    buffer_load_dwordx4 v[{W2R}:{W2R+3}], v12, s[40:43], s48 offen
    K1_now2a:
    """)
    vm.tags["w2"] = vm.n
    a(f"""
    v_lshrrev_b32 v12, 3, v2
    s_lshl_b32 s48, s34, 3
    v_add_u32 v12, s48, v12                 ; row 0..63
    v_bfe_u32 v13, v12, 1, 3                ; key
    v_xor_b32 v13, v13, v9                  ; chunk
    v_and_b32 v12, 31, v12
    s_lshl_b32 s48, s33, 5
    v_add_u32 v12, s48, v12                 ; p
    v_lshlrev_b32 v12, 10, v12
    v_lshl_add_u32 v{VB}, v13, 4, v12
    v_lshrrev_b32 v12, 4, v2                ; l>>4  (0..3)
    s_and_b32 s48, s34, 1
    s_lshl_b32 s48, s48, 2
    v_or_b32 v13, s48, v12                  ; s(k)
    v_bfe_u32 v14, v2, 1, 3                 ; pair'
    v_xor_b32 v13, v13, v14                 ; pair
    v_lshlrev_b32 v13, 5, v13
    v_and_b32 v14, 1, v2
    v_lshl_add_u32 v13, v14, 4, v13
    s_lshl_b32 s48, s34, 3
    v_add_u32 v12, s48, v12                 ; k local (j=0)
    s_movk_i32 s49, 3584
    v_mul_lo_u32 v12, v12, s49
    s_mul_i32 s48, s33, 224
    v_add3_u32 v{VW}, v12, v13, s48
    s_lshl_b32 s51, s34, 10                 ; wave*1024
    s_lshl_b32 s52, s34, 11                 ; wave*2048
    """)
    def dma_stage(st):
        base = K1_BS[st % 5]
        a(f"""
        s_add_u32 m0, s51, {base}
        s_movk_i32 s49, {st * 128}
        buffer_load_dwordx4 v{VB}, s[8:11], s49 offen lds
        s_add_u32 m0, s52, {base + 8192}
        s_mov_b32 s49, {st * 64 * 3584}
        buffer_load_dwordx4 v{VW}, s[12:15], s49 offen lds
        s_add_u32 m0, s52, {base + 8192 + 1024}
        s_mov_b32 s49, {st * 64 * 3584 + 4 * 3584}
        buffer_load_dwordx4 v{VW}, s[12:15], s49 offen lds
        """)
        vm.issue(("dma", st), 3)
    for st in range(5): dma_stage(st)
    a("""
    s_and_b32 s48, s34, 2
    s_cmp_lg_u32 s48, 0
    s_cbranch_scc1 K1_nopf
    s_cmp_lt_u32 s34, 4
    s_cselect_b32 s48, s82, s84
    s_cselect_b32 s49, s83, s85
    """)
    srd(a, 44, 48, 512 * 1024)
    a("""
    s_and_b32 s48, s34, 1
    s_lshl_b32 s49, s2, 1
    s_add_u32 s48, s48, s49
    s_lshl_b32 s48, s48, 10
    v_lshlrev_b32 v12, 4, v2
    buffer_load_dwordx4 v[236:239], v12, s[44:47], s48 offen
    K1_nopf:
    """)
    T0 = 124
    def t(i): return T0 + i
    a("s_cmp_lg_u32 s34, 0\ns_cbranch_scc1 K1_notab")
    a(f"""
    s_waitcnt vmcnt({vm.after('par')})
    v_lshlrev_b32 v{t(0)}, 16, v6               ; Lre
    v_lshlrev_b32 v{t(1)}, 16, v7               ; Lim
    v_lshlrev_b32 v{t(2)}, 16, v11              ; log_dt
    v_mul_f32 v{t(2)}, {f2u(1.4426950408889634):#x}, v{t(2)}
    v_exp_f32 v{t(2)}, v{t(2)}
    v_cvt_pk_bf16_f32 v{t(2)}, v{t(2)}, v{t(2)}
    v_lshlrev_b32 v{t(2)}, 16, v{t(2)}
    v_mul_f32 v{t(3)}, v{t(2)}, v{t(0)}                 ; a
    v_mul_f32 v{t(4)}, v{t(2)}, v{t(1)}                 ; b
    v_mul_f32 v{t(3)}, {f2u(1.4426950408889634):#x}, v{t(3)}
    v_exp_f32 v{t(3)}, v{t(3)}                      ; e^a
    v_mul_f32 v{t(5)}, {f2u(0.6366197723675814):#x}, v{t(4)}
    v_rndne_f32 v{t(5)}, v{t(5)}                    ; n
    v_mov_b32 v{t(6)}, {f2u(1.5703125):#x}
    v_fma_f32 v{t(4)}, -v{t(5)}, v{t(6)}, v{t(4)}
    v_mov_b32 v{t(6)}, {f2u(4.837512969970703125e-4):#x}
    v_fma_f32 v{t(4)}, -v{t(5)}, v{t(6)}, v{t(4)}
    v_mov_b32 v{t(6)}, {f2u(7.54978995489188216e-8):#x}
    v_fma_f32 v{t(4)}, -v{t(5)}, v{t(6)}, v{t(4)}           ; r
    v_cvt_i32_f32 v{t(5)}, v{t(5)}                  ; q
    v_mul_f32 v{t(6)}, v{t(4)}, v{t(4)}                 ; z
    v_mov_b32 v{t(7)}, {f2u(-1.9515295891e-4):#x}
    v_mov_b32 v{t(8)}, {f2u(8.3321608736e-3):#x}
    v_fma_f32 v{t(7)}, v{t(7)}, v{t(6)}, v{t(8)}
    v_mov_b32 v{t(8)}, {f2u(-1.6666654611e-1):#x}
    v_fma_f32 v{t(7)}, v{t(7)}, v{t(6)}, v{t(8)}
    v_mul_f32 v{t(7)}, v{t(7)}, v{t(6)}
    v_fma_f32 v{t(7)}, v{t(7)}, v{t(4)}, v{t(4)}            ; sin r
    v_mov_b32 v{t(8)}, {f2u(2.443315711809948e-5):#x}
    v_mov_b32 v{t(9)}, {f2u(-1.388731625493765e-3):#x}
    v_fma_f32 v{t(8)}, v{t(8)}, v{t(6)}, v{t(9)}
    v_mov_b32 v{t(9)}, {f2u(4.166664568298827e-2):#x}
    v_fma_f32 v{t(8)}, v{t(8)}, v{t(6)}, v{t(9)}
    v_mul_f32 v{t(8)}, v{t(8)}, v{t(6)}
    v_fma_f32 v{t(8)}, v{t(8)}, v{t(6)}, 1.0
    v_fma_f32 v{t(8)}, v{t(6)}, -0.5, v{t(8)}           ; cos r
    v_and_b32 v{t(9)}, 1, v{t(5)}
    v_cmp_eq_u32 vcc, 1, v{t(9)}
    v_cndmask_b32 v{t(10)}, v{t(7)}, v{t(8)}, vcc
    v_cndmask_b32 v{t(11)}, v{t(8)}, v{t(7)}, vcc
    v_lshlrev_b32 v{t(9)}, 30, v{t(5)}
    v_and_b32 v{t(9)}, 0x80000000, v{t(9)}
    v_xor_b32 v{t(10)}, v{t(10)}, v{t(9)}                 ; sin b
    v_add_u32 v{t(9)}, 1, v{t(5)}
    v_lshlrev_b32 v{t(9)}, 30, v{t(9)}
    v_and_b32 v{t(9)}, 0x80000000, v{t(9)}
    v_xor_b32 v{t(11)}, v{t(11)}, v{t(9)}                 ; cos b
    v_mul_f32 v{t(12)}, v{t(3)}, v{t(11)}
    v_mul_f32 v{t(13)}, v{t(3)}, v{t(10)}
    v_add_f32 v{t(4)}, -1.0, v{t(12)}                ; Lr-1
    v_mul_f32 v{t(5)}, v{t(13)}, v{t(1)}
    v_fma_f32 v{t(5)}, v{t(4)}, v{t(0)}, v{t(5)}
    v_mul_f32 v{t(6)}, v{t(4)}, v{t(1)}
    v_fma_f32 v{t(6)}, v{t(13)}, v{t(0)}, -v{t(6)}
    v_mul_f32 v{t(7)}, v{t(1)}, v{t(1)}
    v_fma_f32 v{t(7)}, v{t(0)}, v{t(0)}, v{t(7)}            ; den
    v_rcp_f32 v{t(8)}, v{t(7)}
    v_fma_f32 v{t(9)}, -v{t(7)}, v{t(8)}, 2.0
    v_mul_f32 v{t(8)}, v{t(8)}, v{t(9)}
    v_mul_f32 v{t(14)}, v{t(5)}, v{t(8)}
    v_mul_f32 v{t(15)}, v{t(6)}, v{t(8)}
    """)
    cplx_sq(a, t(18), t(12), t(4))
    cplx_sq(a, t(20), t(18), t(4))
    cplx_sq(a, t(16), t(20), t(4))
    cplx_sq(a, t(18), t(16), t(4))
    cplx_sq(a, t(20), t(18), t(4))
    cplx_sq(a, t(18), t(20), t(4))
    cplx_sq(a, t(20), t(18), t(4))
    a(f"""
    v_mov_b32 v{t(22)}, v{t(12)}
    v_mov_b32 v{t(23)}, v{t(13)}
    v_and_b32 v{t(4)}, 31, v2
    v_lshlrev_b32 v{t(5)}, 5, v{t(4)}
    v_add_u32 v{t(5)}, {K1_TABL}, v{t(5)}
    ds_write_b128 v{t(5)}, v[{t(12)}:{t(15)}]
    ds_write_b64 v{t(5)}, v[{t(16)}:{t(17)}] offset:16
    s_cmp_lg_u32 s32, 0
    s_cbranch_scc1 K1_notab
    v_lshlrev_b32 v{t(5)}, 4, v4                    ; ch*16
    s_mov_b32 s48, {WS_TP}
    buffer_store_dwordx4 v[{t(16)}:{t(19)}], v{t(5)}, s[16:19], s48 offen
    s_mov_b32 s48, {WS_TP + 8192}
    buffer_store_dwordx4 v[{t(20)}:{t(23)}], v{t(5)}, s[16:19], s48 offen
    s_lshr_b32 s48, s33, 1
    s_lshl_b32 s48, s48, 9
    s_and_b32 s49, s33, 1
    s_lshl_b32 s49, s49, 3
    s_add_u32 s48, s48, s49
    s_add_u32 s48, s48, {WS_TL}
    v_lshlrev_b32 v{t(5)}, 4, v{t(4)}                ; chl*16
    buffer_store_dwordx2 v[{t(12)}:{t(13)}], v{t(5)}, s[16:19], s48 offen
    K1_notab:
    """)
    stamp(a, 1)
    S1, S2 = TM, TM + 4
    a("s_mov_b32 s53, 0x3f803f80")
    for c in range(8):
        a(f"s_waitcnt vmcnt({vm.after(('x', c))})")
        for d in range(4):
            for j in range(2):
                x = X + (c * 2 + j) * 4 + d
                s1 = S1 + j * 2 + (d & 1); s2 = S2 + j * 2 + (d & 1)
                first = (c == 0 and d < 2)
                a(f"v_dot2_f32_bf16 v{s1}, v{x}, s53, {'0' if first else 'v%d' % s1}")
                a(f"v_dot2_f32_bf16 v{s2}, v{x}, v{x}, {'0' if first else 'v%d' % s2}")
    stamp(a, 2)
    Q = TM + 8
    for j in range(2):
        a(f"v_add_f32 v{Q+j}, v{S1+2*j}, v{S1+2*j+1}")
        a(f"v_add_f32 v{Q+2+j}, v{S2+2*j}, v{S2+2*j+1}")
    for mod in ("quad_perm:[1,0,3,2]", "quad_perm:[2,3,0,1]", "row_half_mirror"):
        for i in range(4):
            a(f"v_add_f32_dpp v{Q+i}, v{Q+i}, v{Q+i} {mod} row_mask:0xf bank_mask:0xf")
    for i in range(4): a(f"v_mul_f32 v{Q+i}, {f2u(1/512):#x}, v{Q+i}")
    for j in range(2): a(f"v_fma_f32 v{Q+2+j}, -v{Q+j}, v{Q+j}, v{Q+2+j}")
    for j in range(2): a(f"v_max_f32 v{Q+2+j}, 0, v{Q+2+j}")
    for j in range(2): a(f"v_cvt_pk_bf16_f32 v{Q+4+j}, v{Q+j}, v{Q+2+j}")
    for j in range(2):
        a(f"v_lshlrev_b32 v{MR+2*j}, 16, v{Q+4+j}")
        a(f"v_and_b32 v{Q+2+j}, 0xffff0000, v{Q+4+j}")
    for j in range(2): a(f"v_add_f32 v{Q+2+j}, {f2u(1e-5):#x}, v{Q+2+j}")
    for j in range(2): a(f"v_cvt_pk_bf16_f32 v{Q+2+j}, v{Q+2+j}, v{Q+2+j}")
    for j in range(2): a(f"v_lshlrev_b32 v{Q+2+j}, 16, v{Q+2+j}")
    for j in range(2): a(f"v_sqrt_f32 v{Q+2+j}, v{Q+2+j}")
    for j in range(2): a(f"v_cvt_pk_bf16_f32 v{Q+2+j}, v{Q+2+j}, v{Q+2+j}")
    for j in range(2): a(f"v_lshlrev_b32 v{Q+2+j}, 16, v{Q+2+j}")
    for j in range(2): a(f"v_rcp_f32 v{Q+4+j}, v{Q+2+j}")
    for j in range(2): a(f"v_fma_f32 v{Q+6+j}, -v{Q+2+j}, v{Q+4+j}, 2.0")
    for j in range(2): a(f"v_mul_f32 v{MR+2*j+1}, v{Q+4+j}, v{Q+6+j}")
    a(f"""
    s_and_b32 s48, s34, 1
    s_lshl_b32 s48, s48, 3
    v_and_b32 v12, 3, v8
    v_add_u32 v12, s48, v12                 ; m (j=0)
    v_xor_b32 v12, v12, v9                  ; m ^ p
    v_lshlrev_b32 v12, 4, v12
    v_and_b32 v13, 3, v9                    ; g
    v_lshl_add_u32 v12, v13, 8, v12
    v_lshrrev_b32 v13, 2, v9                ; ks
    v_lshl_add_u32 v12, v13, 10, v12
    v_bfe_u32 v13, v8, 2, 1                 ; T
    v_lshl_add_u32 v12, v13, 11, v12
    s_lshr_b32 s48, s34, 1
    s_lshl_b32 s48, s48, 12
    v_add_u32 v{VAW0}, s48, v12
    v_xor_b32 v{VAW1}, 64, v{VAW0}
    v_and_b32 v14, 15, v2                   ; m / n
    v_lshrrev_b32 v15, 4, v2                ; g
    v_xor_b32 v12, v14, v15
    v_lshlrev_b32 v12, 4, v12
    v_lshl_add_u32 v12, v15, 8, v12
    s_lshl_b32 s48, s35, 12
    v_add_u32 v{VAR0}, s48, v12
    v_xor_b32 v12, 64, v{VAR0}
    v_add_u32 v{VAR1}, 1024, v12
    v_bfe_u32 v12, v14, 1, 3                ; key = (n>>1)&7
    v_xor_b32 v12, v12, v15
    s_lshl_b32 s48, s36, 4
    v_add_u32 v13, s48, v14
    v_lshlrev_b32 v13, 7, v13
    v_add_u32 v13, {K1_BS[0]}, v13
    v_lshl_add_u32 v{VA0}, v12, 4, v13
    v_xor_b32 v12, 4, v12
    v_lshl_add_u32 v{VA1}, v12, 4, v13
    v_bfe_u32 v12, v2, 2, 2                 ; r
    v_and_b32 v13, 1, v15
    v_lshl_or_b32 v13, v13, 2, v12          ; sw
    v_lshl_add_u32 v12, v15, 3, v12         ; 8g + r
    v_lshlrev_b32 v12, 8, v12
    v_and_b32 v5, 3, v2
    v_lshl_add_u32 v12, v5, 3, v12          ; + c*8
    v_add_u32 v12, {K1_BS[0] + 8192}, v12
    s_and_b32 s54, s33, 1                   ; par
    s_lshl_b32 s55, s36, 2
    s_add_u32 s55, s55, s54
    s_add_u32 s56, s55, 2
    s_cmp_lg_u32 s54, 0
    s_cselect_b32 s48, 0, 6
    s_cmp_lg_u32 s36, 0
    s_cselect_b32 s56, s48, s56
    """)
    for p, sreg in ((0, "s55"), (1, None), (2, "s56"), (3, None)):
        if sreg is None:
            a(f"s_add_u32 s48, s55, {p}")
            sreg = "s48"
        a(f"v_xor_b32 v5, {sreg}, v13\nv_lshl_add_u32 v{VF+p}, v5, 5, v12")
    for r in range(48): a(f"v_mov_b32 v{ACC+r}, 0")
    a(f"""
    s_cmp_lg_u32 s33, 0
    s_cbranch_scc1 K1_nost
    v_lshlrev_b32 v5, 3, v10
    s_mov_b32 s48, {WS_ST}
    buffer_store_dwordx2 v[{MR}:{MR+1}], v5, s[16:19], s48 offen
    buffer_store_dwordx2 v[{MR+2}:{MR+3}], v5, s[16:19], s48 offen offset:64
    K1_nost:
    """)
    a(f"""
    s_cmp_ge_u32 s37, 1792
    s_cbranch_scc1 K1_now2b
    s_add_u32 s48, s51, 16384
    v_lshl_add_u32 v5, v2, 4, s48
    s_waitcnt vmcnt({vm.after('w2')})
    ds_write_b128 v5, v[{W2R}:{W2R+3}]
    v_bfe_u32 v5, v2, 2, 2
    v_lshl_add_u32 v5, v15, 2, v5           ; 4g + r
    v_lshlrev_b32 v5, 5, v5
    v_and_b32 v6, 3, v2
    v_lshl_add_u32 v5, v6, 3, v5
    v_add_u32 v5, s48, v5
    ds_read_b64_tr_b16 v[{W2R}:{W2R+1}], v5
    ds_read_b64_tr_b16 v[{W2R+2}:{W2R+3}], v5 offset:512
    s_mul_i32 s48, s39, {FT}
    s_lshl_b32 s49, s38, 10
    s_add_u32 s48, s48, s49
    s_add_u32 s48, s48, {WS_W2F}
    v_lshlrev_b32 v5, 4, v2
    s_waitcnt lgkmcnt(0)
    buffer_store_dwordx4 v[{W2R}:{W2R+3}], v5, s[16:19], s48 offen
    K1_now2b:
    """)
    def norm_list(c):
        o = []
        for j in range(2):
            x0 = X + (c * 2 + j) * 4
            T = TM + 12 * j
            mp = f"v[{MR+2*j}:{MR+2*j+1}]"
            for d in range(4):
                o.append(f"v_lshlrev_b32 v{T+2*d}, 16, v{x0+d}")
                o.append(f"v_and_b32 v{T+2*d+1}, 0xffff0000, v{x0+d}")
            for d in range(4):
                o.append(f"v_pk_add_f32 v[{T+2*d}:{T+2*d+1}], v[{T+2*d}:{T+2*d+1}], {mp} op_sel_hi:[1,0] neg_lo:[0,1] neg_hi:[0,1]")
            for d in range(4):
                o.append(f"v_cvt_pk_bf16_f32 v{T+8+d}, v{T+2*d}, v{T+2*d+1}")
            for d in range(4):
                o.append(f"v_lshlrev_b32 v{T+2*d}, 16, v{T+8+d}")
                o.append(f"v_and_b32 v{T+2*d+1}, 0xffff0000, v{T+8+d}")
            for d in range(4):
                o.append(f"v_pk_mul_f32 v[{T+2*d}:{T+2*d+1}], v[{T+2*d}:{T+2*d+1}], {mp} op_sel:[0,1] op_sel_hi:[1,1]")
            for d in range(4):
                o.append(f"v_cvt_pk_bf16_f32 v{x0+d}, v{T+2*d}, v{T+2*d+1}")
        return o
    def norm_writes(c):
        return [f"ds_write_b128 v{VAW0 if j == 0 else VAW1}, v[{X+(c*2+j)*4}:{X+(c*2+j)*4+3}] offset:{(c & 1) * 16384}" for j in range(2)]
    for l in norm_list(0) + norm_writes(0): a(l)
    stamp(a, 3)
    a("s_cmp_lg_u32 s36, 0\ns_cbranch_scc1 K1_main1")
    vm0 = vm
    for wc in range(2):
        vm = vm0.copy()
        nf = 4 if wc == 0 else 3
        if wc == 1: a("K1_main1:")
        for st in range(8):
            a(f"s_waitcnt vmcnt({vm.after(('dma', st))}) lgkmcnt(0)\ns_barrier")
            stamp(a, 4 + st)
            if st > 0:
                d = K1_BS[st % 5] - K1_BS[(st - 1) % 5]
                for r in [VA0, VA1] + [VF + p for p in range(nf)]:
                    if d >= 0: a(f"v_add_u32 v{r}, {d}, v{r}")
                    else: a(f"v_subrev_u32 v{r}, {-d}, v{r}")
            ab = (st & 1) * 16384
            for ks in range(2):
                b = BF + ks * 24
                va = VA0 if ks == 0 else VA1
                var = VAR0 if ks == 0 else VAR1
                for Tt in range(2):
                    r = AFR + (ks * 2 + Tt) * 4
                    a(f"ds_read_b128 v[{r}:{r+3}], v{var} offset:{ab + Tt * 2048}")
                a(f"ds_read_b128 v[{b}:{b+3}], v{va}")
                a(f"ds_read_b128 v[{b+4}:{b+7}], v{va} offset:4096")
                for p in range(nf):
                    a(f"ds_read_b64_tr_b16 v[{b+8+4*p}:{b+9+4*p}], v{VF+p} offset:{ks*8192}")
                    a(f"ds_read_b64_tr_b16 v[{b+10+4*p}:{b+11+4*p}], v{VF+p} offset:{ks*8192+1024}")
            if 1 <= st <= 3: dma_stage(st + 4)
            nrd = 4 + 2 * nf
            fill = norm_list(st + 1) if st < 7 else []
            h = len(fill) // 2
            for ks in range(2):
                b = BF + ks * 24
                mf = []
                for Tt in range(2):
                    af = AFR + (ks * 2 + Tt) * 4
                    for tq in range(2):
                        ac = ACC + (tq * 2 + Tt) * 4
                        mf.append(f"v_mfma_f32_16x16x32_bf16 v[{ac}:{ac+3}], v[{af}:{af+3}], v[{b+4*tq}:{b+4*tq+3}], v[{ac}:{ac+3}]")
                    for p in range(nf):
                        ac = ACC + 16 + (p * 2 + Tt) * 4
                        mf.append(f"v_mfma_f32_16x16x32_bf16 v[{ac}:{ac+3}], v[{b+8+4*p}:{b+8+4*p+3}], v[{af}:{af+3}], v[{ac}:{ac+3}]")
                f = fill[:h] if ks == 0 else fill[h:]
                lead = 12 if (ks == 0 and f) else 0
                for l in f[:lead]: a(l)
                a(f"s_waitcnt lgkmcnt({nrd if ks == 0 else 0})")
                interleave(a, mf, f[lead:])
            if st < 7:
                for l in norm_writes(st + 1): a(l)
        if wc == 0: a("s_branch K1_epi")
    a("K1_epi:")
    stamp(a, 12)
    a(f"""
    s_lshl_b32 s48, s36, 4
    v_add_u32 v11, s48, v14
    v_lshlrev_b32 v12, 5, v11
    v_add_u32 v12, {K1_TABL}, v12
    ds_read_b128 v[4:7], v12
    s_lshl_b32 s48, s32, 4
    s_lshl_b32 s49, s35, 2
    s_add_u32 s48, s48, s49
    v_add_u32 v13, s48, v15
    s_mov_b32 s49, {BU_SS}
    v_mul_lo_u32 v13, v13, s49
    s_lshl_b32 s49, s33, 5
    v_add_u32 v12, s49, v11
    v_lshl_add_u32 v13, v12, 4, v13
    s_waitcnt lgkmcnt(0)
    """)
    U = 16
    for Tt in range(2):
        for r in range(4):
            i = 4 * Tt + r
            re = ACC + (0 * 2 + Tt) * 4 + r
            im = ACC + (1 * 2 + Tt) * 4 + r
            a(f"""
            v_mul_f32 v{U+2*i}, v7, v{im}
            v_mul_f32 v{U+2*i+1}, v7, v{re}
            v_fma_f32 v{U+2*i}, v6, v{re}, -v{U+2*i}
            v_fma_f32 v{U+2*i+1}, v6, v{im}, v{U+2*i+1}
            """)
    for j in range(4):
        a(f"s_mov_b32 s48, {WS_BU + j * BU_JS}")
        a(f"buffer_store_dwordx4 v[{U+4*j}:{U+4*j+3}], v13, s[16:19], s48 offen")
    E = 32
    a(f"v_mov_b32 v{E}, v{U}\nv_mov_b32 v{E+1}, v{U+1}")
    for i in range(1, 8):
        a(f"v_pk_fma_f32 v[{E+2}:{E+3}], v[{E}:{E+1}], v[4:5], v[{U+2*i}:{U+2*i+1}] op_sel_hi:[1,0,1]")
        a(f"v_pk_fma_f32 v[{E}:{E+1}], v[{E}:{E+1}], v[4:5], v[{E+2}:{E+3}] op_sel:[1,1,0] op_sel_hi:[0,1,1] neg_lo:[0,1,0]")
    a(f"""
    s_lshl_b32 s48, s35, 2
    v_add_u32 v12, s48, v15
    v_lshlrev_b32 v12, 8, v12
    v_lshl_add_u32 v12, v11, 3, v12
    v_add_u32 v12, {K1_E8}, v12
    ds_write_b64 v12, v[{E}:{E+1}]
    s_waitcnt lgkmcnt(0)
    s_barrier
    """)
    stamp(a, 13)
    R = 36
    a(f"""
    s_cmp_lg_u32 s34, 7
    s_cbranch_scc1 K1_nopre
    v_and_b32 v9, 31, v2
    v_lshlrev_b32 v10, 5, v9
    v_add_u32 v10, {K1_TABL}, v10
    ds_read_b64 v[4:5], v10 offset:16
    v_lshlrev_b32 v10, 3, v9
    v_add_u32 v11, {K1_E8}, v10
    """)
    for sgm in range(16):
        a(f"ds_read_b64 v[{R+2+2*sgm}:{R+3+2*sgm}], v11 offset:{sgm*256}")
    a(f"""
    v_mov_b32 v{R}, 0
    v_mov_b32 v{R+1}, 0
    s_lshl_b32 s48, s33, 5
    v_add_u32 v9, s48, v9                   ; ch
    v_lshlrev_b32 v10, 4, v9                ; ch*16
    s_lshl_b32 s57, s32, 16
    s_add_u32 s57, s57, {WS_S8X}
    s_waitcnt lgkmcnt(0)
    """)
    for sgm in range(1, 16):
        c = R + 2 + 2 * sgm; p = c - 2
        a(f"v_pk_fma_f32 v[{c}:{c+1}], v[{p}:{p+1}], v[4:5], v[{c}:{c+1}] op_sel_hi:[1,0,1]")
        a(f"v_pk_fma_f32 v[{c}:{c+1}], v[{p}:{p+1}], v[4:5], v[{c}:{c+1}] op_sel:[1,1,0] op_sel_hi:[0,1,1] neg_lo:[0,1,0]")
    for q in range(8):
        a(f"s_add_u32 s48, s57, {q * 8192}")
        a(f"buffer_store_dwordx4 v[{R+4*q}:{R+4*q+3}], v10, s[16:19], s48 offen")
    a(f"""
    s_lshr_b32 s48, s32, 1
    s_lshl_b32 s48, s48, 13
    s_and_b32 s49, s32, 1
    s_lshl_b32 s49, s49, 3
    s_add_u32 s48, s48, s49
    s_add_u32 s48, s48, {WS_E}
    buffer_store_dwordx2 v[{R+32}:{R+33}], v10, s[16:19], s48 offen
    K1_nopre:
    """)
    a(f"""
    v_lshlrev_b32 v12, 4, v2
    s_lshl_b32 s48, s32, 2
    s_add_u32 s48, s48, s35
    s_mul_i32 s48, s48, {2 * FT}
    s_add_u32 s48, s48, {WS_H1F}
    s_mul_i32 s49, s33, 7
    s_add_u32 s58, s49, s55
    s_lshl_b32 s58, s58, 9
    s_add_u32 s58, s58, s48
    s_add_u32 s59, s49, s56
    s_lshr_b32 s60, s59, 1
    s_lshl_b32 s60, s60, 10
    s_and_b32 s59, s59, 1
    s_lshl_b32 s59, s59, 3
    s_add_u32 s59, s59, s60
    s_add_u32 s59, s59, s48
    s_add_u32 s60, s58, {FT}
    s_add_u32 s61, s59, {FT}
    s_mov_b32 s62, {f2u(-1.4426950408889634):#x}
    """)
    def silu_tile(p, Tt, dst):
        ac = ACC + 16 + (p * 2 + Tt) * 4
        tt = 80 + ((p * 2 + Tt) & 1) * 12
        a(f"""
        v_cvt_pk_bf16_f32 v{tt}, v{ac}, v{ac+1}
        v_cvt_pk_bf16_f32 v{tt+1}, v{ac+2}, v{ac+3}
        v_lshlrev_b32 v{tt+4}, 16, v{tt}
        v_and_b32 v{tt+5}, 0xffff0000, v{tt}
        v_lshlrev_b32 v{tt+6}, 16, v{tt+1}
        v_and_b32 v{tt+7}, 0xffff0000, v{tt+1}
        """)
        for r in range(4): a(f"v_mul_f32 v{tt+8+r}, s62, v{tt+4+r}")
        for r in range(4): a(f"v_exp_f32 v{tt+8+r}, v{tt+8+r}")
        for r in range(4): a(f"v_add_f32 v{tt+8+r}, 1.0, v{tt+8+r}")
        for r in range(4): a(f"v_rcp_f32 v{tt+8+r}, v{tt+8+r}")
        for r in range(4): a(f"v_mul_f32 v{tt+4+r}, v{tt+4+r}, v{tt+8+r}")
        a(f"""
        v_cvt_pk_bf16_f32 v{dst}, v{tt+4}, v{tt+5}
        v_cvt_pk_bf16_f32 v{dst+1}, v{tt+6}, v{tt+7}
        """)
    for Tt in range(2):
        o = 104 + Tt * 4
        silu_tile(0, Tt, o); silu_tile(1, Tt, o + 2)
        a(f"buffer_store_dwordx4 v[{o}:{o+3}], v12, s[16:19], s{58 + 2*Tt} offen")
    a("s_cmp_lg_u32 s36, 0\ns_cbranch_scc1 K1_sing")
    for Tt in range(2):
        o = 112 + Tt * 4
        silu_tile(2, Tt, o); silu_tile(3, Tt, o + 2)
        a(f"buffer_store_dwordx4 v[{o}:{o+3}], v12, s[16:19], s{59 + 2*Tt} offen")
    a("s_branch K1_fin\nK1_sing:")
    for Tt in range(2):
        o = 112 + Tt * 4
        silu_tile(2, Tt, o)
        a(f"buffer_store_dwordx2 v[{o}:{o+1}], v12, s[16:19], s{59 + 2*Tt} offen")
    a("K1_fin:")
    stamp(a, 14)
    if STAMP: a("s_waitcnt vmcnt(0)")
    stamp(a, 15)
    stamp_store(a, 16, 0)
    a("K1_done:")
    a("s_endpgm")

K3_XB = 131072
K3_LDS = 163840
NB = 4
ND = 5
G0 = 6

def gen_k3(a):
    SACC, CAR, LAM, BUR, H, P, TT, CF, HF = 16, 32, 64, 96, 160, 176, 192, 200, 232
    RING, FACC = 16, 176
    CE, CS, CT, CW = 176, 208, 224, 232
    VC, VBU, VPW, VTR0, VTR1, VCH, VL16 = 248, 249, 250, 251, 252, 253, 1
    a.raw(".p2align 8\nk3_kernel:")
    a("""
    s_cmp_ge_u32 s2, 256
    s_cbranch_scc1 K3_done
    s_load_dwordx2 s[72:73], s[0:1], 0      ; x
    s_load_dwordx4 s[76:79], s[0:1], 40
    s_load_dwordx2 s[80:81], s[0:1], 64     ; Dskip
    s_load_dwordx2 s[84:85], s[0:1], 96     ; out
    s_load_dwordx2 s[82:83], s[0:1], 112    ; ws
    v_lshrrev_b32 v1, 6, v0
    v_and_b32 v2, 63, v0                    ; lane
    v_readfirstlane_b32 s34, v1             ; wave
    s_and_b32 s32, s2, 7
    s_lshl_b32 s32, s32, 2
    s_bfe_u32 s88, s2, 0x20003
    s_add_u32 s32, s32, s88                 ; rt64
    s_lshr_b32 s33, s2, 5                   ; ct
    s_and_b32 s35, s34, 3                   ; w4
    s_lshr_b32 s36, s34, 2                  ; role
    s_lshr_b32 s37, s32, 1                  ; tile128
    s_and_b32 s38, s32, 1                   ; half
    v_lshlrev_b32 v3, 4, v0                 ; tid*16
    s_waitcnt lgkmcnt(0)
    """)
    stamp(a, 0)
    srd(a, 4, 82, WS_SIZE)
    for q in range(8):
        a(f"""
        s_cmp_le_u32 s37, {2*q}
        s_cbranch_scc1 K3_noE
        s_mov_b32 s88, {WS_E + q * 8192}
        buffer_load_dwordx4 v[{CE+4*q}:{CE+4*q+3}], v3, s[4:7], s88 offen
        """)
    a("K3_noE:")
    vm = Cnt()
    a(f"""
    s_mov_b32 s88, {WS_TP}
    buffer_load_dwordx4 v[{CT}:{CT+3}], v3, s[4:7], s88 offen
    s_mov_b32 s88, {WS_TP + 8192}
    buffer_load_dwordx4 v[{CT+4}:{CT+7}], v3, s[4:7], s88 offen
    s_lshl_b32 s89, s32, 15
    s_add_u32 s89, s89, {WS_S8X}
    """)
    for q in range(4):
        a(f"s_add_u32 s88, s89, {q * 8192}")
        a(f"buffer_load_dwordx4 v[{CS+4*q}:{CS+4*q+3}], v3, s[4:7], s88 offen")
    vm.issue("carry", 6)
    a("""
    s_cmp_lt_u32 s34, 4
    s_cselect_b32 s88, s76, s78
    s_cselect_b32 s89, s77, s79
    """)
    srd(a, 12, 88, 512 * 1024)
    srd(a, 16, 72, 2048 * 1024)
    srd(a, 20, 84, 2048 * 2048)
    srd(a, 24, 80, 1024)
    a(f"""
    v_and_b32 v9, 15, v2                    ; n / m
    v_lshrrev_b32 v10, 4, v2                ; g
    v_lshlrev_b32 v{VL16}, 4, v2            ; lane*16
    s_lshl_b32 s88, s33, 6
    s_lshl_b32 s89, s35, 4
    s_add_u32 s88, s88, s89
    v_add_u32 v11, s88, v9
    v_lshlrev_b32 v11, 10, v11
    v_lshl_add_u32 v{VC}, v10, 4, v11
    s_lshl_b32 s39, s34, 10                 ; (ri*4+dt)*1024
    """)
    def cdma(vm, r):
        a(f"""
        s_add_u32 m0, s39, {r * (8192 - 64)}
        buffer_load_dwordx4 v{VC}, s[12:15], 0 offen offset:{r*64} lds
        """)
        vm.issue(("c", r))
    def bu_loads(vm, r):
        b = BUR + (r % NB) * 16
        for j in range(4):
            a(f"buffer_load_dwordx4 v[{b+4*j}:{b+4*j+3}], v{VBU}, s[4:7], s{40 + j + 4 * (r >> 3)} offen offset:{(r & 7) * 512}")
        vm.issue(("bu", r), 4)
    def ffn_load(vm, ks, which):
        b = RING + (ks % ND) * 32 + which * 4
        a(f"buffer_load_dwordx4 v[{b}:{b+3}], v{VL16}, s[4:7], s{40 + which} offen offset:{(ks & 3) * 1024}")
        vm.issue(("f", ks, which))
    def scan_list(r):
        b = BUR + (r % NB) * 16; L = LAM + 2 * r
        o1 = []; o2 = []
        prev = CAR + 2 * r
        for i in range(8):
            h = H + 2 * i
            o1.append(f"v_pk_fma_f32 v[{h}:{h+1}], v[{prev}:{prev+1}], v[{L}:{L+1}], v[{b+2*i}:{b+2*i+1}] op_sel_hi:[1,0,1]")
            o1.append(f"v_pk_fma_f32 v[{h}:{h+1}], v[{prev}:{prev+1}], v[{L}:{L+1}], v[{h}:{h+1}] op_sel:[1,1,0] op_sel_hi:[0,1,1] neg_lo:[0,1,0]")
            prev = h
        for q in range(4):
            h0, h1 = H + 4 * q, H + 4 * q + 2
            t = TT + 4 * (q & 1)
            o2 += [f"v_cvt_pk_bf16_f32 v{P+q}, v{h0}, v{h1}",
                   f"v_cvt_pk_bf16_f32 v{P+8+q}, -v{h0+1}, -v{h1+1}",
                   f"v_lshlrev_b32 v{t}, 16, v{P+q}",
                   f"v_lshlrev_b32 v{t+1}, 16, v{P+8+q}",
                   f"v_and_b32 v{t+2}, 0xffff0000, v{P+q}",
                   f"v_and_b32 v{t+3}, 0xffff0000, v{P+8+q}",
                   f"v_pk_add_f32 v[{t}:{t+1}], v[{h0}:{h0+1}], v[{t}:{t+1}] neg_lo:[0,1] neg_hi:[1,1]",
                   f"v_pk_add_f32 v[{t+2}:{t+3}], v[{h1}:{h1+1}], v[{t+2}:{t+3}] neg_lo:[0,1] neg_hi:[1,1]",
                   f"v_cvt_pk_bf16_f32 v{P+4+q}, v{t}, v{t+2}",
                   f"v_cvt_pk_bf16_f32 v{P+12+q}, v{t+1}, v{t+3}"]
        w = [f"ds_write_b128 v{VPW}, v[{P+4*pl}:{P+4*pl+3}] offset:{pl * 1024}" for pl in range(4)]
        return o1, o2, w

    def carry_compute(role, vm):
        stamp(a, 1)
        a(f"s_waitcnt vmcnt({vm.after('carry')})")
        stamp(a, 2)
        a(f"v_mov_b32 v{CW}, 0\nv_mov_b32 v{CW+1}, 0")
        for i in range(15):
            a(f"s_cmp_le_u32 s37, {i}\ns_cbranch_scc1 K3_hd{role}")
            cmul_acc(a, CW + 2, CW, CT + 4, CE + 2 * i)
            a(f"v_mov_b32 v{CW}, v{CW+2}\nv_mov_b32 v{CW+1}, v{CW+3}")
        a(f"K3_hd{role}:")
        a(f"s_cmp_eq_u32 s38, 0\ns_cbranch_scc1 K3_hg{role}")
        cmul_acc(a, CW + 2, CW, CT + 2, None)
        a(f"v_mov_b32 v{CW}, v{CW+2}\nv_mov_b32 v{CW+1}, v{CW+3}")
        a(f"K3_hg{role}:")
        a(f"v_lshrrev_b32 v4, 1, v3\nv_add_u32 v4, {K3_XB}, v4")
        cur = CW
        for q in range(8):
            a(f"v_pk_add_f32 v[{CS+2*q}:{CS+2*q+1}], v[{CS+2*q}:{CS+2*q+1}], v[{cur}:{cur+1}]")
            a(f"ds_write_b64 v4, v[{CS+2*q}:{CS+2*q+1}] offset:{q*4096}")
            if q < 7:
                nxt = CW + 2 if cur == CW else CW
                cmul_acc(a, nxt, cur, CT, None)
                cur = nxt
        a("s_waitcnt lgkmcnt(0)\ns_barrier")
        stamp(a, 3)

    def epi_loads():
        a(f"""
        v_lshrrev_b32 v4, 3, v0                 ; t
        v_and_b32 v5, 7, v0                     ; cp
        s_lshl_b32 s88, s32, 6
        v_add_u32 v6, s88, v4                   ; t glob
        v_lshlrev_b32 v7, 10, v6
        s_lshl_b32 s88, s33, 7
        v_lshl_add_u32 v8, v5, 4, s88
        v_add_u32 v7, v7, v8
        v_lshlrev_b32 v6, 3, v6
        s_mov_b32 s88, {WS_ST}
        buffer_load_dwordx4 v[32:35], v7, s[16:19], 0 offen
        buffer_load_dwordx2 v[36:37], v6, s[4:7], s88 offen
        buffer_load_dwordx4 v[40:43], v8, s[24:27], 0 offen
        v_lshlrev_b32 v7, 1, v7
        """)

    a("s_cmp_lg_u32 s36, 0\ns_cbranch_scc1 K3_role1")
    vmc = vm
    vm = vmc.copy()
    a(f"""
    v_and_b32 v13, 31, v2                   ; chl
    v_lshrrev_b32 v14, 5, v2                ; sp
    s_lshl_b32 s88, s35, 1
    v_add_u32 v15, s88, v14                 ; sg
    s_lshl_b32 s88, s32, 3
    v_add_u32 v4, s88, v15
    s_mov_b32 s88, {BU_SS}
    v_mul_lo_u32 v4, v4, s88
    v_lshl_add_u32 v{VBU}, v13, 4, v4
    v_lshlrev_b32 v5, 4, v13                ; chl*16
    """)
    for j in range(8):
        a(f"s_mov_b32 s{40+j}, {WS_BU + (j & 3) * BU_JS + (j >> 2) * 4096}")
    for q in range(8):
        a(f"s_mov_b32 s88, {WS_TL + q * 512}")
        a(f"buffer_load_dwordx4 v[{LAM+4*q}:{LAM+4*q+3}], v5, s[4:7], s88 offen")
    vm.issue("lam", 8)
    bu_loads(vm, 0)
    for r in range(G0): cdma(vm, r)
    for r in range(1, NB): bu_loads(vm, r)
    a(f"""
    s_lshl_b32 s88, s35, 12
    s_add_u32 s88, s88, {K3_XB}             ; PB
    v_lshlrev_b32 v4, 2, v14
    v_xor_b32 v4, v4, v13
    v_lshlrev_b32 v4, 4, v4
    v_lshl_add_u32 v4, v14, 9, v4
    v_add_u32 v{VPW}, s88, v4
    v_bfe_u32 v4, v2, 2, 2
    v_lshl_add_u32 v4, v10, 3, v4           ; k
    v_bfe_u32 v5, v2, 1, 1                  ; c>>1
    v_lshlrev_b32 v6, 2, v5
    v_xor_b32 v4, v4, v6
    v_lshlrev_b32 v4, 4, v4
    v_lshl_add_u32 v4, v5, 9, v4
    v_and_b32 v5, 1, v2
    v_lshl_add_u32 v4, v5, 3, v4
    v_add_u32 v{VTR0}, s88, v4
    v_xor_b32 v{VTR1}, 64, v{VTR0}
    v_add_u32 v{VCH}, 65536, v{VL16}
    v_lshlrev_b32 v15, 12, v15
    v_lshl_add_u32 v15, v13, 3, v15
    v_add_u32 v15, {K3_XB}, v15
    """)
    carry_compute(0, vm)
    for r in range(16):
        a(f"ds_read_b64 v[{CAR+2*r}:{CAR+2*r+1}], v15 offset:{r*256}")
    for r in range(16): a(f"v_mov_b32 v{SACC+r}, 0")
    a(f"s_waitcnt vmcnt({vm.after(('c', G0-1))}) lgkmcnt(0)\ns_barrier")
    stamp(a, 4)
    for r in range(G0, 16): cdma(vm, r)
    o1, o2, w = scan_list(0)
    for l in o1 + o2 + w: a(l)
    for r in range(16):
        if r == G0:
            a(f"s_waitcnt vmcnt({vm.after(('c', 15))})\ns_barrier")
        if r + NB <= 15: bu_loads(vm, r + NB)
        if r == 12: epi_loads(); vm.issue("epi", 3)
        for pl in range(4):
            a(f"ds_read_b64_tr_b16 v[{HF+4*pl}:{HF+4*pl+1}], v{VTR0} offset:{pl*1024}")
            a(f"ds_read_b64_tr_b16 v[{HF+4*pl+2}:{HF+4*pl+3}], v{VTR1} offset:{pl*1024}")
        vc, off = (VL16, r * 8192) if r < 8 else (VCH, (r - 8) * 8192)
        for i in range(8):
            a(f"ds_read_b128 v[{CF+4*i}:{CF+4*i+3}], v{vc} offset:{off + i*1024}")
        mf = []
        for pl in range(4):
            for dt in range(4):
                ac = SACC + 4 * dt
                cf = CF + ((pl >> 1) * 4 + dt) * 4
                mf.append(f"v_mfma_f32_16x16x32_bf16 v[{ac}:{ac+3}], v[{cf}:{cf+3}], v[{HF+4*pl}:{HF+4*pl+3}], v[{ac}:{ac+3}]")
        if r < 15:
            o1, o2, w = scan_list(r + 1)
            a(f"s_waitcnt vmcnt({vm.after(('bu', r + 1))})")
            for l in o1: a(l)
            a("s_waitcnt lgkmcnt(0)")
            interleave(a, mf, o2)
            for l in w: a(l)
        else:
            a("s_waitcnt lgkmcnt(0)")
            for m in mf: a(m)
        stamp(a, 5 + r)
    a(f"""
    v_lshrrev_b32 v11, 1, v9
    v_and_b32 v11, 4, v11
    v_xor_b32 v11, v11, v9                  ; swz(n)
    v_xor_b32 v11, v11, v10                 ; ^ g
    s_lshl_b32 s88, s35, 12
    s_add_u32 s88, s88, {K3_XB}
    v_lshl_add_u32 v6, v9, 8, s88
    """)
    for dt in range(4):
        a(f"v_xor_b32 v8, {4*dt}, v11\nv_lshl_add_u32 v8, v8, 4, v6")
        a(f"ds_write_b128 v8, v[{SACC+4*dt}:{SACC+4*dt+3}]")
    a("s_barrier")
    a("s_waitcnt lgkmcnt(0)\ns_barrier")
    a("s_branch K3_fin")
    a("K3_role1:")
    vm = vmc.copy()
    a(f"""
    s_mul_i32 s88, s35, {14 * 1024}
    s_mul_i32 s89, s33, {4 * FT}
    s_add_u32 s89, s89, s88
    s_add_u32 s40, s89, {WS_W2F}
    s_mul_i32 s89, s32, {4 * FT}
    s_add_u32 s89, s89, s88
    s_add_u32 s44, s89, {WS_H1F}
    """)
    for i in range(1, 4):
        a(f"s_add_u32 s{40+i}, s40, {i * FT}\ns_add_u32 s{44+i}, s44, {i * FT}")
    def bump(ks):
        if ks & 3 == 0 and ks > 0:
            for i in range(8): a(f"s_add_u32 s{40+i}, s{40+i}, 4096")
    for ks in range(ND):
        bump(ks)
        for wh in range(8): ffn_load(vm, ks, wh)
        if ks == 0:
            for r in range(G0): cdma(vm, r)
    carry_compute(1, vm)
    for r in range(64): a(f"v_mov_b32 v{FACC+r}, 0")
    a(f"s_waitcnt vmcnt({vm.after(('c', G0-1))})\ns_barrier")
    stamp(a, 4)
    for r in range(G0, 16): cdma(vm, r)
    for ks in range(14):
        if ks == 5:
            a(f"s_waitcnt vmcnt({vm.after(('c', 15))})\ns_barrier")
        a(f"s_waitcnt vmcnt({vm.after(('f', ks, 7))})")
        nk = ks + ND
        if nk < 14: bump(nk)
        b = RING + (ks % ND) * 32
        for dt in range(4):
            for tt in range(4):
                ac = FACC + (dt * 4 + tt) * 4
                a(f"v_mfma_f32_16x16x32_bf16 v[{ac}:{ac+3}], v[{b+4*dt}:{b+4*dt+3}], v[{b+16+4*tt}:{b+16+4*tt+3}], v[{ac}:{ac+3}]")
            if nk < 14: ffn_load(vm, nk, dt)
        if nk < 14:
            for tt in range(4): ffn_load(vm, nk, 4 + tt)
        if ks == 10: epi_loads(); vm.issue("epi", 3)
        stamp(a, 5 + ks)
    a(f"""
    v_lshrrev_b32 v11, 2, v9
    v_and_b32 v6, 3, v9
    v_lshl_add_u32 v11, v11, 3, v6          ; t0 = 8(n>>2) + (n&3)     (tt=0)
    v_lshrrev_b32 v6, 1, v11
    v_and_b32 v6, 4, v6
    v_xor_b32 v6, v6, v11
    v_and_b32 v6, 15, v6                    ; swz(t0)
    v_xor_b32 v6, v6, v10                   ; ^ g
    s_lshl_b32 s88, s35, 14
    v_lshl_add_u32 v11, v11, 8, s88
    s_barrier
    """)
    for tq in range(2):
        for dt in range(4):
            a(f"v_xor_b32 v8, {(4 * dt) ^ (4 * tq)}, v6\nv_lshl_add_u32 v8, v8, 4, v11")
            for th in range(2):
                tt = th * 2 + tq
                ac = FACC + (dt * 4 + tt) * 4
                a(f"ds_write_b128 v8, v[{ac}:{ac+3}] offset:{th * 8192 + tq * 1024}")
    a("s_waitcnt lgkmcnt(0)\ns_barrier")
    a("K3_fin:")
    stamp(a, 21)
    a(f"""
    v_lshrrev_b32 v11, 1, v4
    v_and_b32 v11, 4, v11
    v_xor_b32 v11, v11, v4
    v_and_b32 v11, 15, v11                  ; swz(t)
    v_lshlrev_b32 v6, 1, v5
    v_xor_b32 v6, v6, v11
    v_lshlrev_b32 v6, 4, v6
    v_lshl_add_u32 v6, v4, 8, v6
    v_xor_b32 v8, 16, v6
    v_add_u32 v9, {K3_XB}, v6
    v_add_u32 v10, {K3_XB}, v8
    ds_read_b128 v[16:19], v9
    ds_read_b128 v[20:23], v10
    """)
    for W in range(4):
        a(f"ds_read_b128 v[{48+8*W}:{51+8*W}], v6 offset:{W*16384}")
        a(f"ds_read_b128 v[{52+8*W}:{55+8*W}], v8 offset:{W*16384}")
    a("s_waitcnt vmcnt(0)")
    XU, XN, DU = 88, 96, 104
    for e in range(4):
        a(f"v_lshlrev_b32 v{XU+2*e}, 16, v{32+e}\nv_and_b32 v{XU+1+2*e}, 0xffff0000, v{32+e}")
        a(f"v_lshlrev_b32 v{DU+2*e}, 16, v{40+e}\nv_and_b32 v{DU+1+2*e}, 0xffff0000, v{40+e}")
    def rnd(base):
        for e in range(4): a(f"v_cvt_pk_bf16_f32 v{80+e}, v{base+2*e}, v{base+1+2*e}")
        for e in range(4): a(f"v_lshlrev_b32 v{base+2*e}, 16, v{80+e}\nv_and_b32 v{base+1+2*e}, 0xffff0000, v{80+e}")
    for e in range(0, 8, 2):
        a(f"v_pk_add_f32 v[{XN+e}:{XN+1+e}], v[{XU+e}:{XU+1+e}], v[36:37] op_sel_hi:[1,0] neg_lo:[0,1] neg_hi:[0,1]")
    rnd(XN)
    for e in range(0, 8, 2):
        a(f"v_pk_mul_f32 v[{XN+e}:{XN+1+e}], v[{XN+e}:{XN+1+e}], v[36:37] op_sel:[0,1] op_sel_hi:[1,1]")
    rnd(XN)
    for e in range(0, 8, 2): a(f"v_pk_mul_f32 v[{XN+e}:{XN+1+e}], v[{XN+e}:{XN+1+e}], v[{DU+e}:{DU+1+e}]")
    rnd(XN)
    a("s_waitcnt lgkmcnt(0)")
    base = 48
    for e in range(0, 8, 2):
        a(f"v_pk_add_f32 v[{base+e}:{base+e+1}], v[{base+e}:{base+e+1}], v[{base+8+e}:{base+9+e}]")
        a(f"v_pk_add_f32 v[{base+16+e}:{base+17+e}], v[{base+16+e}:{base+17+e}], v[{base+24+e}:{base+25+e}]")
    for e in range(0, 8, 2):
        a(f"v_pk_add_f32 v[{base+e}:{base+e+1}], v[{base+e}:{base+e+1}], v[{base+16+e}:{base+17+e}]")
    a(f"s_mov_b32 s92, {f2u(-1.4426950408889634):#x}")
    rnd(48)
    for e in range(8): a(f"v_mul_f32 v{56+e}, s92, v{48+e}")
    for e in range(8): a(f"v_exp_f32 v{56+e}, v{56+e}")
    for e in range(8): a(f"v_add_f32 v{56+e}, 1.0, v{56+e}")
    for e in range(8): a(f"v_rcp_f32 v{56+e}, v{56+e}")
    for e in range(8): a(f"v_mul_f32 v{48+e}, v{48+e}, v{56+e}")
    rnd(48)
    for e in range(8): a(f"v_fma_f32 v{16+e}, v{16+e}, 2.0, v{XN+e}")
    for e in range(8): a(f"v_mul_f32 v{16+e}, v{16+e}, v{48+e}")
    for e in range(8): a(f"v_add_f32 v{16+e}, v{16+e}, v{XU+e}")
    a("""
    buffer_store_dwordx4 v[16:19], v7, s[20:23], 0 offen
    buffer_store_dwordx4 v[20:23], v7, s[20:23], 0 offen offset:16
    """)
    if STAMP: a("s_waitcnt vmcnt(0)")
    stamp(a, 22)
    stamp_store(a, 4, 1)
    a("K3_done:\ns_endpgm")

HEADER = open("recurrent_scan__ssm_conv_s5__dense_activation_silu__prompt.s.ref").read().split("; Override launch")[0]

def build(kernels):
    a = Asm()
    launches = []
    if "k1" in kernels: launches.append(f"; @launch kernel=k1_kernel grid=(256,1,1) block=(512,1,1) lds={K1_LDS}")
    if "k3" in kernels: launches.append(f"; @launch kernel=k3_kernel grid=(256,1,1) block=(512,1,1) lds={K3_LDS}")
    a.raw(HEADER.rstrip("\n"))
    for l in launches: a.raw(l)
    a.raw('.amdgcn_target "amdgcn-amd-amdhsa--gfx950"\n.text')
    if "k1" in kernels: gen_k1(a)
    if "k3" in kernels: gen_k3(a)
    a.raw('.section .rodata,"a"\n.p2align 6')
    if "k1" in kernels: a.raw(kd("k1_kernel", 256))
    if "k3" in kernels: a.raw(".p2align 6\n" + kd("k3_kernel", 256))
    return a.text()

if __name__ == "__main__":
    ks = sys.argv[2].split(",") if len(sys.argv) > 2 else ["k1", "k3"]
    STAMP = "stamp" in ks
    open(sys.argv[1], "w").write(build(ks))
```

```python
import sys, struct
sys.path.insert(0, "dev")
from asmlib import Asm, kd

import os
PAD = int(os.environ.get("PAD", "0"))
ROT = int(os.environ.get("ROT", "1"))
MAP = int(os.environ.get("MAP", "1"))
BU_JS = 8192 + 512 * PAD
BU_SS = 4 * BU_JS + 256 * PAD
FT = 56 * 1024 + 256 * PAD
WS_BU  = 0
WS_H1F = 10 << 20
WS_W2F = 18 << 20
WS_S8X = 20 << 20
WS_E   = 21 << 20
WS_TP  = (21 << 20) + (64 << 10)
WS_TL  = (21 << 20) + (128 << 10)
WS_ST  = (21 << 20) + (192 << 10)
WS_CF  = 22 << 20
WS_DBG = 24 << 20
WS_SIZE = 28 << 20
STAMP = False

def stamp(a, i):
    if not STAMP: return
    a(f"""
    s_memtime s[96:97]
    s_waitcnt lgkmcnt(0)
    v_writelane_b32 v255, s96, {i}
    """)

def stamp_store(a, srd, k):
    if not STAMP: return
    a(f"""
    s_mov_b64 exec, -1
    v_and_b32 v254, 63, v0
    v_lshlrev_b32 v254, 2, v254
    s_lshl_b32 s96, s2, 3
    s_add_u32 s96, s96, s34
    s_lshl_b32 s96, s96, 8
    s_add_u32 s96, s96, {WS_DBG + k * (1 << 20)}
    buffer_store_dword v255, v254, s[{srd}:{srd+3}], s96 offen
    """)

def srd(a, d, base, nbytes):
    a(f"""
    s_mov_b32 s{d}, s{base}
    s_and_b32 s{d+1}, s{base+1}, 0xffff
    s_mov_b32 s{d+2}, {nbytes}
    s_mov_b32 s{d+3}, 0x00020000
    """)

def f2u(x):
    return struct.unpack("<I", struct.pack("<f", x))[0]

def cplx_sq(a, d, s, t):
    a(f"""
    v_mul_f32 v{t}, v{s+1}, v{s+1}
    v_mul_f32 v{d+1}, v{s}, v{s+1}
    v_fma_f32 v{d}, v{s}, v{s}, -v{t}
    v_add_f32 v{d+1}, v{d+1}, v{d+1}
    """)

def cmul_acc(a, d, x, m, add):
    if add is None:
        a(f"v_pk_mul_f32 v[{d}:{d+1}], v[{x}:{x+1}], v[{m}:{m+1}] op_sel_hi:[1,0]")
    else:
        a(f"v_pk_fma_f32 v[{d}:{d+1}], v[{x}:{x+1}], v[{m}:{m+1}], v[{add}:{add+1}] op_sel_hi:[1,0,1]")
    a(f"v_pk_fma_f32 v[{d}:{d+1}], v[{x}:{x+1}], v[{m}:{m+1}], v[{d}:{d+1}] op_sel:[1,1,0] op_sel_hi:[0,1,1] neg_lo:[0,1,0]")

class Cnt:
    def __init__(self): self.n = 0; self.tags = {}
    def issue(self, tag=None, k=1):
        self.n += k
        if tag is not None: self.tags[tag] = self.n
    def after(self, tag): return self.n - self.tags[tag]
    def copy(self):
        c = Cnt(); c.n = self.n; c.tags = dict(self.tags); return c

def interleave(a, main, fill, lead=0):
    k = 0
    for l in fill[:lead]: a(l)
    k = lead
    n = len(main)
    rest = len(fill) - k
    for i, m in enumerate(main):
        a(m)
        tgt = lead + (rest * (i + 1)) // n
        while k < tgt:
            a(fill[k]); k += 1

K1_BS = [49152 + i * 24576 for i in range(4)]
K1_TABL = 147456
K1_E8 = 148480
K1_SCR = 152576
K1_LDS = 160768

def gen_k1(a):
    X, MR, TM, AFR, BF, ACC = 16, 80, 84, 108, 124, 172
    VB, VW, VA0, VA1, VF = 220, 221, 222, 223, 224
    VAW0, VAW1, VAR0, VAR1 = 228, 229, 230, 231
    NM = 100
    VS3 = 240
    SELR = 246
    vm = Cnt()
    a.raw(".p2align 8\nk1_kernel:")
    a("""
    s_cmp_ge_u32 s2, 256
    s_cbranch_scc1 K1_done
    """)
    stamp(a, 30)
    a("""
    s_load_dwordx4 s[72:75], s[0:1], 0      ; x, Lre
    s_load_dwordx4 s[76:79], s[0:1], 16
    s_load_dwordx4 s[80:83], s[0:1], 32
    s_load_dwordx4 s[84:87], s[0:1], 48
    s_load_dwordx4 s[88:91], s[0:1], 80     ; w1, w2
    s_load_dwordx2 s[92:93], s[0:1], 112    ; ws
    v_lshrrev_b32 v1, 6, v0
    v_and_b32 v2, 63, v0                    ; lane
    v_readfirstlane_b32 s34, v1             ; wave
    """)
    if MAP == 0:
        a("""
        s_and_b32 s32, s2, 7
        s_lshl_b32 s32, s32, 1
        s_bfe_u32 s48, s2, 0x10003
        s_add_u32 s32, s32, s48                 ; rt
        s_lshr_b32 s33, s2, 4                   ; cg
        """)
    elif MAP == 1:
        a("""
        s_bfe_u32 s32, s2, 0x20001
        s_lshl_b32 s32, s32, 2
        s_bfe_u32 s48, s2, 0x20003
        s_add_u32 s32, s32, s48
        s_and_b32 s33, s2, 1
        s_lshl_b32 s33, s33, 3
        s_lshr_b32 s48, s2, 5
        s_add_u32 s33, s33, s48
        """)
    else:
        a("""
        s_bfe_u32 s32, s2, 0x10002
        s_lshl_b32 s32, s32, 3
        s_bfe_u32 s48, s2, 0x30003
        s_add_u32 s32, s32, s48
        s_and_b32 s33, s2, 3
        s_lshl_b32 s33, s33, 2
        s_lshr_b32 s48, s2, 6
        s_add_u32 s33, s33, s48
        """)
    a("""
    s_and_b32 s35, s34, 3                   ; wrow
    s_lshr_b32 s36, s34, 2                  ; wcol
    s_lshl_b32 s48, s32, 7
    s_lshl_b32 s49, s34, 4
    s_add_u32 s48, s48, s49
    v_lshrrev_b32 v8, 3, v2                 ; r
    v_and_b32 v9, 7, v2                     ; p
    v_add_u32 v10, s48, v8                  ; row (j=0)
    v_lshlrev_b32 v3, 10, v10
    v_lshl_add_u32 v3, v9, 4, v3
    v_add_u32 v1, 8192, v3
    """)
    if MAP == 0: a("s_and_b32 s48, s32, 1\ns_lshl_b32 s48, s48, 2\ns_add_u32 s50, s33, s48")
    elif MAP == 1: a("s_and_b32 s48, s32, 3\ns_lshl_b32 s48, s48, 1\ns_add_u32 s50, s33, s48")
    else: a("s_lshl_b32 s48, s33, 1\ns_add_u32 s50, s32, s48")
    a("""
    """)
    for pos in range(8):
        if ROT:
            a(f"s_add_u32 s48, s50, {pos}\ns_and_b32 s48, s48, 7\ns_lshl_b32 s{64+pos}, s48, 7")
        else:
            a(f"s_movk_i32 s{64+pos}, {pos*128}")
    a(f"""
    v_lshrrev_b32 v12, 3, v2
    s_lshl_b32 s48, s34, 3
    v_add_u32 v12, s48, v12                 ; row 0..63
    v_bfe_u32 v13, v12, 1, 3                ; key
    v_xor_b32 v13, v13, v9                  ; chunk
    v_and_b32 v12, 31, v12
    s_lshl_b32 s48, s33, 5
    v_add_u32 v12, s48, v12                 ; p
    v_lshlrev_b32 v12, 10, v12
    v_lshl_add_u32 v{VB}, v13, 4, v12
    v_lshrrev_b32 v12, 4, v2                ; l>>4  (0..3)
    s_and_b32 s48, s34, 1
    s_lshl_b32 s48, s48, 2
    v_or_b32 v13, s48, v12                  ; s(k)
    v_bfe_u32 v14, v2, 1, 3                 ; pair'
    v_xor_b32 v13, v13, v14                 ; pair
    v_lshlrev_b32 v13, 5, v13
    v_and_b32 v14, 1, v2
    v_lshl_add_u32 v13, v14, 4, v13
    s_lshl_b32 s48, s34, 3
    v_add_u32 v12, s48, v12                 ; k local (j=0)
    s_movk_i32 s49, 3584
    v_mul_lo_u32 v12, v12, s49
    s_mul_i32 s48, s33, 224
    v_add3_u32 v{VW}, v12, v13, s48
    s_lshl_b32 s51, s34, 10                 ; wave*1024
    s_lshl_b32 s52, s34, 11                 ; wave*2048
    """)
    if STAMP: a("s_memtime s[98:99]")
    a("s_waitcnt lgkmcnt(0)")
    if STAMP: a("v_writelane_b32 v255, s98, 31")
    stamp(a, 0)
    srd(a, 4, 72, 2048 * 1024)
    def xload(c):
        for j in range(2):
            r = X + (c * 2 + j) * 4
            a(f"buffer_load_dwordx4 v[{r}:{r+3}], v{3 if j == 0 else 1}, s[4:7], s{64+c} offen")
            vm.issue(("x", c))
    srd(a, 16, 92, WS_SIZE)
    a("s_cmp_lg_u32 s34, 0\ns_cbranch_scc1 K1_nopar")
    srd(a, 20, 74, 1024)
    srd(a, 24, 76, 1024)
    srd(a, 28, 86, 1024)
    a("""
    v_and_b32 v4, 31, v2
    s_lshl_b32 s48, s33, 5
    v_add_u32 v4, s48, v4                   ; channel
    v_lshlrev_b32 v5, 1, v4
    buffer_load_ushort v6, v5, s[20:23], 0 offen
    buffer_load_ushort v7, v5, s[24:27], 0 offen
    buffer_load_ushort v11, v5, s[28:31], 0 offen
    K1_nopar:
    """)
    vm.tags["par"] = vm.n
    a("""
    s_cmp_lt_u32 s34, 4
    s_cselect_b32 s48, s78, s80
    s_cselect_b32 s49, s79, s81
    """)
    srd(a, 8, 48, 512 * 1024)
    srd(a, 12, 88, 512 * 3584)
    srd(a, 40, 90, 1792 * 1024)
    W2R = 232
    CR = 236
    a(f"""
    s_cmp_eq_u32 s34, 0
    s_cbranch_scc1 K1_nopt
    s_lshl_b32 s48, s33, 15
    s_and_b32 s49, s34, 3
    s_cmp_eq_u32 s49, 1
    s_cbranch_scc0 K1_pt2
    buffer_load_dword v252, off, s[8:11], s48
    s_branch K1_nopt
    K1_pt2:
    s_cmp_eq_u32 s34, 2
    s_cbranch_scc0 K1_pt3
    buffer_load_dword v252, off, s[12:15], 0
    buffer_load_dword v252, off, s[40:43], 0
    s_branch K1_nopt
    K1_pt3:
    s_cmp_eq_u32 s34, 3
    s_cbranch_scc0 K1_pt4
    s_mul_i32 s48, s32, {16 * BU_SS}
    buffer_load_dword v252, off, s[16:19], s48
    s_mul_i32 s48, s32, {8 * FT}
    s_add_u32 s48, s48, {WS_H1F}
    buffer_load_dword v252, off, s[16:19], s48
    s_add_u32 s48, s48, {8 * FT - 64}
    buffer_load_dword v252, off, s[16:19], s48
    s_branch K1_nopt
    K1_pt4:
    s_cmp_eq_u32 s34, 4
    s_cbranch_scc0 K1_nopt
    s_mov_b32 s48, {WS_W2F}
    buffer_load_dword v252, off, s[16:19], s48
    s_mov_b32 s48, {WS_CF}
    buffer_load_dword v252, off, s[16:19], s48
    s_mov_b32 s48, {WS_S8X}
    buffer_load_dword v252, off, s[16:19], s48
    K1_nopt:
    """)
    def dma_piece(st, i):
        base = K1_BS[st % 4]
        if i == 0:
            a(f"""
            s_add_u32 m0, s51, {base}
            s_mul_i32 s49, s{64+st}, 1792
            buffer_load_dwordx4 v{VB}, s[8:11], s{64+st} offen lds
            """)
        elif i == 1:
            a(f"""
            s_add_u32 m0, s52, {base + 8192}
            s_add_u32 s63, s49, {4 * 3584}
            buffer_load_dwordx4 v{VW}, s[12:15], s49 offen lds
            """)
        else:
            a(f"""
            s_add_u32 m0, s52, {base + 8192 + 1024}
            s_nop 0
            buffer_load_dwordx4 v{VW}, s[12:15], s63 offen lds
            """)
        vm.issue(("dma", st), 1)
    def dma_stage(st):
        for i in range(3): dma_piece(st, i)
    for c in range(8): xload(c)
    stamp(a, 16)

    a(f"""
    s_and_b32 s48, s34, 1
    s_lshl_b32 s48, s48, 3
    v_and_b32 v12, 3, v8
    v_add_u32 v12, s48, v12                 ; m (j=0)
    v_xor_b32 v12, v12, v9                  ; m ^ p
    v_lshlrev_b32 v12, 4, v12
    v_and_b32 v13, 3, v9                    ; g
    v_lshl_add_u32 v12, v13, 8, v12
    v_lshrrev_b32 v13, 2, v9                ; ks
    v_lshl_add_u32 v12, v13, 10, v12
    v_bfe_u32 v13, v8, 2, 1                 ; T
    v_lshl_add_u32 v12, v13, 11, v12
    s_lshr_b32 s48, s34, 1
    s_lshl_b32 s48, s48, 12
    v_add_u32 v{VAW0}, s48, v12
    v_xor_b32 v{VAW1}, 64, v{VAW0}
    v_and_b32 v14, 15, v2                   ; m / n
    v_lshrrev_b32 v15, 4, v2                ; g
    v_xor_b32 v12, v14, v15
    v_lshlrev_b32 v12, 4, v12
    v_lshl_add_u32 v12, v15, 8, v12
    s_lshl_b32 s48, s35, 12
    v_add_u32 v{VAR0}, s48, v12
    v_xor_b32 v12, 64, v{VAR0}
    v_add_u32 v{VAR1}, 1024, v12
    v_bfe_u32 v12, v14, 1, 3                ; key = (n>>1)&7
    v_xor_b32 v12, v12, v15
    s_lshl_b32 s48, s36, 4
    v_add_u32 v13, s48, v14
    v_lshlrev_b32 v13, 7, v13
    v_add_u32 v13, {K1_BS[0]}, v13
    v_lshl_add_u32 v{VA0}, v12, 4, v13
    v_xor_b32 v12, 4, v12
    v_lshl_add_u32 v{VA1}, v12, 4, v13
    v_bfe_u32 v12, v2, 2, 2                 ; r
    v_and_b32 v13, 1, v15
    v_lshl_or_b32 v13, v13, 2, v12          ; sw
    v_lshl_add_u32 v12, v15, 3, v12         ; 8g + r
    v_lshlrev_b32 v12, 8, v12
    v_and_b32 v5, 3, v2
    v_lshl_add_u32 v12, v5, 3, v12          ; + c*8
    v_add_u32 v12, {K1_BS[0] + 8192}, v12
    s_and_b32 s54, s33, 1                   ; par
    s_lshl_b32 s55, s36, 2
    s_add_u32 s55, s55, s54
    s_add_u32 s56, s55, 2
    s_cmp_lg_u32 s54, 0
    s_cselect_b32 s48, 0, 6
    s_cmp_lg_u32 s36, 0
    s_cselect_b32 s56, s48, s56
    """)
    for p, sreg in ((0, "s55"), (1, None), (2, "s56"), (3, None)):
        if sreg is None:
            a(f"s_add_u32 s48, s55, {p}")
            sreg = "s48"
        a(f"v_xor_b32 v5, {sreg}, v13\nv_lshl_add_u32 v{VF+p}, v5, 5, v12")
    T0 = 124
    def t(i): return T0 + i
    a("s_cmp_lg_u32 s34, 0\ns_cbranch_scc1 K1_notab")
    a(f"""
    s_waitcnt vmcnt({vm.after('par')})
    v_lshlrev_b32 v{t(0)}, 16, v6               ; Lre
    v_lshlrev_b32 v{t(1)}, 16, v7               ; Lim
    v_lshlrev_b32 v{t(2)}, 16, v11              ; log_dt
    v_mul_f32 v{t(2)}, {f2u(1.4426950408889634):#x}, v{t(2)}
    v_exp_f32 v{t(2)}, v{t(2)}
    v_cvt_pk_bf16_f32 v{t(2)}, v{t(2)}, v{t(2)}
    v_lshlrev_b32 v{t(2)}, 16, v{t(2)}
    v_mul_f32 v{t(3)}, v{t(2)}, v{t(0)}                 ; a
    v_mul_f32 v{t(4)}, v{t(2)}, v{t(1)}                 ; b
    v_mul_f32 v{t(3)}, {f2u(1.4426950408889634):#x}, v{t(3)}
    v_exp_f32 v{t(3)}, v{t(3)}                      ; e^a
    v_mul_f32 v{t(5)}, {f2u(0.6366197723675814):#x}, v{t(4)}
    v_rndne_f32 v{t(5)}, v{t(5)}                    ; n
    v_mov_b32 v{t(6)}, {f2u(1.5703125):#x}
    v_fma_f32 v{t(4)}, -v{t(5)}, v{t(6)}, v{t(4)}
    v_mov_b32 v{t(6)}, {f2u(4.837512969970703125e-4):#x}
    v_fma_f32 v{t(4)}, -v{t(5)}, v{t(6)}, v{t(4)}
    v_mov_b32 v{t(6)}, {f2u(7.54978995489188216e-8):#x}
    v_fma_f32 v{t(4)}, -v{t(5)}, v{t(6)}, v{t(4)}           ; r
    v_cvt_i32_f32 v{t(5)}, v{t(5)}                  ; q
    v_mul_f32 v{t(6)}, v{t(4)}, v{t(4)}                 ; z
    v_mov_b32 v{t(7)}, {f2u(-1.9515295891e-4):#x}
    v_mov_b32 v{t(8)}, {f2u(8.3321608736e-3):#x}
    v_fma_f32 v{t(7)}, v{t(7)}, v{t(6)}, v{t(8)}
    v_mov_b32 v{t(8)}, {f2u(-1.6666654611e-1):#x}
    v_fma_f32 v{t(7)}, v{t(7)}, v{t(6)}, v{t(8)}
    v_mul_f32 v{t(7)}, v{t(7)}, v{t(6)}
    v_fma_f32 v{t(7)}, v{t(7)}, v{t(4)}, v{t(4)}            ; sin r
    v_mov_b32 v{t(8)}, {f2u(2.443315711809948e-5):#x}
    v_mov_b32 v{t(9)}, {f2u(-1.388731625493765e-3):#x}
    v_fma_f32 v{t(8)}, v{t(8)}, v{t(6)}, v{t(9)}
    v_mov_b32 v{t(9)}, {f2u(4.166664568298827e-2):#x}
    v_fma_f32 v{t(8)}, v{t(8)}, v{t(6)}, v{t(9)}
    v_mul_f32 v{t(8)}, v{t(8)}, v{t(6)}
    v_fma_f32 v{t(8)}, v{t(8)}, v{t(6)}, 1.0
    v_fma_f32 v{t(8)}, v{t(6)}, -0.5, v{t(8)}           ; cos r
    v_and_b32 v{t(9)}, 1, v{t(5)}
    v_cmp_eq_u32 vcc, 1, v{t(9)}
    v_cndmask_b32 v{t(10)}, v{t(7)}, v{t(8)}, vcc
    v_cndmask_b32 v{t(11)}, v{t(8)}, v{t(7)}, vcc
    v_lshlrev_b32 v{t(9)}, 30, v{t(5)}
    v_and_b32 v{t(9)}, 0x80000000, v{t(9)}
    v_xor_b32 v{t(10)}, v{t(10)}, v{t(9)}                 ; sin b
    v_add_u32 v{t(9)}, 1, v{t(5)}
    v_lshlrev_b32 v{t(9)}, 30, v{t(9)}
    v_and_b32 v{t(9)}, 0x80000000, v{t(9)}
    v_xor_b32 v{t(11)}, v{t(11)}, v{t(9)}                 ; cos b
    v_mul_f32 v{t(12)}, v{t(3)}, v{t(11)}
    v_mul_f32 v{t(13)}, v{t(3)}, v{t(10)}
    v_add_f32 v{t(4)}, -1.0, v{t(12)}                ; Lr-1
    v_mul_f32 v{t(5)}, v{t(13)}, v{t(1)}
    v_fma_f32 v{t(5)}, v{t(4)}, v{t(0)}, v{t(5)}
    v_mul_f32 v{t(6)}, v{t(4)}, v{t(1)}
    v_fma_f32 v{t(6)}, v{t(13)}, v{t(0)}, -v{t(6)}
    v_mul_f32 v{t(7)}, v{t(1)}, v{t(1)}
    v_fma_f32 v{t(7)}, v{t(0)}, v{t(0)}, v{t(7)}            ; den
    v_rcp_f32 v{t(8)}, v{t(7)}
    v_fma_f32 v{t(9)}, -v{t(7)}, v{t(8)}, 2.0
    v_mul_f32 v{t(8)}, v{t(8)}, v{t(9)}
    v_mul_f32 v{t(14)}, v{t(5)}, v{t(8)}
    v_mul_f32 v{t(15)}, v{t(6)}, v{t(8)}
    """)
    cplx_sq(a, t(18), t(12), t(4))
    cplx_sq(a, t(20), t(18), t(4))
    cplx_sq(a, t(16), t(20), t(4))
    cplx_sq(a, t(18), t(16), t(4))
    cplx_sq(a, t(20), t(18), t(4))
    cplx_sq(a, t(18), t(20), t(4))
    cplx_sq(a, t(20), t(18), t(4))
    a(f"""
    v_mov_b32 v{t(22)}, v{t(12)}
    v_mov_b32 v{t(23)}, v{t(13)}
    v_and_b32 v{t(4)}, 31, v2
    v_lshlrev_b32 v{t(5)}, 5, v{t(4)}
    v_add_u32 v{t(5)}, {K1_TABL}, v{t(5)}
    ds_write_b128 v{t(5)}, v[{t(12)}:{t(15)}]
    ds_write_b64 v{t(5)}, v[{t(16)}:{t(17)}] offset:16
    s_cmp_lg_u32 s32, 0
    s_cbranch_scc1 K1_notab
    v_lshlrev_b32 v{t(5)}, 4, v4                    ; ch*16
    s_mov_b32 s48, {WS_TP}
    buffer_store_dwordx4 v[{t(16)}:{t(19)}], v{t(5)}, s[16:19], s48 offen
    s_mov_b32 s48, {WS_TP + 8192}
    buffer_store_dwordx4 v[{t(20)}:{t(23)}], v{t(5)}, s[16:19], s48 offen
    s_lshr_b32 s48, s33, 1
    s_lshl_b32 s48, s48, 9
    s_and_b32 s49, s33, 1
    s_lshl_b32 s49, s49, 3
    s_add_u32 s48, s48, s49
    s_add_u32 s48, s48, {WS_TL}
    v_lshlrev_b32 v{t(5)}, 4, v{t(4)}                ; chl*16
    buffer_store_dwordx2 v[{t(12)}:{t(13)}], v{t(5)}, s[16:19], s48 offen
    K1_notab:
    """)
    a(f"""
    v_lshrrev_b32 v5, 2, v14                ; m>>2
    v_cmp_eq_u32 vcc, v5, v15
    v_and_b32 v5, 1, v14
    v_lshlrev_b32 v5, 4, v5
    v_mov_b32 v6, 0x3f80
    v_lshlrev_b32 v5, v5, v6
    v_cndmask_b32 v5, 0, v5, vcc
    v_and_b32 v6, 2, v14
    v_cmp_eq_u32 vcc, 0, v6
    v_cndmask_b32 v{SELR+2}, 0, v5, vcc
    v_cndmask_b32 v{SELR+3}, v5, 0, vcc
    v_mov_b32 v{SELR}, 0
    v_mov_b32 v{SELR+1}, 0
    v_mov_b32 v{SELR+4}, 0
    v_mov_b32 v{SELR+5}, 0
    """)
    for i, r in enumerate([VA0, VA1] + [VF + p for p in range(4)]):
        a(f"v_add_u32 v{VS3+i}, {3 * 24576}, v{r}")
    for r in range(48): a(f"v_mov_b32 v{ACC+r}, 0")
    stamp(a, 1)
    S1, S2 = TM, TM + 4
    a("s_mov_b32 s53, 0x3f803f80")
    for c in range(8):
        a(f"s_waitcnt vmcnt({vm.after(('x', c))})")
        stamp(a, 20 + c)
        if c in (4, 6): dma_stage((c - 4) // 2)
        for d in range(4):
            for j in range(2):
                x = X + (c * 2 + j) * 4 + d
                s1 = S1 + j * 2 + (d & 1); s2 = S2 + j * 2 + (d & 1)
                first = (c == 0 and d < 2)
                a(f"v_dot2_f32_bf16 v{s1}, v{x}, s53, {'0' if first else 'v%d' % s1}")
                a(f"v_dot2_f32_bf16 v{s2}, v{x}, v{x}, {'0' if first else 'v%d' % s2}")

    stamp(a, 2)
    Q = TM + 8
    for j in range(2):
        a(f"v_add_f32 v{Q+j}, v{S1+2*j}, v{S1+2*j+1}")
        a(f"v_add_f32 v{Q+2+j}, v{S2+2*j}, v{S2+2*j+1}")
    for mod in ("quad_perm:[1,0,3,2]", "quad_perm:[2,3,0,1]", "row_half_mirror"):
        for i in range(4):
            a(f"v_add_f32_dpp v{Q+i}, v{Q+i}, v{Q+i} {mod} row_mask:0xf bank_mask:0xf")
    for i in range(4): a(f"v_mul_f32 v{Q+i}, {f2u(1/512):#x}, v{Q+i}")
    for j in range(2): a(f"v_fma_f32 v{Q+2+j}, -v{Q+j}, v{Q+j}, v{Q+2+j}")
    for j in range(2): a(f"v_max_f32 v{Q+2+j}, 0, v{Q+2+j}")
    for j in range(2): a(f"v_cvt_pk_bf16_f32 v{Q+4+j}, v{Q+j}, v{Q+2+j}")
    for j in range(2):
        a(f"v_lshlrev_b32 v{MR+2*j}, 16, v{Q+4+j}")
        a(f"v_and_b32 v{Q+2+j}, 0xffff0000, v{Q+4+j}")
    for j in range(2): a(f"v_add_f32 v{Q+2+j}, {f2u(1e-5):#x}, v{Q+2+j}")
    for j in range(2): a(f"v_cvt_pk_bf16_f32 v{Q+2+j}, v{Q+2+j}, v{Q+2+j}")
    for j in range(2): a(f"v_lshlrev_b32 v{Q+2+j}, 16, v{Q+2+j}")
    for j in range(2): a(f"v_sqrt_f32 v{Q+2+j}, v{Q+2+j}")
    for j in range(2): a(f"v_cvt_pk_bf16_f32 v{Q+2+j}, v{Q+2+j}, v{Q+2+j}")
    for j in range(2): a(f"v_lshlrev_b32 v{Q+2+j}, 16, v{Q+2+j}")
    for j in range(2): a(f"v_rcp_f32 v{Q+4+j}, v{Q+2+j}")
    for j in range(2): a(f"v_fma_f32 v{Q+6+j}, -v{Q+2+j}, v{Q+4+j}, 2.0")
    for j in range(2): a(f"v_mul_f32 v{MR+2*j+1}, v{Q+4+j}, v{Q+6+j}")
    def unpack(c, j):
        x0 = X + (c * 2 + j) * 4
        T = TM + 8 * j
        nm = NM + 4 * j
        return [f"v_mfma_f32_16x16x32_bf16 v[{T}:{T+3}], v[{SELR+2}:{SELR+5}], v[{x0}:{x0+3}], v[{nm}:{nm+3}]",
                f"v_mfma_f32_16x16x32_bf16 v[{T+4}:{T+7}], v[{SELR}:{SELR+3}], v[{x0}:{x0+3}], v[{nm}:{nm+3}]"]
    def norm_valu(c, j):
        x0 = X + (c * 2 + j) * 4
        T = TM + 8 * j
        o = []
        for e in range(8): o.append(f"v_cvt_pk_bf16_f32 v{T+e}, 0, v{T+e}")
        for e in range(8): o.append(f"v_mul_f32 v{T+e}, v{T+e}, v{MR+2*j+1}")
        for d in range(4): o.append(f"v_cvt_pk_bf16_f32 v{x0+d}, v{T+2*d}, v{T+2*d+1}")
        return o
    def norm_write(c, j):
        return f"ds_write_b128 v{VAW0 if j == 0 else VAW1}, v[{X+(c*2+j)*4}:{X+(c*2+j)*4+3}] offset:{(c % 3) * 16384}"
    for j in range(2):
        for r in range(4): a(f"v_xor_b32 v{NM+4*j+r}, 0x80000000, v{MR+2*j}")
    for c in range(2):
        for j in range(2):
            for l in unpack(c, j): a(l)
        for j in range(2):
            for l in norm_valu(c, j) + [norm_write(c, j)]: a(l)
    a(f"""
    s_cmp_lg_u32 s33, 0
    s_cbranch_scc1 K1_nost
    v_lshlrev_b32 v5, 3, v10
    s_mov_b32 s48, {WS_ST}
    buffer_store_dwordx2 v[{MR}:{MR+1}], v5, s[16:19], s48 offen
    buffer_store_dwordx2 v[{MR+2}:{MR+3}], v5, s[16:19], s48 offen offset:64
    K1_nost:
    """)
    stamp(a, 3)
    a(f"s_waitcnt vmcnt({vm.after(('dma', 1))}) lgkmcnt(0)\ns_barrier")
    a("s_cmp_lg_u32 s36, 0\ns_cbranch_scc1 K1_main1")
    vm0 = vm
    for wc in range(2):
        vm = vm0.copy()
        nf = 4 if wc == 0 else 3
        nrd = 4 + 2 * nf
        if wc == 1: a("K1_main1:")
        def reads(st, ks):
            ab = (st % 3) * 16384
            b = BF + ks * 24
            sl = st % 4
            so = sl * 24576 if sl < 3 else 0
            va = (VA0 if ks == 0 else VA1) if sl < 3 else VS3 + ks
            vf = VF if sl < 3 else VS3 + 2
            var = VAR0 if ks == 0 else VAR1
            o = []
            r = AFR + (ks * 2) * 4
            o.append(f"ds_read_b128 v[{r}:{r+3}], v{var} offset:{ab}")
            o.append(f"ds_read_b128 v[{b}:{b+3}], v{va} offset:{so}")
            o.append(f"ds_read_b128 v[{b+4}:{b+7}], v{va} offset:{so + 4096}")
            for p in range(nf):
                o.append(f"ds_read_b64_tr_b16 v[{b+8+4*p}:{b+9+4*p}], v{vf+p} offset:{so + ks*8192}")
                o.append(f"ds_read_b64_tr_b16 v[{b+10+4*p}:{b+11+4*p}], v{vf+p} offset:{so + ks*8192+1024}")
            o.append(f"ds_read_b128 v[{r+4}:{r+7}], v{var} offset:{ab + 2048}")
            return o
        def mfmas(ks):
            b = BF + ks * 24
            mf = []
            for Tt in range(2):
                af = AFR + (ks * 2 + Tt) * 4
                for tq in range(2):
                    ac = ACC + (tq * 2 + Tt) * 4
                    mf.append(f"v_mfma_f32_16x16x32_bf16 v[{ac}:{ac+3}], v[{af}:{af+3}], v[{b+4*tq}:{b+4*tq+3}], v[{ac}:{ac+3}]")
                for p in range(nf):
                    ac = ACC + 16 + (p * 2 + Tt) * 4
                    mf.append(f"v_mfma_f32_16x16x32_bf16 v[{ac}:{ac+3}], v[{b+8+4*p}:{b+8+4*p+3}], v[{af}:{af+3}], v[{ac}:{ac+3}]")
            return mf
        def half(mf, rd, items, dma):
            n = len(mf)
            ri = 0
            for g in range(n):
                for (gg, l) in items:
                    if gg == g - 0.5: a(l)
                a(mf[g])
                for _ in range(2):
                    if ri < len(rd): a(rd[ri]); ri += 1
                if g in dma: dma_piece(*dma[g])
                for (gg, l) in items:
                    if gg == g: a(l)
        def sched(va, g0, g1):
            k = g1 - g0 + 1
            return [(g0 + (i * k) // len(va), l) for i, l in enumerate(va)]
        for l in reads(0, 0): a(l)
        a("s_waitcnt lgkmcnt(0)")
        n = 2 * (2 + nf)
        for st in range(8):
            stamp(a, 4 + st)
            nz = st < 6
            if st == 6:
                a(f"""
                s_lshl_b32 s37, s2, 3
                s_add_u32 s37, s37, s34                 ; b
                s_cmp_ge_u32 s37, 1792
                s_cbranch_scc1 K1_now2a{wc}
                s_lshr_b32 s38, s37, 5                  ; kstep
                s_and_b32 s39, s37, 31                  ; dtile
                s_lshl_b32 s48, s38, 15
                s_lshl_b32 s49, s39, 5
                s_add_u32 s48, s48, s49
                v_lshrrev_b32 v12, 1, v2
                v_lshlrev_b32 v12, 10, v12
                v_and_b32 v13, 1, v2
                v_lshl_add_u32 v12, v13, 4, v12
                buffer_load_dwordx4 v[{W2R}:{W2R+3}], v12, s[40:43], s48 offen
                K1_now2a{wc}:
                """)
                if wc == 0:
                    a("""
                    s_and_b32 s48, s2, 1
                    s_cmp_eq_u32 s48, 0
                    s_cselect_b32 s48, s82, s84
                    s_cselect_b32 s49, s83, s85
                    """)
                    srd(a, 44, 48, 512 * 1024)
                    a(f"""
                    s_lshr_b32 s48, s2, 5                   ; ct
                    s_lshl_b32 s48, s48, 2
                    s_add_u32 s48, s48, s34
                    s_lshl_b32 s48, s48, 14
                    s_bfe_u32 s49, s2, 0x40001              ; round
                    s_lshl_b32 s49, s49, 6
                    s_add_u32 s48, s48, s49
                    v_lshlrev_b32 v12, 10, v14
                    v_lshl_add_u32 v12, v15, 4, v12
                    buffer_load_dwordx4 v[{CR}:{CR+3}], v12, s[44:47], s48 offen
                    """)
            it0 = []; it1 = []
            if nz:
                c = st + 2
                it0 += [(-0.5, l) for l in unpack(c, 0)]
                it0 += sched(norm_valu(c, 0), 3, n - 3) + [(n - 3, norm_write(c, 0))]
                it0 += [(n - 3.5, l) for l in unpack(c, 1)]
                v1 = norm_valu(c, 1)
                it0 += sched(v1[:5], n - 2 + 0, n - 1) if False else []
                it1 += sched(v1, 0, n - 5) + [(n - 5, norm_write(c, 1))]
            d0 = {}; d1 = {}
            if st == 0:
                d0 = {0: (2, 0), 2: (2, 1), 4: (2, 2), 7: (3, 0)}; d1 = {0: (3, 1), 4: (3, 2)}
            elif st <= 4:
                if wc == 0: d0 = {1: (st + 3, 0), 5: (st + 3, 1), 9: (st + 3, 2)}
                else: d0 = {7: (st + 3, 0)}; d1 = {2: (st + 3, 1), 6: (st + 3, 2)}
            half(mfmas(0), reads(st, 1), it0, d0)
            a(f"s_waitcnt lgkmcnt({1 if nz else 0})")
            half(mfmas(1), reads(st + 1, 0) if st < 7 else [], it1, d1)
            if st < 7:
                w = f"vmcnt({vm.after(('dma', st + 2))}) " if st + 2 <= 7 else ""
                a(f"s_waitcnt {w}lgkmcnt(0)\ns_barrier")
        if wc == 0: a("s_branch K1_epi")
    a("K1_epi:")
    stamp(a, 12)
    a(f"""
    s_lshl_b32 s48, s36, 4
    v_add_u32 v11, s48, v14
    v_lshlrev_b32 v12, 5, v11
    v_add_u32 v12, {K1_TABL}, v12
    ds_read_b128 v[4:7], v12
    s_lshl_b32 s48, s32, 4
    s_lshl_b32 s49, s35, 2
    s_add_u32 s48, s48, s49
    v_add_u32 v13, s48, v15
    s_mov_b32 s49, {BU_SS}
    v_mul_lo_u32 v13, v13, s49
    s_lshl_b32 s49, s33, 5
    v_add_u32 v12, s49, v11
    v_lshl_add_u32 v13, v12, 4, v13
    s_waitcnt lgkmcnt(0)
    """)
    U = 16
    for Tt in range(2):
        for r in range(4):
            i = 4 * Tt + r
            re = ACC + (0 * 2 + Tt) * 4 + r
            im = ACC + (1 * 2 + Tt) * 4 + r
            a(f"""
            v_mul_f32 v{U+2*i}, v7, v{im}
            v_mul_f32 v{U+2*i+1}, v7, v{re}
            v_fma_f32 v{U+2*i}, v6, v{re}, -v{U+2*i}
            v_fma_f32 v{U+2*i+1}, v6, v{im}, v{U+2*i+1}
            """)
    for j in range(4):
        a(f"s_mov_b32 s48, {WS_BU + j * BU_JS}")
        a(f"buffer_store_dwordx4 v[{U+4*j}:{U+4*j+3}], v13, s[16:19], s48 offen")
    E = 32
    a(f"v_mov_b32 v{E}, v{U}\nv_mov_b32 v{E+1}, v{U+1}")
    for i in range(1, 8):
        a(f"v_pk_fma_f32 v[{E+2}:{E+3}], v[{E}:{E+1}], v[4:5], v[{U+2*i}:{U+2*i+1}] op_sel_hi:[1,0,1]")
        a(f"v_pk_fma_f32 v[{E}:{E+1}], v[{E}:{E+1}], v[4:5], v[{E+2}:{E+3}] op_sel:[1,1,0] op_sel_hi:[0,1,1] neg_lo:[0,1,0]")
    a(f"""
    s_lshl_b32 s48, s35, 2
    v_add_u32 v12, s48, v15
    v_lshlrev_b32 v12, 8, v12
    v_lshl_add_u32 v12, v11, 3, v12
    v_add_u32 v12, {K1_E8}, v12
    ds_write_b64 v12, v[{E}:{E+1}]
    s_waitcnt lgkmcnt(0)
    s_barrier
    """)
    stamp(a, 13)
    a(f"""
    s_waitcnt vmcnt(4)
    s_cmp_ge_u32 s37, 1792
    s_cbranch_scc1 K1_now2b
    s_add_u32 s48, s51, {K1_SCR}
    v_lshl_add_u32 v8, v2, 4, s48
    ds_write_b128 v8, v[{W2R}:{W2R+3}]
    v_bfe_u32 v8, v2, 2, 2
    v_lshl_add_u32 v8, v15, 2, v8           ; 4g + r
    v_lshlrev_b32 v8, 5, v8
    v_and_b32 v9, 3, v2
    v_lshl_add_u32 v8, v9, 3, v8
    v_add_u32 v8, s48, v8
    ds_read_b64_tr_b16 v[{W2R}:{W2R+1}], v8
    ds_read_b64_tr_b16 v[{W2R+2}:{W2R+3}], v8 offset:512
    s_mul_i32 s48, s39, {FT}
    s_lshl_b32 s49, s38, 10
    s_add_u32 s48, s48, s49
    s_add_u32 s48, s48, {WS_W2F}
    v_lshlrev_b32 v8, 4, v2
    s_waitcnt lgkmcnt(0)
    buffer_store_dwordx4 v[{W2R}:{W2R+3}], v8, s[16:19], s48 offen
    K1_now2b:
    s_cmp_ge_u32 s34, 4
    s_cbranch_scc1 K1_noc2
    s_lshl_b32 s48, s2, 12
    s_add_u32 s48, s48, s51
    s_add_u32 s48, s48, {WS_CF}
    v_lshlrev_b32 v8, 4, v2
    buffer_store_dwordx4 v[{CR}:{CR+3}], v8, s[16:19], s48 offen
    K1_noc2:
    """)
    R = 36
    a(f"""
    s_cmp_lg_u32 s34, 7
    s_cbranch_scc1 K1_nopre
    v_and_b32 v9, 31, v2
    v_lshlrev_b32 v10, 5, v9
    v_add_u32 v10, {K1_TABL}, v10
    ds_read_b64 v[4:5], v10 offset:16
    v_lshlrev_b32 v10, 3, v9
    v_add_u32 v11, {K1_E8}, v10
    """)
    for sgm in range(16):
        a(f"ds_read_b64 v[{R+2+2*sgm}:{R+3+2*sgm}], v11 offset:{sgm*256}")
    a(f"""
    v_mov_b32 v{R}, 0
    v_mov_b32 v{R+1}, 0
    s_lshl_b32 s48, s33, 5
    v_add_u32 v9, s48, v9                   ; ch
    v_lshlrev_b32 v10, 4, v9                ; ch*16
    s_lshl_b32 s57, s32, 16
    s_add_u32 s57, s57, {WS_S8X}
    s_waitcnt lgkmcnt(0)
    """)
    for sgm in range(1, 16):
        c = R + 2 + 2 * sgm; p = c - 2
        a(f"v_pk_fma_f32 v[{c}:{c+1}], v[{p}:{p+1}], v[4:5], v[{c}:{c+1}] op_sel_hi:[1,0,1]")
        a(f"v_pk_fma_f32 v[{c}:{c+1}], v[{p}:{p+1}], v[4:5], v[{c}:{c+1}] op_sel:[1,1,0] op_sel_hi:[0,1,1] neg_lo:[0,1,0]")
    for q in range(8):
        a(f"s_add_u32 s48, s57, {q * 8192}")
        a(f"buffer_store_dwordx4 v[{R+4*q}:{R+4*q+3}], v10, s[16:19], s48 offen")
    a(f"""
    s_lshr_b32 s48, s32, 1
    s_lshl_b32 s48, s48, 13
    s_and_b32 s49, s32, 1
    s_lshl_b32 s49, s49, 3
    s_add_u32 s48, s48, s49
    s_add_u32 s48, s48, {WS_E}
    buffer_store_dwordx2 v[{R+32}:{R+33}], v10, s[16:19], s48 offen
    K1_nopre:
    """)
    a(f"""
    v_lshlrev_b32 v12, 4, v2
    s_lshl_b32 s48, s32, 2
    s_add_u32 s48, s48, s35
    s_mul_i32 s48, s48, {2 * FT}
    s_add_u32 s48, s48, {WS_H1F}
    s_mul_i32 s49, s33, 7
    s_add_u32 s58, s49, s55
    s_lshl_b32 s58, s58, 9
    s_add_u32 s58, s58, s48
    s_add_u32 s59, s49, s56
    s_lshr_b32 s60, s59, 1
    s_lshl_b32 s60, s60, 10
    s_and_b32 s59, s59, 1
    s_lshl_b32 s59, s59, 3
    s_add_u32 s59, s59, s60
    s_add_u32 s59, s59, s48
    s_add_u32 s60, s58, {FT}
    s_add_u32 s61, s59, {FT}
    s_mov_b32 s62, {f2u(-1.4426950408889634):#x}
    """)
    def silu_tile(p, Tt, dst):
        ac = ACC + 16 + (p * 2 + Tt) * 4
        tt = 80 + ((p * 2 + Tt) & 1) * 12
        a(f"""
        v_cvt_pk_bf16_f32 v{tt}, v{ac}, v{ac+1}
        v_cvt_pk_bf16_f32 v{tt+1}, v{ac+2}, v{ac+3}
        v_lshlrev_b32 v{tt+4}, 16, v{tt}
        v_and_b32 v{tt+5}, 0xffff0000, v{tt}
        v_lshlrev_b32 v{tt+6}, 16, v{tt+1}
        v_and_b32 v{tt+7}, 0xffff0000, v{tt+1}
        """)
        for r in range(4): a(f"v_mul_f32 v{tt+8+r}, s62, v{tt+4+r}")
        for r in range(4): a(f"v_exp_f32 v{tt+8+r}, v{tt+8+r}")
        for r in range(4): a(f"v_add_f32 v{tt+8+r}, 1.0, v{tt+8+r}")
        for r in range(4): a(f"v_rcp_f32 v{tt+8+r}, v{tt+8+r}")
        for r in range(4): a(f"v_mul_f32 v{tt+4+r}, v{tt+4+r}, v{tt+8+r}")
        a(f"""
        v_cvt_pk_bf16_f32 v{dst}, v{tt+4}, v{tt+5}
        v_cvt_pk_bf16_f32 v{dst+1}, v{tt+6}, v{tt+7}
        """)
    for Tt in range(2):
        o = 104 + Tt * 4
        silu_tile(0, Tt, o); silu_tile(1, Tt, o + 2)
        a(f"buffer_store_dwordx4 v[{o}:{o+3}], v12, s[16:19], s{58 + 2*Tt} offen")
    a("s_cmp_lg_u32 s36, 0\ns_cbranch_scc1 K1_sing")
    for Tt in range(2):
        o = 112 + Tt * 4
        silu_tile(2, Tt, o); silu_tile(3, Tt, o + 2)
        a(f"buffer_store_dwordx4 v[{o}:{o+3}], v12, s[16:19], s{59 + 2*Tt} offen")
    a("s_branch K1_fin\nK1_sing:")
    for Tt in range(2):
        o = 112 + Tt * 4
        silu_tile(2, Tt, o)
        a(f"buffer_store_dwordx2 v[{o}:{o+1}], v12, s[16:19], s{59 + 2*Tt} offen")
    a("K1_fin:")
    stamp(a, 14)
    if STAMP: a("s_waitcnt vmcnt(0)")
    stamp(a, 15)
    stamp_store(a, 16, 0)
    a("K1_done:")
    a("s_endpgm")

K3_XB = 131072
K3_LDS = 163840
NB = 4
ND = 5
G0 = 6

def gen_k3(a):
    SACC, CAR, LAM, BUR, H, P, TT, CF, HF = 16, 32, 64, 96, 160, 176, 192, 200, 232
    RING, FACC = 16, 176
    CE, CS, CT, CW = 176, 208, 224, 232
    VC, VBU, VPW, VTR0, VTR1, VCH, VL16 = 248, 249, 250, 251, 252, 253, 1
    a.raw(".p2align 8\nk3_kernel:")
    a("""
    s_cmp_ge_u32 s2, 256
    s_cbranch_scc1 K3_done
    s_load_dwordx2 s[72:73], s[0:1], 0      ; x
    s_load_dwordx4 s[76:79], s[0:1], 40
    s_load_dwordx2 s[80:81], s[0:1], 64     ; Dskip
    s_load_dwordx2 s[84:85], s[0:1], 96     ; out
    s_load_dwordx2 s[82:83], s[0:1], 112    ; ws
    v_lshrrev_b32 v1, 6, v0
    v_and_b32 v2, 63, v0                    ; lane
    v_readfirstlane_b32 s34, v1             ; wave
    s_and_b32 s32, s2, 7
    s_lshl_b32 s32, s32, 2
    s_bfe_u32 s88, s2, 0x20003
    s_add_u32 s32, s32, s88                 ; rt64
    s_lshr_b32 s33, s2, 5                   ; ct
    s_and_b32 s35, s34, 3                   ; w4
    s_lshr_b32 s36, s34, 2                  ; role
    s_lshr_b32 s37, s32, 1                  ; tile128
    s_and_b32 s38, s32, 1                   ; half
    v_lshlrev_b32 v3, 4, v0                 ; tid*16
    s_waitcnt lgkmcnt(0)
    """)
    stamp(a, 0)
    srd(a, 4, 82, WS_SIZE)
    for q in range(8):
        a(f"""
        s_cmp_le_u32 s37, {2*q}
        s_cbranch_scc1 K3_noE
        s_mov_b32 s88, {WS_E + q * 8192}
        buffer_load_dwordx4 v[{CE+4*q}:{CE+4*q+3}], v3, s[4:7], s88 offen
        """)
    a("K3_noE:")
    vm = Cnt()
    a(f"""
    s_mov_b32 s88, {WS_TP}
    buffer_load_dwordx4 v[{CT}:{CT+3}], v3, s[4:7], s88 offen
    s_mov_b32 s88, {WS_TP + 8192}
    buffer_load_dwordx4 v[{CT+4}:{CT+7}], v3, s[4:7], s88 offen
    s_lshl_b32 s89, s32, 15
    s_add_u32 s89, s89, {WS_S8X}
    """)
    for q in range(4):
        a(f"s_add_u32 s88, s89, {q * 8192}")
        a(f"buffer_load_dwordx4 v[{CS+4*q}:{CS+4*q+3}], v3, s[4:7], s88 offen")
    vm.issue("carry", 6)
    a("""
    s_cmp_lt_u32 s34, 4
    s_cselect_b32 s88, s76, s78
    s_cselect_b32 s89, s77, s79
    """)
    srd(a, 12, 88, 512 * 1024)
    srd(a, 16, 72, 2048 * 1024)
    srd(a, 20, 84, 2048 * 2048)
    srd(a, 24, 80, 1024)
    a(f"""
    v_and_b32 v9, 15, v2                    ; n / m
    v_lshrrev_b32 v10, 4, v2                ; g
    v_lshlrev_b32 v{VL16}, 4, v2            ; lane*16
    s_lshl_b32 s88, s33, 6
    s_lshl_b32 s89, s35, 4
    s_add_u32 s88, s88, s89
    v_add_u32 v11, s88, v9
    v_lshlrev_b32 v11, 10, v11
    v_lshl_add_u32 v{VC}, v10, 4, v11
    s_lshl_b32 s39, s34, 10                 ; (ri*4+dt)*1024
    """)
    def cdma(vm, r):
        a(f"""
        s_add_u32 m0, s39, {r * (8192 - 64)}
        buffer_load_dwordx4 v{VC}, s[12:15], 0 offen offset:{r*64} lds
        """)
        vm.issue(("c", r))
    def bu_loads(vm, r):
        b = BUR + (r % NB) * 16
        for j in range(4):
            a(f"buffer_load_dwordx4 v[{b+4*j}:{b+4*j+3}], v{VBU}, s[4:7], s{40 + j + 4 * (r >> 3)} offen offset:{(r & 7) * 512}")
        vm.issue(("bu", r), 4)
    def ffn_load(vm, ks, which):
        b = RING + (ks % ND) * 32 + which * 4
        a(f"buffer_load_dwordx4 v[{b}:{b+3}], v{VL16}, s[4:7], s{40 + which} offen offset:{(ks & 3) * 1024}")
        vm.issue(("f", ks, which))
    def scan_list(r):
        b = BUR + (r % NB) * 16; L = LAM + 2 * r
        o1 = []; o2 = []
        prev = CAR + 2 * r
        for i in range(8):
            h = H + 2 * i
            o1.append(f"v_pk_fma_f32 v[{h}:{h+1}], v[{prev}:{prev+1}], v[{L}:{L+1}], v[{b+2*i}:{b+2*i+1}] op_sel_hi:[1,0,1]")
            o1.append(f"v_pk_fma_f32 v[{h}:{h+1}], v[{prev}:{prev+1}], v[{L}:{L+1}], v[{h}:{h+1}] op_sel:[1,1,0] op_sel_hi:[0,1,1] neg_lo:[0,1,0]")
            prev = h
        for q in range(4):
            h0, h1 = H + 4 * q, H + 4 * q + 2
            t = TT + 4 * (q & 1)
            o2 += [f"v_cvt_pk_bf16_f32 v{P+q}, v{h0}, v{h1}",
                   f"v_cvt_pk_bf16_f32 v{P+8+q}, -v{h0+1}, -v{h1+1}",
                   f"v_lshlrev_b32 v{t}, 16, v{P+q}",
                   f"v_lshlrev_b32 v{t+1}, 16, v{P+8+q}",
                   f"v_and_b32 v{t+2}, 0xffff0000, v{P+q}",
                   f"v_and_b32 v{t+3}, 0xffff0000, v{P+8+q}",
                   f"v_pk_add_f32 v[{t}:{t+1}], v[{h0}:{h0+1}], v[{t}:{t+1}] neg_lo:[0,1] neg_hi:[1,1]",
                   f"v_pk_add_f32 v[{t+2}:{t+3}], v[{h1}:{h1+1}], v[{t+2}:{t+3}] neg_lo:[0,1] neg_hi:[1,1]",
                   f"v_cvt_pk_bf16_f32 v{P+4+q}, v{t}, v{t+2}",
                   f"v_cvt_pk_bf16_f32 v{P+12+q}, v{t+1}, v{t+3}"]
        w = [f"ds_write_b128 v{VPW}, v[{P+4*pl}:{P+4*pl+3}] offset:{pl * 1024}" for pl in range(4)]
        return o1, o2, w

    def carry_compute(role, vm):
        stamp(a, 1)
        a(f"s_waitcnt vmcnt({vm.after('carry')})")
        stamp(a, 2)
        a(f"v_mov_b32 v{CW}, 0\nv_mov_b32 v{CW+1}, 0")
        for i in range(15):
            a(f"s_cmp_le_u32 s37, {i}\ns_cbranch_scc1 K3_hd{role}")
            cmul_acc(a, CW + 2, CW, CT + 4, CE + 2 * i)
            a(f"v_mov_b32 v{CW}, v{CW+2}\nv_mov_b32 v{CW+1}, v{CW+3}")
        a(f"K3_hd{role}:")
        a(f"s_cmp_eq_u32 s38, 0\ns_cbranch_scc1 K3_hg{role}")
        cmul_acc(a, CW + 2, CW, CT + 2, None)
        a(f"v_mov_b32 v{CW}, v{CW+2}\nv_mov_b32 v{CW+1}, v{CW+3}")
        a(f"K3_hg{role}:")
        a(f"v_lshrrev_b32 v4, 1, v3\nv_add_u32 v4, {K3_XB}, v4")
        cur = CW
        for q in range(8):
            a(f"v_pk_add_f32 v[{CS+2*q}:{CS+2*q+1}], v[{CS+2*q}:{CS+2*q+1}], v[{cur}:{cur+1}]")
            a(f"ds_write_b64 v4, v[{CS+2*q}:{CS+2*q+1}] offset:{q*4096}")
            if q < 7:
                nxt = CW + 2 if cur == CW else CW
                cmul_acc(a, nxt, cur, CT, None)
                cur = nxt
        a("s_waitcnt lgkmcnt(0)\ns_barrier")
        stamp(a, 3)

    def epi_loads():
        a(f"""
        v_lshrrev_b32 v4, 3, v0                 ; t
        v_and_b32 v5, 7, v0                     ; cp
        s_lshl_b32 s88, s32, 6
        v_add_u32 v6, s88, v4                   ; t glob
        v_lshlrev_b32 v7, 10, v6
        s_lshl_b32 s88, s33, 7
        v_lshl_add_u32 v8, v5, 4, s88
        v_add_u32 v7, v7, v8
        v_lshlrev_b32 v6, 3, v6
        s_mov_b32 s88, {WS_ST}
        buffer_load_dwordx4 v[32:35], v7, s[16:19], 0 offen
        buffer_load_dwordx2 v[36:37], v6, s[4:7], s88 offen
        buffer_load_dwordx4 v[40:43], v8, s[24:27], 0 offen
        v_lshlrev_b32 v7, 1, v7
        """)

    a("s_cmp_lg_u32 s36, 0\ns_cbranch_scc1 K3_role1")
    vmc = vm
    vm = vmc.copy()
    a(f"""
    v_and_b32 v13, 31, v2                   ; chl
    v_lshrrev_b32 v14, 5, v2                ; sp
    s_lshl_b32 s88, s35, 1
    v_add_u32 v15, s88, v14                 ; sg
    s_lshl_b32 s88, s32, 3
    v_add_u32 v4, s88, v15
    s_mov_b32 s88, {BU_SS}
    v_mul_lo_u32 v4, v4, s88
    v_lshl_add_u32 v{VBU}, v13, 4, v4
    v_lshlrev_b32 v5, 4, v13                ; chl*16
    """)
    for j in range(8):
        a(f"s_mov_b32 s{40+j}, {WS_BU + (j & 3) * BU_JS + (j >> 2) * 4096}")
    for q in range(8):
        a(f"s_mov_b32 s88, {WS_TL + q * 512}")
        a(f"buffer_load_dwordx4 v[{LAM+4*q}:{LAM+4*q+3}], v5, s[4:7], s88 offen")
    vm.issue("lam", 8)
    bu_loads(vm, 0)
    for r in range(G0): cdma(vm, r)
    for r in range(1, NB): bu_loads(vm, r)
    a(f"""
    s_lshl_b32 s88, s35, 12
    s_add_u32 s88, s88, {K3_XB}             ; PB
    v_lshlrev_b32 v4, 2, v14
    v_xor_b32 v4, v4, v13
    v_lshlrev_b32 v4, 4, v4
    v_lshl_add_u32 v4, v14, 9, v4
    v_add_u32 v{VPW}, s88, v4
    v_bfe_u32 v4, v2, 2, 2
    v_lshl_add_u32 v4, v10, 3, v4           ; k
    v_bfe_u32 v5, v2, 1, 1                  ; c>>1
    v_lshlrev_b32 v6, 2, v5
    v_xor_b32 v4, v4, v6
    v_lshlrev_b32 v4, 4, v4
    v_lshl_add_u32 v4, v5, 9, v4
    v_and_b32 v5, 1, v2
    v_lshl_add_u32 v4, v5, 3, v4
    v_add_u32 v{VTR0}, s88, v4
    v_xor_b32 v{VTR1}, 64, v{VTR0}
    v_add_u32 v{VCH}, 65536, v{VL16}
    v_lshlrev_b32 v15, 12, v15
    v_lshl_add_u32 v15, v13, 3, v15
    v_add_u32 v15, {K3_XB}, v15
    """)
    carry_compute(0, vm)
    for r in range(16):
        a(f"ds_read_b64 v[{CAR+2*r}:{CAR+2*r+1}], v15 offset:{r*256}")
    for r in range(16): a(f"v_mov_b32 v{SACC+r}, 0")
    a(f"s_waitcnt vmcnt({vm.after(('c', G0-1))}) lgkmcnt(0)\ns_barrier")
    stamp(a, 4)
    for r in range(G0, 16): cdma(vm, r)
    o1, o2, w = scan_list(0)
    for l in o1 + o2 + w: a(l)
    for r in range(16):
        if r == G0:
            a(f"s_waitcnt vmcnt({vm.after(('c', 15))})\ns_barrier")
        if r + NB <= 15: bu_loads(vm, r + NB)
        if r == 12: epi_loads(); vm.issue("epi", 3)
        for pl in range(4):
            a(f"ds_read_b64_tr_b16 v[{HF+4*pl}:{HF+4*pl+1}], v{VTR0} offset:{pl*1024}")
            a(f"ds_read_b64_tr_b16 v[{HF+4*pl+2}:{HF+4*pl+3}], v{VTR1} offset:{pl*1024}")
        vc, off = (VL16, r * 8192) if r < 8 else (VCH, (r - 8) * 8192)
        for i in range(8):
            a(f"ds_read_b128 v[{CF+4*i}:{CF+4*i+3}], v{vc} offset:{off + i*1024}")
        mf = []
        for pl in range(4):
            for dt in range(4):
                ac = SACC + 4 * dt
                cf = CF + ((pl >> 1) * 4 + dt) * 4
                mf.append(f"v_mfma_f32_16x16x32_bf16 v[{ac}:{ac+3}], v[{cf}:{cf+3}], v[{HF+4*pl}:{HF+4*pl+3}], v[{ac}:{ac+3}]")
        if r < 15:
            o1, o2, w = scan_list(r + 1)
            a(f"s_waitcnt vmcnt({vm.after(('bu', r + 1))})")
            for l in o1: a(l)
            a("s_waitcnt lgkmcnt(0)")
            interleave(a, mf, o2)
            for l in w: a(l)
        else:
            a("s_waitcnt lgkmcnt(0)")
            for m in mf: a(m)
        stamp(a, 5 + r)
    a(f"""
    v_lshrrev_b32 v11, 1, v9
    v_and_b32 v11, 4, v11
    v_xor_b32 v11, v11, v9                  ; swz(n)
    v_xor_b32 v11, v11, v10                 ; ^ g
    s_lshl_b32 s88, s35, 12
    s_add_u32 s88, s88, {K3_XB}
    v_lshl_add_u32 v6, v9, 8, s88
    """)
    for dt in range(4):
        a(f"v_xor_b32 v8, {4*dt}, v11\nv_lshl_add_u32 v8, v8, 4, v6")
        a(f"ds_write_b128 v8, v[{SACC+4*dt}:{SACC+4*dt+3}]")
    a("s_barrier")
    a("s_waitcnt lgkmcnt(0)\ns_barrier")
    a("s_branch K3_fin")
    a("K3_role1:")
    vm = vmc.copy()
    a(f"""
    s_mul_i32 s88, s35, {14 * 1024}
    s_mul_i32 s89, s33, {4 * FT}
    s_add_u32 s89, s89, s88
    s_add_u32 s40, s89, {WS_W2F}
    s_mul_i32 s89, s32, {4 * FT}
    s_add_u32 s89, s89, s88
    s_add_u32 s44, s89, {WS_H1F}
    """)
    for i in range(1, 4):
        a(f"s_add_u32 s{40+i}, s40, {i * FT}\ns_add_u32 s{44+i}, s44, {i * FT}")
    def bump(ks):
        if ks & 3 == 0 and ks > 0:
            for i in range(8): a(f"s_add_u32 s{40+i}, s{40+i}, 4096")
    for ks in range(ND):
        bump(ks)
        for wh in range(8): ffn_load(vm, ks, wh)
        if ks == 0:
            for r in range(G0): cdma(vm, r)
    carry_compute(1, vm)
    for r in range(64): a(f"v_mov_b32 v{FACC+r}, 0")
    a(f"s_waitcnt vmcnt({vm.after(('c', G0-1))})\ns_barrier")
    stamp(a, 4)
    for r in range(G0, 16): cdma(vm, r)
    for ks in range(14):
        if ks == 5:
            a(f"s_waitcnt vmcnt({vm.after(('c', 15))})\ns_barrier")
        a(f"s_waitcnt vmcnt({vm.after(('f', ks, 7))})")
        nk = ks + ND
        if nk < 14: bump(nk)
        b = RING + (ks % ND) * 32
        for dt in range(4):
            for tt in range(4):
                ac = FACC + (dt * 4 + tt) * 4
                a(f"v_mfma_f32_16x16x32_bf16 v[{ac}:{ac+3}], v[{b+4*dt}:{b+4*dt+3}], v[{b+16+4*tt}:{b+16+4*tt+3}], v[{ac}:{ac+3}]")
            if nk < 14: ffn_load(vm, nk, dt)
        if nk < 14:
            for tt in range(4): ffn_load(vm, nk, 4 + tt)
        if ks == 10: epi_loads(); vm.issue("epi", 3)
        stamp(a, 5 + ks)
    a(f"""
    v_lshrrev_b32 v11, 2, v9
    v_and_b32 v6, 3, v9
    v_lshl_add_u32 v11, v11, 3, v6          ; t0 = 8(n>>2) + (n&3)     (tt=0)
    v_lshrrev_b32 v6, 1, v11
    v_and_b32 v6, 4, v6
    v_xor_b32 v6, v6, v11
    v_and_b32 v6, 15, v6                    ; swz(t0)
    v_xor_b32 v6, v6, v10                   ; ^ g
    s_lshl_b32 s88, s35, 14
    v_lshl_add_u32 v11, v11, 8, s88
    s_barrier
    """)
    for tq in range(2):
        for dt in range(4):
            a(f"v_xor_b32 v8, {(4 * dt) ^ (4 * tq)}, v6\nv_lshl_add_u32 v8, v8, 4, v11")
            for th in range(2):
                tt = th * 2 + tq
                ac = FACC + (dt * 4 + tt) * 4
                a(f"ds_write_b128 v8, v[{ac}:{ac+3}] offset:{th * 8192 + tq * 1024}")
    a("s_waitcnt lgkmcnt(0)\ns_barrier")
    a("K3_fin:")
    stamp(a, 21)
    a(f"""
    v_lshrrev_b32 v11, 1, v4
    v_and_b32 v11, 4, v11
    v_xor_b32 v11, v11, v4
    v_and_b32 v11, 15, v11                  ; swz(t)
    v_lshlrev_b32 v6, 1, v5
    v_xor_b32 v6, v6, v11
    v_lshlrev_b32 v6, 4, v6
    v_lshl_add_u32 v6, v4, 8, v6
    v_xor_b32 v8, 16, v6
    v_add_u32 v9, {K3_XB}, v6
    v_add_u32 v10, {K3_XB}, v8
    ds_read_b128 v[16:19], v9
    ds_read_b128 v[20:23], v10
    """)
    for W in range(4):
        a(f"ds_read_b128 v[{48+8*W}:{51+8*W}], v6 offset:{W*16384}")
        a(f"ds_read_b128 v[{52+8*W}:{55+8*W}], v8 offset:{W*16384}")
    a("s_waitcnt vmcnt(0)")
    XU, XN, DU = 88, 96, 104
    for e in range(4):
        a(f"v_lshlrev_b32 v{XU+2*e}, 16, v{32+e}\nv_and_b32 v{XU+1+2*e}, 0xffff0000, v{32+e}")
        a(f"v_lshlrev_b32 v{DU+2*e}, 16, v{40+e}\nv_and_b32 v{DU+1+2*e}, 0xffff0000, v{40+e}")
    def rnd(base):
        for e in range(4): a(f"v_cvt_pk_bf16_f32 v{80+e}, v{base+2*e}, v{base+1+2*e}")
        for e in range(4): a(f"v_lshlrev_b32 v{base+2*e}, 16, v{80+e}\nv_and_b32 v{base+1+2*e}, 0xffff0000, v{80+e}")
    for e in range(0, 8, 2):
        a(f"v_pk_add_f32 v[{XN+e}:{XN+1+e}], v[{XU+e}:{XU+1+e}], v[36:37] op_sel_hi:[1,0] neg_lo:[0,1] neg_hi:[0,1]")
    rnd(XN)
    for e in range(0, 8, 2):
        a(f"v_pk_mul_f32 v[{XN+e}:{XN+1+e}], v[{XN+e}:{XN+1+e}], v[36:37] op_sel:[0,1] op_sel_hi:[1,1]")
    rnd(XN)
    for e in range(0, 8, 2): a(f"v_pk_mul_f32 v[{XN+e}:{XN+1+e}], v[{XN+e}:{XN+1+e}], v[{DU+e}:{DU+1+e}]")
    rnd(XN)
    a("s_waitcnt lgkmcnt(0)")
    base = 48
    for e in range(0, 8, 2):
        a(f"v_pk_add_f32 v[{base+e}:{base+e+1}], v[{base+e}:{base+e+1}], v[{base+8+e}:{base+9+e}]")
        a(f"v_pk_add_f32 v[{base+16+e}:{base+17+e}], v[{base+16+e}:{base+17+e}], v[{base+24+e}:{base+25+e}]")
    for e in range(0, 8, 2):
        a(f"v_pk_add_f32 v[{base+e}:{base+e+1}], v[{base+e}:{base+e+1}], v[{base+16+e}:{base+17+e}]")
    a(f"s_mov_b32 s92, {f2u(-1.4426950408889634):#x}")
    rnd(48)
    for e in range(8): a(f"v_mul_f32 v{56+e}, s92, v{48+e}")
    for e in range(8): a(f"v_exp_f32 v{56+e}, v{56+e}")
    for e in range(8): a(f"v_add_f32 v{56+e}, 1.0, v{56+e}")
    for e in range(8): a(f"v_rcp_f32 v{56+e}, v{56+e}")
    for e in range(8): a(f"v_mul_f32 v{48+e}, v{48+e}, v{56+e}")
    rnd(48)
    for e in range(8): a(f"v_fma_f32 v{16+e}, v{16+e}, 2.0, v{XN+e}")
    for e in range(8): a(f"v_mul_f32 v{16+e}, v{16+e}, v{48+e}")
    for e in range(8): a(f"v_add_f32 v{16+e}, v{16+e}, v{XU+e}")
    a("""
    buffer_store_dwordx4 v[16:19], v7, s[20:23], 0 offen
    buffer_store_dwordx4 v[20:23], v7, s[20:23], 0 offen offset:16
    """)
    if STAMP: a("s_waitcnt vmcnt(0)")
    stamp(a, 22)
    stamp_store(a, 4, 1)
    a("K3_done:\ns_endpgm")

HEADER = open("recurrent_scan__ssm_conv_s5__dense_activation_silu__prompt.s.ref").read().split("; Override launch")[0]

def build(kernels):
    a = Asm()
    launches = []
    if "k1" in kernels: launches.append(f"; @launch kernel=k1_kernel grid=(256,1,1) block=(512,1,1) lds={K1_LDS}")
    if "k3" in kernels: launches.append(f"; @launch kernel=k3_kernel grid=(256,1,1) block=(512,1,1) lds={K3_LDS}")
    a.raw(HEADER.rstrip("\n"))
    for l in launches: a.raw(l)
    a.raw('.amdgcn_target "amdgcn-amd-amdhsa--gfx950"\n.text')
    if "k1" in kernels: gen_k1(a)
    if "k3" in kernels: gen_k3(a)
    a.raw('.section .rodata,"a"\n.p2align 6')
    if "k1" in kernels: a.raw(kd("k1_kernel", 256))
    if "k3" in kernels: a.raw(".p2align 6\n" + kd("k3_kernel", 256))
    return a.text()

if __name__ == "__main__":
    ks = sys.argv[2].split(",") if len(sys.argv) > 2 else ["k1", "k3"]
    STAMP = "stamp" in ks
    open(sys.argv[1], "w").write(build(ks))
```

```python
import sys, struct
sys.path.insert(0, "dev")
from asmlib import Asm, kd

import os
PAD = int(os.environ.get("PAD", "0"))
ROT = int(os.environ.get("ROT", "1"))
MAP = int(os.environ.get("MAP", "1"))
BU_JS = 8192 + 512 * PAD
BU_SS = 4 * BU_JS + 256 * PAD
FT = 56 * 1024 + 256 * PAD
WS_BU  = 0
WS_H1F = 10 << 20
WS_W2F = 18 << 20
WS_S8X = 20 << 20
WS_E   = 21 << 20
WS_TP  = (21 << 20) + (64 << 10)
WS_TL  = (21 << 20) + (128 << 10)
WS_ST  = (21 << 20) + (192 << 10)
WS_CF  = 22 << 20
WS_FL  = 23 << 20
WS_DBG = 24 << 20
WS_SIZE = 28 << 20
STAMP = False

def stamp(a, i):
    if not STAMP: return
    a(f"""
    s_memtime s[96:97]
    s_waitcnt lgkmcnt(0)
    v_writelane_b32 v255, s96, {i}
    """)

def rstamp(a, i):
    if not STAMP: return
    a(f"""
    s_memrealtime s[96:97]
    s_waitcnt lgkmcnt(0)
    v_writelane_b32 v255, s96, {i}
    """)

def stamp_store(a, srd, k):
    if not STAMP: return
    rstamp(a, 63)
    a(f"""
    s_mov_b64 exec, -1
    v_and_b32 v254, 63, v0
    v_lshlrev_b32 v254, 2, v254
    s_lshl_b32 s96, s2, 3
    s_add_u32 s96, s96, s34
    s_lshl_b32 s96, s96, 8
    s_add_u32 s96, s96, {WS_DBG + k * (1 << 20)}
    buffer_store_dword v255, v254, s[{srd}:{srd+3}], s96 offen
    """)

def srd(a, d, base, nbytes):
    a(f"""
    s_mov_b32 s{d}, s{base}
    s_and_b32 s{d+1}, s{base+1}, 0xffff
    s_mov_b32 s{d+2}, {nbytes}
    s_mov_b32 s{d+3}, 0x00020000
    """)

def f2u(x):
    return struct.unpack("<I", struct.pack("<f", x))[0]

def cplx_sq(a, d, s, t):
    a(f"""
    v_mul_f32 v{t}, v{s+1}, v{s+1}
    v_mul_f32 v{d+1}, v{s}, v{s+1}
    v_fma_f32 v{d}, v{s}, v{s}, -v{t}
    v_add_f32 v{d+1}, v{d+1}, v{d+1}
    """)

def cmul_acc(a, d, x, m, add):
    if add is None:
        a(f"v_pk_mul_f32 v[{d}:{d+1}], v[{x}:{x+1}], v[{m}:{m+1}] op_sel_hi:[1,0]")
    else:
        a(f"v_pk_fma_f32 v[{d}:{d+1}], v[{x}:{x+1}], v[{m}:{m+1}], v[{add}:{add+1}] op_sel_hi:[1,0,1]")
    a(f"v_pk_fma_f32 v[{d}:{d+1}], v[{x}:{x+1}], v[{m}:{m+1}], v[{d}:{d+1}] op_sel:[1,1,0] op_sel_hi:[0,1,1] neg_lo:[0,1,0]")

class Cnt:
    def __init__(self): self.n = 0; self.tags = {}
    def issue(self, tag=None, k=1):
        self.n += k
        if tag is not None: self.tags[tag] = self.n
    def after(self, tag): return self.n - self.tags[tag]
    def copy(self):
        c = Cnt(); c.n = self.n; c.tags = dict(self.tags); return c

def interleave(a, main, fill, lead=0):
    k = 0
    for l in fill[:lead]: a(l)
    k = lead
    n = len(main)
    rest = len(fill) - k
    for i, m in enumerate(main):
        a(m)
        tgt = lead + (rest * (i + 1)) // n
        while k < tgt:
            a(fill[k]); k += 1

K1_BS = [49152 + i * 24576 for i in range(4)]
K1_TABL = 147456
K1_E8 = 148480
K1_SCR = 152576
K1_LDS = 160768

def gen_k1(a):
    X, MR, TM, AFR, BF, ACC = 16, 80, 84, 108, 124, 172
    VB, VW, VA0, VA1, VF = 220, 221, 222, 223, 224
    VAW0, VAW1, VAR0, VAR1 = 228, 229, 230, 231
    NM = 100
    VS3 = 240
    SELR = 246
    vm = Cnt()
    a.raw(".p2align 8\nk1_kernel:")
    a("""
    s_cmp_ge_u32 s2, 256
    s_cbranch_scc1 K1_done
    """)
    rstamp(a, 62)
    stamp(a, 30)
    a("""
    s_load_dwordx4 s[72:75], s[0:1], 0      ; x, Lre
    s_load_dwordx4 s[76:79], s[0:1], 16
    s_load_dwordx4 s[80:83], s[0:1], 32
    s_load_dwordx4 s[84:87], s[0:1], 48
    s_load_dwordx4 s[88:91], s[0:1], 80     ; w1, w2
    s_load_dwordx2 s[92:93], s[0:1], 112    ; ws
    v_lshrrev_b32 v1, 6, v0
    v_and_b32 v2, 63, v0                    ; lane
    v_readfirstlane_b32 s34, v1             ; wave
    """)
    if MAP == 0:
        a("""
        s_and_b32 s32, s2, 7
        s_lshl_b32 s32, s32, 1
        s_bfe_u32 s48, s2, 0x10003
        s_add_u32 s32, s32, s48                 ; rt
        s_lshr_b32 s33, s2, 4                   ; cg
        """)
    elif MAP == 1:
        a("""
        s_bfe_u32 s32, s2, 0x20001
        s_lshl_b32 s32, s32, 2
        s_bfe_u32 s48, s2, 0x20003
        s_add_u32 s32, s32, s48
        s_and_b32 s33, s2, 1
        s_lshl_b32 s33, s33, 3
        s_lshr_b32 s48, s2, 5
        s_add_u32 s33, s33, s48
        """)
    else:
        a("""
        s_bfe_u32 s32, s2, 0x10002
        s_lshl_b32 s32, s32, 3
        s_bfe_u32 s48, s2, 0x30003
        s_add_u32 s32, s32, s48
        s_and_b32 s33, s2, 3
        s_lshl_b32 s33, s33, 2
        s_lshr_b32 s48, s2, 6
        s_add_u32 s33, s33, s48
        """)
    a("""
    s_and_b32 s35, s34, 3                   ; wrow
    s_lshr_b32 s36, s34, 2                  ; wcol
    s_lshl_b32 s48, s32, 7
    s_lshl_b32 s49, s34, 4
    s_add_u32 s48, s48, s49
    v_lshrrev_b32 v8, 3, v2                 ; r
    v_and_b32 v9, 7, v2                     ; p
    v_add_u32 v10, s48, v8                  ; row (j=0)
    v_lshlrev_b32 v3, 10, v10
    v_lshl_add_u32 v3, v9, 4, v3
    v_add_u32 v1, 8192, v3
    """)
    if MAP == 0: a("s_and_b32 s48, s32, 1\ns_lshl_b32 s48, s48, 2\ns_add_u32 s50, s33, s48")
    elif MAP == 1: a("s_and_b32 s48, s32, 3\ns_lshl_b32 s48, s48, 1\ns_add_u32 s50, s33, s48")
    else: a("s_lshl_b32 s48, s33, 1\ns_add_u32 s50, s32, s48")
    a("""
    """)
    for pos in range(8):
        if ROT:
            a(f"s_add_u32 s48, s50, {pos}\ns_and_b32 s48, s48, 7\ns_lshl_b32 s{64+pos}, s48, 7")
        else:
            a(f"s_movk_i32 s{64+pos}, {pos*128}")
    a(f"""
    v_lshrrev_b32 v12, 3, v2
    s_lshl_b32 s48, s34, 3
    v_add_u32 v12, s48, v12                 ; row 0..63
    v_bfe_u32 v13, v12, 1, 3                ; key
    v_xor_b32 v13, v13, v9                  ; chunk
    v_and_b32 v12, 31, v12
    s_lshl_b32 s48, s33, 5
    v_add_u32 v12, s48, v12                 ; p
    v_lshlrev_b32 v12, 10, v12
    v_lshl_add_u32 v{VB}, v13, 4, v12
    v_lshrrev_b32 v12, 4, v2                ; l>>4  (0..3)
    s_and_b32 s48, s34, 1
    s_lshl_b32 s48, s48, 2
    v_or_b32 v13, s48, v12                  ; s(k)
    v_bfe_u32 v14, v2, 1, 3                 ; pair'
    v_xor_b32 v13, v13, v14                 ; pair
    v_lshlrev_b32 v13, 5, v13
    v_and_b32 v14, 1, v2
    v_lshl_add_u32 v13, v14, 4, v13
    s_lshl_b32 s48, s34, 3
    v_add_u32 v12, s48, v12                 ; k local (j=0)
    s_movk_i32 s49, 3584
    v_mul_lo_u32 v12, v12, s49
    s_mul_i32 s48, s33, 224
    v_add3_u32 v{VW}, v12, v13, s48
    s_lshl_b32 s51, s34, 10                 ; wave*1024
    s_lshl_b32 s52, s34, 11                 ; wave*2048
    """)
    if STAMP: a("s_memtime s[98:99]")
    a("s_waitcnt lgkmcnt(0)")
    if STAMP: a("v_writelane_b32 v255, s98, 31")
    stamp(a, 0)
    srd(a, 4, 72, 2048 * 1024)
    def xload(c):
        for j in range(2):
            r = X + (c * 2 + j) * 4
            a(f"buffer_load_dwordx4 v[{r}:{r+3}], v{3 if j == 0 else 1}, s[4:7], s{64+c} offen")
            vm.issue(("x", c))
    srd(a, 16, 92, WS_SIZE)
    a("s_cmp_lg_u32 s34, 0\ns_cbranch_scc1 K1_nopar")
    srd(a, 20, 74, 1024)
    srd(a, 24, 76, 1024)
    srd(a, 28, 86, 1024)
    a("""
    v_and_b32 v4, 31, v2
    s_lshl_b32 s48, s33, 5
    v_add_u32 v4, s48, v4                   ; channel
    v_lshlrev_b32 v5, 1, v4
    buffer_load_ushort v6, v5, s[20:23], 0 offen
    buffer_load_ushort v7, v5, s[24:27], 0 offen
    buffer_load_ushort v11, v5, s[28:31], 0 offen
    K1_nopar:
    """)
    vm.tags["par"] = vm.n
    a("""
    s_cmp_lt_u32 s34, 4
    s_cselect_b32 s48, s78, s80
    s_cselect_b32 s49, s79, s81
    """)
    srd(a, 8, 48, 512 * 1024)
    srd(a, 12, 88, 512 * 3584)
    srd(a, 40, 90, 1792 * 1024)
    W2R = 232
    CR = 236
    a(f"""
    s_cmp_eq_u32 s34, 0
    s_cbranch_scc1 K1_nopt
    s_lshl_b32 s48, s33, 15
    s_and_b32 s49, s34, 3
    s_cmp_eq_u32 s49, 1
    s_cbranch_scc0 K1_pt2
    buffer_load_dword v252, off, s[8:11], s48
    s_branch K1_nopt
    K1_pt2:
    s_cmp_eq_u32 s34, 2
    s_cbranch_scc0 K1_pt3
    buffer_load_dword v252, off, s[12:15], 0
    buffer_load_dword v252, off, s[40:43], 0
    s_branch K1_nopt
    K1_pt3:
    s_cmp_eq_u32 s34, 3
    s_cbranch_scc0 K1_pt4
    s_mul_i32 s48, s32, {16 * BU_SS}
    buffer_load_dword v252, off, s[16:19], s48
    s_mul_i32 s48, s32, {8 * FT}
    s_add_u32 s48, s48, {WS_H1F}
    buffer_load_dword v252, off, s[16:19], s48
    s_add_u32 s48, s48, {8 * FT - 64}
    buffer_load_dword v252, off, s[16:19], s48
    s_branch K1_nopt
    K1_pt4:
    s_cmp_eq_u32 s34, 4
    s_cbranch_scc0 K1_nopt
    s_mov_b32 s48, {WS_W2F}
    buffer_load_dword v252, off, s[16:19], s48
    s_mov_b32 s48, {WS_CF}
    buffer_load_dword v252, off, s[16:19], s48
    s_mov_b32 s48, {WS_S8X}
    buffer_load_dword v252, off, s[16:19], s48
    K1_nopt:
    """)
    def dma_piece(st, i):
        base = K1_BS[st % 4]
        if i == 0:
            a(f"""
            s_add_u32 m0, s51, {base}
            s_mul_i32 s49, s{64+st}, 1792
            buffer_load_dwordx4 v{VB}, s[8:11], s{64+st} offen lds
            """)
        elif i == 1:
            a(f"""
            s_add_u32 m0, s52, {base + 8192}
            s_add_u32 s63, s49, {4 * 3584}
            buffer_load_dwordx4 v{VW}, s[12:15], s49 offen lds
            """)
        else:
            a(f"""
            s_add_u32 m0, s52, {base + 8192 + 1024}
            s_nop 0
            buffer_load_dwordx4 v{VW}, s[12:15], s63 offen lds
            """)
        vm.issue(("dma", st), 1)
    def dma_stage(st):
        for i in range(3): dma_piece(st, i)
    for c in range(8): xload(c)
    stamp(a, 16)

    a(f"""
    s_and_b32 s48, s34, 1
    s_lshl_b32 s48, s48, 3
    v_and_b32 v12, 3, v8
    v_add_u32 v12, s48, v12                 ; m (j=0)
    v_xor_b32 v12, v12, v9                  ; m ^ p
    v_lshlrev_b32 v12, 4, v12
    v_and_b32 v13, 3, v9                    ; g
    v_lshl_add_u32 v12, v13, 8, v12
    v_lshrrev_b32 v13, 2, v9                ; ks
    v_lshl_add_u32 v12, v13, 10, v12
    v_bfe_u32 v13, v8, 2, 1                 ; T
    v_lshl_add_u32 v12, v13, 11, v12
    s_lshr_b32 s48, s34, 1
    s_lshl_b32 s48, s48, 12
    v_add_u32 v{VAW0}, s48, v12
    v_xor_b32 v{VAW1}, 64, v{VAW0}
    v_and_b32 v14, 15, v2                   ; m / n
    v_lshrrev_b32 v15, 4, v2                ; g
    v_xor_b32 v12, v14, v15
    v_lshlrev_b32 v12, 4, v12
    v_lshl_add_u32 v12, v15, 8, v12
    s_lshl_b32 s48, s35, 12
    v_add_u32 v{VAR0}, s48, v12
    v_xor_b32 v12, 64, v{VAR0}
    v_add_u32 v{VAR1}, 1024, v12
    v_bfe_u32 v12, v14, 1, 3                ; key = (n>>1)&7
    v_xor_b32 v12, v12, v15
    s_lshl_b32 s48, s36, 4
    v_add_u32 v13, s48, v14
    v_lshlrev_b32 v13, 7, v13
    v_add_u32 v13, {K1_BS[0]}, v13
    v_lshl_add_u32 v{VA0}, v12, 4, v13
    v_xor_b32 v12, 4, v12
    v_lshl_add_u32 v{VA1}, v12, 4, v13
    v_bfe_u32 v12, v2, 2, 2                 ; r
    v_and_b32 v13, 1, v15
    v_lshl_or_b32 v13, v13, 2, v12          ; sw
    v_lshl_add_u32 v12, v15, 3, v12         ; 8g + r
    v_lshlrev_b32 v12, 8, v12
    v_and_b32 v5, 3, v2
    v_lshl_add_u32 v12, v5, 3, v12          ; + c*8
    v_add_u32 v12, {K1_BS[0] + 8192}, v12
    s_and_b32 s54, s33, 1                   ; par
    s_lshl_b32 s55, s36, 2
    s_add_u32 s55, s55, s54
    s_add_u32 s56, s55, 2
    s_cmp_lg_u32 s54, 0
    s_cselect_b32 s48, 0, 6
    s_cmp_lg_u32 s36, 0
    s_cselect_b32 s56, s48, s56
    """)
    for p, sreg in ((0, "s55"), (1, None), (2, "s56"), (3, None)):
        if sreg is None:
            a(f"s_add_u32 s48, s55, {p}")
            sreg = "s48"
        a(f"v_xor_b32 v5, {sreg}, v13\nv_lshl_add_u32 v{VF+p}, v5, 5, v12")
    T0 = 124
    def t(i): return T0 + i
    a("s_cmp_lg_u32 s34, 0\ns_cbranch_scc1 K1_notab")
    a(f"""
    s_waitcnt vmcnt({vm.after('par')})
    v_lshlrev_b32 v{t(0)}, 16, v6               ; Lre
    v_lshlrev_b32 v{t(1)}, 16, v7               ; Lim
    v_lshlrev_b32 v{t(2)}, 16, v11              ; log_dt
    v_mul_f32 v{t(2)}, {f2u(1.4426950408889634):#x}, v{t(2)}
    v_exp_f32 v{t(2)}, v{t(2)}
    v_cvt_pk_bf16_f32 v{t(2)}, v{t(2)}, v{t(2)}
    v_lshlrev_b32 v{t(2)}, 16, v{t(2)}
    v_mul_f32 v{t(3)}, v{t(2)}, v{t(0)}                 ; a
    v_mul_f32 v{t(4)}, v{t(2)}, v{t(1)}                 ; b
    v_mul_f32 v{t(3)}, {f2u(1.4426950408889634):#x}, v{t(3)}
    v_exp_f32 v{t(3)}, v{t(3)}                      ; e^a
    v_mul_f32 v{t(5)}, {f2u(0.6366197723675814):#x}, v{t(4)}
    v_rndne_f32 v{t(5)}, v{t(5)}                    ; n
    v_mov_b32 v{t(6)}, {f2u(1.5703125):#x}
    v_fma_f32 v{t(4)}, -v{t(5)}, v{t(6)}, v{t(4)}
    v_mov_b32 v{t(6)}, {f2u(4.837512969970703125e-4):#x}
    v_fma_f32 v{t(4)}, -v{t(5)}, v{t(6)}, v{t(4)}
    v_mov_b32 v{t(6)}, {f2u(7.54978995489188216e-8):#x}
    v_fma_f32 v{t(4)}, -v{t(5)}, v{t(6)}, v{t(4)}           ; r
    v_cvt_i32_f32 v{t(5)}, v{t(5)}                  ; q
    v_mul_f32 v{t(6)}, v{t(4)}, v{t(4)}                 ; z
    v_mov_b32 v{t(7)}, {f2u(-1.9515295891e-4):#x}
    v_mov_b32 v{t(8)}, {f2u(8.3321608736e-3):#x}
    v_fma_f32 v{t(7)}, v{t(7)}, v{t(6)}, v{t(8)}
    v_mov_b32 v{t(8)}, {f2u(-1.6666654611e-1):#x}
    v_fma_f32 v{t(7)}, v{t(7)}, v{t(6)}, v{t(8)}
    v_mul_f32 v{t(7)}, v{t(7)}, v{t(6)}
    v_fma_f32 v{t(7)}, v{t(7)}, v{t(4)}, v{t(4)}            ; sin r
    v_mov_b32 v{t(8)}, {f2u(2.443315711809948e-5):#x}
    v_mov_b32 v{t(9)}, {f2u(-1.388731625493765e-3):#x}
    v_fma_f32 v{t(8)}, v{t(8)}, v{t(6)}, v{t(9)}
    v_mov_b32 v{t(9)}, {f2u(4.166664568298827e-2):#x}
    v_fma_f32 v{t(8)}, v{t(8)}, v{t(6)}, v{t(9)}
    v_mul_f32 v{t(8)}, v{t(8)}, v{t(6)}
    v_fma_f32 v{t(8)}, v{t(8)}, v{t(6)}, 1.0
    v_fma_f32 v{t(8)}, v{t(6)}, -0.5, v{t(8)}           ; cos r
    v_and_b32 v{t(9)}, 1, v{t(5)}
    v_cmp_eq_u32 vcc, 1, v{t(9)}
    v_cndmask_b32 v{t(10)}, v{t(7)}, v{t(8)}, vcc
    v_cndmask_b32 v{t(11)}, v{t(8)}, v{t(7)}, vcc
    v_lshlrev_b32 v{t(9)}, 30, v{t(5)}
    v_and_b32 v{t(9)}, 0x80000000, v{t(9)}
    v_xor_b32 v{t(10)}, v{t(10)}, v{t(9)}                 ; sin b
    v_add_u32 v{t(9)}, 1, v{t(5)}
    v_lshlrev_b32 v{t(9)}, 30, v{t(9)}
    v_and_b32 v{t(9)}, 0x80000000, v{t(9)}
    v_xor_b32 v{t(11)}, v{t(11)}, v{t(9)}                 ; cos b
    v_mul_f32 v{t(12)}, v{t(3)}, v{t(11)}
    v_mul_f32 v{t(13)}, v{t(3)}, v{t(10)}
    v_add_f32 v{t(4)}, -1.0, v{t(12)}                ; Lr-1
    v_mul_f32 v{t(5)}, v{t(13)}, v{t(1)}
    v_fma_f32 v{t(5)}, v{t(4)}, v{t(0)}, v{t(5)}
    v_mul_f32 v{t(6)}, v{t(4)}, v{t(1)}
    v_fma_f32 v{t(6)}, v{t(13)}, v{t(0)}, -v{t(6)}
    v_mul_f32 v{t(7)}, v{t(1)}, v{t(1)}
    v_fma_f32 v{t(7)}, v{t(0)}, v{t(0)}, v{t(7)}            ; den
    v_rcp_f32 v{t(8)}, v{t(7)}
    v_fma_f32 v{t(9)}, -v{t(7)}, v{t(8)}, 2.0
    v_mul_f32 v{t(8)}, v{t(8)}, v{t(9)}
    v_mul_f32 v{t(14)}, v{t(5)}, v{t(8)}
    v_mul_f32 v{t(15)}, v{t(6)}, v{t(8)}
    """)
    cplx_sq(a, t(18), t(12), t(4))
    cplx_sq(a, t(20), t(18), t(4))
    cplx_sq(a, t(16), t(20), t(4))
    cplx_sq(a, t(18), t(16), t(4))
    cplx_sq(a, t(20), t(18), t(4))
    cplx_sq(a, t(18), t(20), t(4))
    cplx_sq(a, t(20), t(18), t(4))
    a(f"""
    v_mov_b32 v{t(22)}, v{t(12)}
    v_mov_b32 v{t(23)}, v{t(13)}
    v_and_b32 v{t(4)}, 31, v2
    v_lshlrev_b32 v{t(5)}, 5, v{t(4)}
    v_add_u32 v{t(5)}, {K1_TABL}, v{t(5)}
    ds_write_b128 v{t(5)}, v[{t(12)}:{t(15)}]
    ds_write_b64 v{t(5)}, v[{t(16)}:{t(17)}] offset:16
    s_cmp_lg_u32 s32, 0
    s_cbranch_scc1 K1_notab
    v_lshlrev_b32 v{t(5)}, 4, v4                    ; ch*16
    s_mov_b32 s48, {WS_TP}
    buffer_store_dwordx4 v[{t(16)}:{t(19)}], v{t(5)}, s[16:19], s48 offen
    s_mov_b32 s48, {WS_TP + 8192}
    buffer_store_dwordx4 v[{t(20)}:{t(23)}], v{t(5)}, s[16:19], s48 offen
    s_lshr_b32 s48, s33, 1
    s_lshl_b32 s48, s48, 9
    s_and_b32 s49, s33, 1
    s_lshl_b32 s49, s49, 3
    s_add_u32 s48, s48, s49
    s_add_u32 s48, s48, {WS_TL}
    v_lshlrev_b32 v{t(5)}, 4, v{t(4)}                ; chl*16
    buffer_store_dwordx2 v[{t(12)}:{t(13)}], v{t(5)}, s[16:19], s48 offen
    K1_notab:
    """)
    a(f"""
    v_lshrrev_b32 v5, 2, v14                ; m>>2
    v_cmp_eq_u32 vcc, v5, v15
    v_and_b32 v5, 1, v14
    v_lshlrev_b32 v5, 4, v5
    v_mov_b32 v6, 0x3f80
    v_lshlrev_b32 v5, v5, v6
    v_cndmask_b32 v5, 0, v5, vcc
    v_and_b32 v6, 2, v14
    v_cmp_eq_u32 vcc, 0, v6
    v_cndmask_b32 v{SELR+2}, 0, v5, vcc
    v_cndmask_b32 v{SELR+3}, v5, 0, vcc
    v_mov_b32 v{SELR}, 0
    v_mov_b32 v{SELR+1}, 0
    v_mov_b32 v{SELR+4}, 0
    v_mov_b32 v{SELR+5}, 0
    """)
    for i, r in enumerate([VA0, VA1] + [VF + p for p in range(4)]):
        a(f"v_add_u32 v{VS3+i}, {3 * 24576}, v{r}")
    for r in range(48): a(f"v_mov_b32 v{ACC+r}, 0")
    stamp(a, 1)
    S1, S2 = TM, TM + 4
    a("s_mov_b32 s53, 0x3f803f80")
    for c in range(8):
        a(f"s_waitcnt vmcnt({vm.after(('x', c))})")
        stamp(a, 20 + c)
        if c in (4, 6): dma_stage((c - 4) // 2)
        for d in range(4):
            for j in range(2):
                x = X + (c * 2 + j) * 4 + d
                s1 = S1 + j * 2 + (d & 1); s2 = S2 + j * 2 + (d & 1)
                first = (c == 0 and d < 2)
                a(f"v_dot2_f32_bf16 v{s1}, v{x}, s53, {'0' if first else 'v%d' % s1}")
                a(f"v_dot2_f32_bf16 v{s2}, v{x}, v{x}, {'0' if first else 'v%d' % s2}")

    stamp(a, 2)
    Q = TM + 8
    for j in range(2):
        a(f"v_add_f32 v{Q+j}, v{S1+2*j}, v{S1+2*j+1}")
        a(f"v_add_f32 v{Q+2+j}, v{S2+2*j}, v{S2+2*j+1}")
    for mod in ("quad_perm:[1,0,3,2]", "quad_perm:[2,3,0,1]", "row_half_mirror"):
        for i in range(4):
            a(f"v_add_f32_dpp v{Q+i}, v{Q+i}, v{Q+i} {mod} row_mask:0xf bank_mask:0xf")
    for i in range(4): a(f"v_mul_f32 v{Q+i}, {f2u(1/512):#x}, v{Q+i}")
    for j in range(2): a(f"v_fma_f32 v{Q+2+j}, -v{Q+j}, v{Q+j}, v{Q+2+j}")
    for j in range(2): a(f"v_max_f32 v{Q+2+j}, 0, v{Q+2+j}")
    for j in range(2): a(f"v_cvt_pk_bf16_f32 v{Q+4+j}, v{Q+j}, v{Q+2+j}")
    for j in range(2):
        a(f"v_lshlrev_b32 v{MR+2*j}, 16, v{Q+4+j}")
        a(f"v_and_b32 v{Q+2+j}, 0xffff0000, v{Q+4+j}")
    for j in range(2): a(f"v_add_f32 v{Q+2+j}, {f2u(1e-5):#x}, v{Q+2+j}")
    for j in range(2): a(f"v_cvt_pk_bf16_f32 v{Q+2+j}, v{Q+2+j}, v{Q+2+j}")
    for j in range(2): a(f"v_lshlrev_b32 v{Q+2+j}, 16, v{Q+2+j}")
    for j in range(2): a(f"v_sqrt_f32 v{Q+2+j}, v{Q+2+j}")
    for j in range(2): a(f"v_cvt_pk_bf16_f32 v{Q+2+j}, v{Q+2+j}, v{Q+2+j}")
    for j in range(2): a(f"v_lshlrev_b32 v{Q+2+j}, 16, v{Q+2+j}")
    for j in range(2): a(f"v_rcp_f32 v{Q+4+j}, v{Q+2+j}")
    for j in range(2): a(f"v_fma_f32 v{Q+6+j}, -v{Q+2+j}, v{Q+4+j}, 2.0")
    for j in range(2): a(f"v_mul_f32 v{MR+2*j+1}, v{Q+4+j}, v{Q+6+j}")
    def unpack(c, j):
        x0 = X + (c * 2 + j) * 4
        T = TM + 8 * j
        nm = NM + 4 * j
        return [f"v_mfma_f32_16x16x32_bf16 v[{T}:{T+3}], v[{SELR+2}:{SELR+5}], v[{x0}:{x0+3}], v[{nm}:{nm+3}]",
                f"v_mfma_f32_16x16x32_bf16 v[{T+4}:{T+7}], v[{SELR}:{SELR+3}], v[{x0}:{x0+3}], v[{nm}:{nm+3}]"]
    def norm_valu(c, j):
        x0 = X + (c * 2 + j) * 4
        T = TM + 8 * j
        o = []
        for e in range(8): o.append(f"v_cvt_pk_bf16_f32 v{T+e}, 0, v{T+e}")
        for e in range(8): o.append(f"v_mul_f32 v{T+e}, v{T+e}, v{MR+2*j+1}")
        for d in range(4): o.append(f"v_cvt_pk_bf16_f32 v{x0+d}, v{T+2*d}, v{T+2*d+1}")
        return o
    def norm_write(c, j):
        return f"ds_write_b128 v{VAW0 if j == 0 else VAW1}, v[{X+(c*2+j)*4}:{X+(c*2+j)*4+3}] offset:{(c % 3) * 16384}"
    for j in range(2):
        for r in range(4): a(f"v_xor_b32 v{NM+4*j+r}, 0x80000000, v{MR+2*j}")
    for c in range(2):
        for j in range(2):
            for l in unpack(c, j): a(l)
        for j in range(2):
            for l in norm_valu(c, j) + [norm_write(c, j)]: a(l)
    a(f"""
    s_cmp_lg_u32 s33, 0
    s_cbranch_scc1 K1_nost
    v_lshlrev_b32 v5, 3, v10
    s_mov_b32 s48, {WS_ST}
    buffer_store_dwordx2 v[{MR}:{MR+1}], v5, s[16:19], s48 offen
    buffer_store_dwordx2 v[{MR+2}:{MR+3}], v5, s[16:19], s48 offen offset:64
    K1_nost:
    """)
    stamp(a, 3)
    a(f"s_waitcnt vmcnt({vm.after(('dma', 1))}) lgkmcnt(0)\ns_barrier")
    a("s_cmp_lg_u32 s36, 0\ns_cbranch_scc1 K1_main1")
    vm0 = vm
    for wc in range(2):
        vm = vm0.copy()
        nf = 4 if wc == 0 else 3
        nrd = 4 + 2 * nf
        if wc == 1: a("K1_main1:")
        def reads(st, ks):
            ab = (st % 3) * 16384
            b = BF + ks * 24
            sl = st % 4
            so = sl * 24576 if sl < 3 else 0
            va = (VA0 if ks == 0 else VA1) if sl < 3 else VS3 + ks
            vf = VF if sl < 3 else VS3 + 2
            var = VAR0 if ks == 0 else VAR1
            o = []
            r = AFR + (ks * 2) * 4
            o.append(f"ds_read_b128 v[{r}:{r+3}], v{var} offset:{ab}")
            o.append(f"ds_read_b128 v[{b}:{b+3}], v{va} offset:{so}")
            o.append(f"ds_read_b128 v[{b+4}:{b+7}], v{va} offset:{so + 4096}")
            for p in range(nf):
                o.append(f"ds_read_b64_tr_b16 v[{b+8+4*p}:{b+9+4*p}], v{vf+p} offset:{so + ks*8192}")
                o.append(f"ds_read_b64_tr_b16 v[{b+10+4*p}:{b+11+4*p}], v{vf+p} offset:{so + ks*8192+1024}")
            o.append(f"ds_read_b128 v[{r+4}:{r+7}], v{var} offset:{ab + 2048}")
            return o
        def mfmas(ks):
            b = BF + ks * 24
            mf = []
            for Tt in range(2):
                af = AFR + (ks * 2 + Tt) * 4
                for tq in range(2):
                    ac = ACC + (tq * 2 + Tt) * 4
                    mf.append(f"v_mfma_f32_16x16x32_bf16 v[{ac}:{ac+3}], v[{af}:{af+3}], v[{b+4*tq}:{b+4*tq+3}], v[{ac}:{ac+3}]")
                for p in range(nf):
                    ac = ACC + 16 + (p * 2 + Tt) * 4
                    mf.append(f"v_mfma_f32_16x16x32_bf16 v[{ac}:{ac+3}], v[{b+8+4*p}:{b+8+4*p+3}], v[{af}:{af+3}], v[{ac}:{ac+3}]")
            return mf
        def half(mf, rd, items, dma):
            n = len(mf)
            ri = 0
            for g in range(n):
                for (gg, l) in items:
                    if gg == g - 0.5: a(l)
                a(mf[g])
                for _ in range(2):
                    if ri < len(rd): a(rd[ri]); ri += 1
                if g in dma: dma_piece(*dma[g])
                for (gg, l) in items:
                    if gg == g: a(l)
        def sched(va, g0, g1):
            k = g1 - g0 + 1
            return [(g0 + (i * k) // len(va), l) for i, l in enumerate(va)]
        for l in reads(0, 0): a(l)
        a("s_waitcnt lgkmcnt(0)")
        n = 2 * (2 + nf)
        for st in range(8):
            stamp(a, 4 + st)
            nz = st < 6
            if st == 6:
                a(f"""
                s_lshl_b32 s37, s2, 3
                s_add_u32 s37, s37, s34                 ; b
                s_cmp_ge_u32 s37, 1792
                s_cbranch_scc1 K1_now2a{wc}
                s_lshr_b32 s38, s37, 5                  ; kstep
                s_and_b32 s39, s37, 31                  ; dtile
                s_lshl_b32 s48, s38, 15
                s_lshl_b32 s49, s39, 5
                s_add_u32 s48, s48, s49
                v_lshrrev_b32 v12, 1, v2
                v_lshlrev_b32 v12, 10, v12
                v_and_b32 v13, 1, v2
                v_lshl_add_u32 v12, v13, 4, v12
                buffer_load_dwordx4 v[{W2R}:{W2R+3}], v12, s[40:43], s48 offen
                K1_now2a{wc}:
                """)
                if wc == 0:
                    a("""
                    s_and_b32 s48, s2, 1
                    s_cmp_eq_u32 s48, 0
                    s_cselect_b32 s48, s82, s84
                    s_cselect_b32 s49, s83, s85
                    """)
                    srd(a, 44, 48, 512 * 1024)
                    a(f"""
                    s_lshr_b32 s48, s2, 5                   ; ct
                    s_lshl_b32 s48, s48, 2
                    s_add_u32 s48, s48, s34
                    s_lshl_b32 s48, s48, 14
                    s_bfe_u32 s49, s2, 0x40001              ; round
                    s_lshl_b32 s49, s49, 6
                    s_add_u32 s48, s48, s49
                    v_lshlrev_b32 v12, 10, v14
                    v_lshl_add_u32 v12, v15, 4, v12
                    buffer_load_dwordx4 v[{CR}:{CR+3}], v12, s[44:47], s48 offen
                    """)
            it0 = []; it1 = []
            if nz:
                c = st + 2
                it0 += [(-0.5, l) for l in unpack(c, 0)]
                it0 += sched(norm_valu(c, 0), 3, n - 3) + [(n - 3, norm_write(c, 0))]
                it0 += [(n - 3.5, l) for l in unpack(c, 1)]
                v1 = norm_valu(c, 1)
                it0 += sched(v1[:5], n - 2 + 0, n - 1) if False else []
                it1 += sched(v1, 0, n - 5) + [(n - 5, norm_write(c, 1))]
            d0 = {}; d1 = {}
            if st == 0:
                d0 = {0: (2, 0), 2: (2, 1), 4: (2, 2), 7: (3, 0)}; d1 = {0: (3, 1), 4: (3, 2)}
            elif st <= 4:
                if wc == 0: d0 = {1: (st + 3, 0), 5: (st + 3, 1), 9: (st + 3, 2)}
                else: d0 = {7: (st + 3, 0)}; d1 = {2: (st + 3, 1), 6: (st + 3, 2)}
            half(mfmas(0), reads(st, 1), it0, d0)
            a(f"s_waitcnt lgkmcnt({1 if nz else 0})")
            half(mfmas(1), reads(st + 1, 0) if st < 7 else [], it1, d1)
            if st < 7:
                w = f"vmcnt({vm.after(('dma', st + 2))}) " if st + 2 <= 7 else ""
                a(f"s_waitcnt {w}lgkmcnt(0)\ns_barrier")
        if wc == 0: a("s_branch K1_epi")
    a("K1_epi:")
    stamp(a, 12)
    a(f"""
    s_lshl_b32 s48, s36, 4
    v_add_u32 v11, s48, v14
    v_lshlrev_b32 v12, 5, v11
    v_add_u32 v12, {K1_TABL}, v12
    ds_read_b128 v[4:7], v12
    s_lshl_b32 s48, s32, 4
    s_lshl_b32 s49, s35, 2
    s_add_u32 s48, s48, s49
    v_add_u32 v13, s48, v15
    s_mov_b32 s49, {BU_SS}
    v_mul_lo_u32 v13, v13, s49
    s_lshl_b32 s49, s33, 5
    v_add_u32 v12, s49, v11
    v_lshl_add_u32 v13, v12, 4, v13
    s_waitcnt lgkmcnt(0)
    """)
    U = 16
    for Tt in range(2):
        for r in range(4):
            i = 4 * Tt + r
            re = ACC + (0 * 2 + Tt) * 4 + r
            im = ACC + (1 * 2 + Tt) * 4 + r
            a(f"""
            v_mul_f32 v{U+2*i}, v7, v{im}
            v_mul_f32 v{U+2*i+1}, v7, v{re}
            v_fma_f32 v{U+2*i}, v6, v{re}, -v{U+2*i}
            v_fma_f32 v{U+2*i+1}, v6, v{im}, v{U+2*i+1}
            """)
    for j in range(4):
        a(f"s_mov_b32 s48, {WS_BU + j * BU_JS}")
        a(f"buffer_store_dwordx4 v[{U+4*j}:{U+4*j+3}], v13, s[16:19], s48 offen")
    E = 32
    a(f"v_mov_b32 v{E}, v{U}\nv_mov_b32 v{E+1}, v{U+1}")
    for i in range(1, 8):
        a(f"v_pk_fma_f32 v[{E+2}:{E+3}], v[{E}:{E+1}], v[4:5], v[{U+2*i}:{U+2*i+1}] op_sel_hi:[1,0,1]")
        a(f"v_pk_fma_f32 v[{E}:{E+1}], v[{E}:{E+1}], v[4:5], v[{E+2}:{E+3}] op_sel:[1,1,0] op_sel_hi:[0,1,1] neg_lo:[0,1,0]")
    a(f"""
    s_lshl_b32 s48, s35, 2
    v_add_u32 v12, s48, v15
    v_lshlrev_b32 v12, 8, v12
    v_lshl_add_u32 v12, v11, 3, v12
    v_add_u32 v12, {K1_E8}, v12
    ds_write_b64 v12, v[{E}:{E+1}]
    s_waitcnt lgkmcnt(0)
    s_barrier
    """)
    stamp(a, 13)
    a(f"""
    s_waitcnt vmcnt(4)
    s_cmp_ge_u32 s37, 1792
    s_cbranch_scc1 K1_now2b
    s_add_u32 s48, s51, {K1_SCR}
    v_lshl_add_u32 v8, v2, 4, s48
    ds_write_b128 v8, v[{W2R}:{W2R+3}]
    v_bfe_u32 v8, v2, 2, 2
    v_lshl_add_u32 v8, v15, 2, v8           ; 4g + r
    v_lshlrev_b32 v8, 5, v8
    v_and_b32 v9, 3, v2
    v_lshl_add_u32 v8, v9, 3, v8
    v_add_u32 v8, s48, v8
    ds_read_b64_tr_b16 v[{W2R}:{W2R+1}], v8
    ds_read_b64_tr_b16 v[{W2R+2}:{W2R+3}], v8 offset:512
    s_mul_i32 s48, s39, {FT}
    s_lshl_b32 s49, s38, 10
    s_add_u32 s48, s48, s49
    s_add_u32 s48, s48, {WS_W2F}
    v_lshlrev_b32 v8, 4, v2
    s_waitcnt lgkmcnt(0)
    buffer_store_dwordx4 v[{W2R}:{W2R+3}], v8, s[16:19], s48 offen
    K1_now2b:
    s_cmp_ge_u32 s34, 4
    s_cbranch_scc1 K1_noc2
    s_lshl_b32 s48, s2, 12
    s_add_u32 s48, s48, s51
    s_add_u32 s48, s48, {WS_CF}
    v_lshlrev_b32 v8, 4, v2
    buffer_store_dwordx4 v[{CR}:{CR+3}], v8, s[16:19], s48 offen
    K1_noc2:
    """)
    a(f"""
    s_cmp_lg_u32 s34, 5
    s_cbranch_scc1 K1_nofl
    s_cmp_ge_u32 s2, 128
    s_cbranch_scc1 K1_nofl
    s_lshl_b32 s48, s2, 8
    s_add_u32 s48, s48, {WS_FL}
    v_lshlrev_b32 v8, 2, v2
    v_mov_b32 v9, 0
    buffer_store_dword v9, v8, s[16:19], s48 offen
    K1_nofl:
    """)
    R = 36
    a(f"""
    s_cmp_lg_u32 s34, 7
    s_cbranch_scc1 K1_nopre
    v_and_b32 v9, 31, v2
    v_lshlrev_b32 v10, 5, v9
    v_add_u32 v10, {K1_TABL}, v10
    ds_read_b64 v[4:5], v10 offset:16
    v_lshlrev_b32 v10, 3, v9
    v_add_u32 v11, {K1_E8}, v10
    """)
    for sgm in range(16):
        a(f"ds_read_b64 v[{R+2+2*sgm}:{R+3+2*sgm}], v11 offset:{sgm*256}")
    a(f"""
    v_mov_b32 v{R}, 0
    v_mov_b32 v{R+1}, 0
    s_lshl_b32 s48, s33, 5
    v_add_u32 v9, s48, v9                   ; ch
    v_lshlrev_b32 v10, 4, v9                ; ch*16
    s_lshl_b32 s57, s32, 16
    s_add_u32 s57, s57, {WS_S8X}
    s_waitcnt lgkmcnt(0)
    """)
    for sgm in range(1, 16):
        c = R + 2 + 2 * sgm; p = c - 2
        a(f"v_pk_fma_f32 v[{c}:{c+1}], v[{p}:{p+1}], v[4:5], v[{c}:{c+1}] op_sel_hi:[1,0,1]")
        a(f"v_pk_fma_f32 v[{c}:{c+1}], v[{p}:{p+1}], v[4:5], v[{c}:{c+1}] op_sel:[1,1,0] op_sel_hi:[0,1,1] neg_lo:[0,1,0]")
    for q in range(8):
        a(f"s_add_u32 s48, s57, {q * 8192}")
        a(f"buffer_store_dwordx4 v[{R+4*q}:{R+4*q+3}], v10, s[16:19], s48 offen")
    a(f"""
    s_lshr_b32 s48, s32, 1
    s_lshl_b32 s48, s48, 13
    s_and_b32 s49, s32, 1
    s_lshl_b32 s49, s49, 3
    s_add_u32 s48, s48, s49
    s_add_u32 s48, s48, {WS_E}
    buffer_store_dwordx2 v[{R+32}:{R+33}], v10, s[16:19], s48 offen
    K1_nopre:
    """)
    a(f"""
    v_lshlrev_b32 v12, 4, v2
    s_lshl_b32 s48, s32, 2
    s_add_u32 s48, s48, s35
    s_mul_i32 s48, s48, {2 * FT}
    s_add_u32 s48, s48, {WS_H1F}
    s_mul_i32 s49, s33, 7
    s_add_u32 s58, s49, s55
    s_lshl_b32 s58, s58, 9
    s_add_u32 s58, s58, s48
    s_add_u32 s59, s49, s56
    s_lshr_b32 s60, s59, 1
    s_lshl_b32 s60, s60, 10
    s_and_b32 s59, s59, 1
    s_lshl_b32 s59, s59, 3
    s_add_u32 s59, s59, s60
    s_add_u32 s59, s59, s48
    s_add_u32 s60, s58, {FT}
    s_add_u32 s61, s59, {FT}
    s_mov_b32 s62, {f2u(-1.4426950408889634):#x}
    """)
    def silu_tile(p, Tt, dst):
        ac = ACC + 16 + (p * 2 + Tt) * 4
        tt = 80 + ((p * 2 + Tt) & 1) * 12
        a(f"""
        v_cvt_pk_bf16_f32 v{tt}, v{ac}, v{ac+1}
        v_cvt_pk_bf16_f32 v{tt+1}, v{ac+2}, v{ac+3}
        v_lshlrev_b32 v{tt+4}, 16, v{tt}
        v_and_b32 v{tt+5}, 0xffff0000, v{tt}
        v_lshlrev_b32 v{tt+6}, 16, v{tt+1}
        v_and_b32 v{tt+7}, 0xffff0000, v{tt+1}
        """)
        for r in range(4): a(f"v_mul_f32 v{tt+8+r}, s62, v{tt+4+r}")
        for r in range(4): a(f"v_exp_f32 v{tt+8+r}, v{tt+8+r}")
        for r in range(4): a(f"v_add_f32 v{tt+8+r}, 1.0, v{tt+8+r}")
        for r in range(4): a(f"v_rcp_f32 v{tt+8+r}, v{tt+8+r}")
        for r in range(4): a(f"v_mul_f32 v{tt+4+r}, v{tt+4+r}, v{tt+8+r}")
        a(f"""
        v_cvt_pk_bf16_f32 v{dst}, v{tt+4}, v{tt+5}
        v_cvt_pk_bf16_f32 v{dst+1}, v{tt+6}, v{tt+7}
        """)
    for Tt in range(2):
        o = 104 + Tt * 4
        silu_tile(0, Tt, o); silu_tile(1, Tt, o + 2)
        a(f"buffer_store_dwordx4 v[{o}:{o+3}], v12, s[16:19], s{58 + 2*Tt} offen")
    a("s_cmp_lg_u32 s36, 0\ns_cbranch_scc1 K1_sing")
    for Tt in range(2):
        o = 112 + Tt * 4
        silu_tile(2, Tt, o); silu_tile(3, Tt, o + 2)
        a(f"buffer_store_dwordx4 v[{o}:{o+3}], v12, s[16:19], s{59 + 2*Tt} offen")
    a("s_branch K1_fin\nK1_sing:")
    for Tt in range(2):
        o = 112 + Tt * 4
        silu_tile(2, Tt, o)
        a(f"buffer_store_dwordx2 v[{o}:{o+1}], v12, s[16:19], s{59 + 2*Tt} offen")
    a("K1_fin:")
    stamp(a, 14)
    if STAMP: a("s_waitcnt vmcnt(0)")
    stamp(a, 15)
    stamp_store(a, 16, 0)
    a("K1_done:")
    a("s_endpgm")

K3_PL = 131072
K3_LDS = 163840
NB = 3
ND = int(os.environ.get("ND", "4"))
NS = int(os.environ.get("NS", "5"))
KMAP = int(os.environ.get("KMAP", "1"))
LATE0 = int(os.environ.get("LATE0", "1"))
HALF = int(os.environ.get("HALF", "1"))
XP = int(os.environ.get("XP", "0"))
STAG = int(os.environ.get("STAG", "1"))

def gen_k3(a):
    RO = 40
    a.raw(".p2align 8\nk3_kernel:")
    a("""
    s_cmp_ge_u32 s2, 256
    s_cbranch_scc1 K3_done
    """)
    rstamp(a, 62)
    a("""
    s_load_dwordx2 s[72:73], s[0:1], 0      ; x
    s_load_dwordx2 s[80:81], s[0:1], 64     ; Dskip
    s_load_dwordx2 s[84:85], s[0:1], 96     ; out
    s_load_dwordx2 s[82:83], s[0:1], 112    ; ws
    v_lshrrev_b32 v1, 6, v0
    v_and_b32 v2, 63, v0                    ; lane
    v_readfirstlane_b32 s34, v1             ; wave
    """)
    if KMAP == 0:
        a("""
        s_and_b32 s32, s2, 7
        s_lshl_b32 s32, s32, 2
        s_bfe_u32 s56, s2, 0x20003              ; rq
        s_add_u32 s32, s32, s56                 ; rt64
        s_bfe_u32 s33, s2, 0x20005              ; cg
        s_lshr_b32 s36, s2, 7                   ; type
        s_add_u32 s57, s33, s56
        s_lshl_b32 s57, s57, 1
        """)
    else:
        a("""
        s_bfe_u32 s32, s2, 0x20001
        s_lshl_b32 s32, s32, 3
        s_bfe_u32 s56, s2, 0x30003              ; rq (0..7)
        s_add_u32 s32, s32, s56                 ; rt64
        s_lshr_b32 s33, s2, 6                   ; cg
        s_and_b32 s36, s2, 1                    ; type
        s_lshl_b32 s57, s33, 1
        s_add_u32 s57, s57, s56
        """)
    a(f"""
    s_and_b32 s57, s57, {7 if ROT else 0}   ; rot8
    s_add_u32 s63, s33, s56
    s_and_b32 s63, s63, {3 if ROT else 0}   ; phi
    s_and_b32 s35, s34, 3                   ; w4 / wq
    s_lshr_b32 s39, s34, 2
    s_lshr_b32 s37, s32, 1                  ; tile128
    s_and_b32 s38, s32, 1                   ; half
    s_lshl_b32 s60, s32, 2
    s_add_u32 s60, s60, s33                 ; pair
    s_lshl_b32 s60, s60, 8
    s_add_u32 s60, s60, {WS_FL}
    v_lshlrev_b32 v3, 4, v0                 ; tid*16
    v_and_b32 v9, 15, v2                    ; n / m
    v_lshrrev_b32 v10, 4, v2                ; g
    v_lshlrev_b32 v1, 4, v2                 ; lane*16
    s_waitcnt lgkmcnt(0)
    """)
    stamp(a, 0)
    srd(a, 4, 82, WS_SIZE)
    srd(a, 16, 72, 2048 * 1024)
    srd(a, 20, 84, 2048 * 2048)
    srd(a, 24, 80, 1024)

    def epi_loads(XR, STR, DR):
        a(f"""
        v_lshrrev_b32 v4, 3, v0                 ; t
        v_and_b32 v5, 7, v0                     ; c8
        s_lshl_b32 s88, s32, 6
        v_add_u32 v6, s88, v4                   ; t glob
        v_lshlrev_b32 v7, 10, v6
        s_lshl_b32 s88, s33, 8
        v_lshl_add_u32 v8, v5, 3, s88           ; cg*256 + c8*8
        v_add_u32 v7, v7, v8
        """)
        n = 0
        for e in range(4):
            a(f"buffer_load_dwordx2 v[{XR+2*e}:{XR+2*e+1}], v7, s[16:19], 0 offen offset:{e*64}"); n += 1
        if STR is not None:
            a(f"""
            v_lshlrev_b32 v6, 3, v6
            s_mov_b32 s88, {WS_ST}
            buffer_load_dwordx2 v[{STR}:{STR+1}], v6, s[4:7], s88 offen
            """); n += 1
            for e in range(4):
                a(f"buffer_load_dwordx2 v[{DR+2*e}:{DR+2*e+1}], v8, s[24:27], 0 offen offset:{e*64}"); n += 1
        a("v_lshlrev_b32 v7, 1, v7")
        return n

    def arrive(tag, VD):
        a(f"""
        s_cmp_lg_u32 s34, 0
        s_cbranch_scc1 K3_na{tag}
        v_mov_b32 v{VD}, 1
        v_mov_b32 v{VD+1}, 0
        s_mov_b64 exec, 1
        buffer_atomic_add v{VD}, v{VD+1}, s[4:7], s60 offen sc0 sc1
        s_mov_b64 exec, -1
        K3_na{tag}:
        """)
    def decide(tag, VD, addr):
        a(f"""
        s_cmp_lg_u32 s34, 0
        s_cbranch_scc1 K3_nd{tag}
        s_waitcnt vmcnt(0)
        v_readfirstlane_b32 s88, v{VD}
        v_mov_b32 v{VD}, s88
        v_mov_b32 v{VD+1}, {addr}
        ds_write_b32 v{VD+1}, v{VD}
        K3_nd{tag}:
        """)
    def swz(d, t, tmp):
        a(f"""
        v_lshrrev_b32 v{tmp}, 1, v{t}
        v_and_b32 v{tmp}, 4, v{tmp}
        v_xor_b32 v{tmp}, v{tmp}, v{t}
        v_and_b32 v{tmp}, 7, v{tmp}
        v_and_b32 v{d}, 2, v{t}
        v_lshl_or_b32 v{d}, v{d}, 2, v{tmp}
        """)
    def rnd(base, n, tmp):
        for e in range(n // 2): a(f"v_cvt_pk_bf16_f32 v{tmp+e}, v{base+2*e}, v{base+1+2*e}")
        for e in range(n // 2): a(f"v_lshlrev_b32 v{base+2*e}, 16, v{tmp+e}\nv_and_b32 v{base+1+2*e}, 0xffff0000, v{tmp+e}")
    def early(tag, VD, addr):
        a(f"""
        v_mov_b32 v{VD+1}, {addr}
        ds_read_b32 v{VD}, v{VD+1}
        v_mov_b32 v{VD+1}, 128
        s_waitcnt lgkmcnt(0)
        v_readfirstlane_b32 s61, v{VD}
        s_mov_b32 s62, 0
        s_cmp_eq_u32 s61, 0
        s_cbranch_scc1 K3_e1{tag}
        buffer_load_dword v{VD}, v{VD+1}, s[4:7], s60 offen sc1
        K3_e1{tag}:
        """)
    def other_loads(OT):
        for e in range(4):
            a(f"buffer_load_dwordx4 v[{OT+4*e}:{OT+4*e+3}], v7, s[20:23], 0 offen offset:{e*128} sc1")
    def early2(tag, VD, OT):
        a(f"""
        s_waitcnt vmcnt(0)
        s_cmp_eq_u32 s61, 0
        s_cbranch_scc1 K3_e2{tag}
        v_readfirstlane_b32 s62, v{VD}
        s_cmp_eq_u32 s62, 0
        s_cbranch_scc1 K3_e2{tag}
        """)
        other_loads(OT)
        a(f"K3_e2{tag}:")
    def finish(tag, VD, M, XF, OT):
        a(f"""
        s_cmp_eq_u32 s61, 0
        s_cbranch_scc0 K3_sec{tag}
        """)
        for e in range(4):
            a(f"buffer_store_dwordx4 v[{M+4*e}:{M+4*e+3}], v7, s[20:23], 0 offen offset:{e*128} sc1")
        a(f"""
        s_waitcnt vmcnt(0)
        s_barrier
        s_cmp_lg_u32 s34, 0
        s_cbranch_scc1 K3_end
        v_mov_b32 v{VD}, 1
        v_mov_b32 v{VD+1}, 128
        s_mov_b64 exec, 1
        buffer_store_dword v{VD}, v{VD+1}, s[4:7], s60 offen sc1
        s_mov_b64 exec, -1
        s_branch K3_end
        K3_sec{tag}:
        s_cmp_lg_u32 s62, 0
        s_cbranch_scc1 K3_got{tag}
        K3_poll{tag}:
        buffer_load_dword v{VD}, v{VD+1}, s[4:7], s60 offen sc1
        s_waitcnt vmcnt(0)
        v_readfirstlane_b32 s62, v{VD}
        s_cmp_lg_u32 s62, 0
        s_cbranch_scc1 K3_rdy{tag}
        s_sleep 2
        s_branch K3_poll{tag}
        K3_rdy{tag}:
        """)
        other_loads(OT)
        a(f"K3_got{tag}:\ns_waitcnt vmcnt(0)")
        for e in range(16): a(f"v_mul_f32 v{M+e}, v{M+e}, v{OT+e}")
        for e in range(16): a(f"v_add_f32 v{M+e}, v{M+e}, v{XF+e}")
        for e in range(4):
            a(f"buffer_store_dwordx4 v[{M+4*e}:{M+4*e+3}], v7, s[20:23], 0 offen offset:{e*128}")
        a("s_branch K3_end")

    a("s_cmp_lg_u32 s36, 0\ns_cbranch_scc1 K3_ffn")
    SACC, CAR, LAM, BUR, SELP, SELN, VBU, HR, HI, P, ST, HF, CF = 16, 48, 64, 80, 128, 134, 140, 144, 152, 160, 176, 180, 196
    CE, CS, CT, CW = 160, 192, 208, 216
    HF2 = 228
    TRG = int(os.environ.get("TRG", "25"))
    VPW, VTR0, VTR1, VCR, VD = 240, 241, 242, 243, 244
    DEC_S = 98304
    vm = Cnt()
    a(f"""
    s_mov_b32 s88, {WS_TP + 8192}
    buffer_load_dwordx4 v[{CT+4}:{CT+7}], v3, s[4:7], s88 offen
    s_lshl_b32 s89, s32, 15
    s_add_u32 s89, s89, {WS_S8X}
    """)
    for q in range(8):
        a(f"""
        s_cmp_le_u32 s37, {2*q}
        s_cbranch_scc1 K3_noE
        s_mov_b32 s88, {WS_E + q * 8192}
        buffer_load_dwordx4 v[{CE+4*q}:{CE+4*q+3}], v3, s[4:7], s88 offen
        """)
    a("K3_noE:")
    for q in range(4):
        a(f"s_add_u32 s88, s89, {q * 8192}")
        a(f"buffer_load_dwordx4 v[{CS+4*q}:{CS+4*q+3}], v3, s[4:7], s88 offen")
    vm.issue("carry", 4)
    for i in range(8):
        if HALF:
            a(f"s_add_u32 s88, s63, {i & 3}\ns_and_b32 s88, s88, 3\ns_lshl_b32 s88, s88, 1\ns_add_u32 s88, s88, s39\ns_add_u32 s88, s88, {(i >> 2) * 8}\ns_lshl_b32 s{RO+i}, s88, 9")
        else:
            a(f"s_add_u32 s88, s57, {i}\ns_and_b32 s88, s88, 7\ns_lshl_b32 s88, s88, 1\ns_add_u32 s88, s88, s39\ns_lshl_b32 s{RO+i}, s88, 9")
    a(f"""
    v_and_b32 v13, 31, v2                   ; chl
    v_lshrrev_b32 v14, 5, v2                ; sp
    s_lshl_b32 s88, s35, 1
    v_add_u32 v15, s88, v14                 ; sg
    s_lshl_b32 s88, s32, 3
    v_add_u32 v4, s88, v15
    s_mov_b32 s88, {BU_SS}
    v_mul_lo_u32 v4, v4, s88
    v_lshl_add_u32 v{VBU}, v13, 4, v4
    v_add_u32 v{VBU+1}, {BU_JS}, v{VBU}
    v_add_u32 v{VBU+2}, {2*BU_JS}, v{VBU}
    v_add_u32 v{VBU+3}, {3*BU_JS}, v{VBU}
    s_lshl_b32 s58, s33, 18
    s_lshl_b32 s59, s35, 10                 ; w4*1024
    s_add_u32 s58, s58, s59
    s_add_u32 s58, s58, {WS_CF}
    s_lshl_b32 s88, s39, 16
    s_add_u32 s59, s59, s88                 ; gr*65536 + w4*1024
    v_add_u32 v{VCR}, s88, v1
    """)
    def cdma(i, q):
        ri, c2 = q >> 1, q & 1
        a(f"""
        s_lshl_b32 s88, s{RO+i}, 4
        s_add_u32 m0, s59, {(i % 4) * 16384 + q * 4096}
        s_add_u32 s88, s88, s58
        """)
        if q: a(f"s_add_u32 s88, s88, {c2 * 131072 + ri * 4096}")
        a("buffer_load_dwordx4 v1, s[4:7], s88 offen lds")
        vm.issue(("c", i))
    def bu_load(i, j):
        b = BUR + (i % NB) * 16
        a(f"buffer_load_dwordx4 v[{b+4*j}:{b+4*j+3}], v{VBU+j}, s[4:7], s{RO+i} offen")
        vm.issue(("bu", i))
    for j in range(4): bu_load(0, j)
    if not LATE0:
        for q in range(4): cdma(0, q)
    a(f"""
    s_lshl_b32 s88, s{63 if HALF else 57}, 6
    v_subrev_u32 v6, s88, v0
    v_and_b32 v6, {255 if HALF else 511}, v6                   ; idx
    v_and_b32 v5, {256 if HALF else 0}, v0
    v_or_b32 v6, v6, v5
    v_lshlrev_b32 v11, 3, v6
    v_add_u32 v11, 49152, v11
    v_add_u32 v12, 65536, v11
    v_lshrrev_b32 v4, 6, v6                 ; i
    v_lshlrev_b32 v4, 8, v4
    v_bfe_u32 v5, v6, 5, 1                  ; gr'
    v_lshl_add_u32 v4, v5, 14, v4
    v_and_b32 v5, 31, v6
    v_lshl_add_u32 v4, v5, 3, v4
    v_add_u32 v6, {K3_PL}, v4
    s_lshl_b32 s88, s34, 12
    s_add_u32 s88, s88, {K3_PL}             ; PB
    v_lshlrev_b32 v4, 2, v14
    v_xor_b32 v4, v4, v13
    v_lshlrev_b32 v4, 4, v4
    v_lshl_add_u32 v4, v14, 9, v4
    v_add_u32 v{VPW}, s88, v4
    v_lshl_add_u32 v8, v13, 3, s88
    v_bfe_u32 v4, v2, 2, 2
    v_lshl_add_u32 v4, v10, 3, v4           ; k
    v_bfe_u32 v5, v2, 1, 1                  ; c>>1
    v_lshlrev_b32 v7, 2, v5
    v_xor_b32 v4, v4, v7
    v_lshlrev_b32 v4, 4, v4
    v_lshl_add_u32 v4, v5, 9, v4
    v_and_b32 v5, 1, v2
    v_lshl_add_u32 v4, v5, 3, v4
    v_add_u32 v{VTR0}, s88, v4
    v_xor_b32 v{VTR1}, 64, v{VTR0}
    v_lshrrev_b32 v4, 2, v15
    v_lshlrev_b32 v4, 16, v4
    v_and_b32 v15, 3, v15
    v_lshl_add_u32 v15, v15, 12, v4
    v_lshl_add_u32 v15, v13, 3, v15
    s_lshl_b32 s88, s39, 8
    s_add_u32 s88, s88, 49152
    v_add_u32 v15, s88, v15
    v_lshrrev_b32 v4, 2, v9
    v_cmp_eq_u32 vcc, v4, v10
    v_and_b32 v4, 1, v9
    v_lshlrev_b32 v4, 4, v4
    v_mov_b32 v5, 0x3f80
    v_lshlrev_b32 v7, v4, v5
    v_cndmask_b32 v7, 0, v7, vcc
    v_mov_b32 v5, 0xbf80
    v_lshlrev_b32 v13, v4, v5
    v_cndmask_b32 v13, 0, v13, vcc          ; -1.0
    v_and_b32 v5, 2, v9
    v_cmp_eq_u32 vcc, 0, v5
    v_cndmask_b32 v{SELP+2}, 0, v7, vcc
    v_cndmask_b32 v{SELP+3}, v7, 0, vcc
    v_cndmask_b32 v{SELN+2}, 0, v13, vcc
    v_cndmask_b32 v{SELN+3}, v13, 0, vcc
    """)
    for S in (SELP, SELN):
        for i in (0, 1, 4, 5): a(f"v_mov_b32 v{S+i}, 0")
    for r in range(32): a(f"v_mov_b32 v{SACC+r}, 0")
    stamp(a, 1)
    a(f"s_waitcnt vmcnt({vm.after('carry')})")
    stamp(a, 2)
    for w in range(4):
        a(f"ds_write_b64 v6, v[{CT+6}:{CT+7}] offset:{w*4096}")
    cplx_sq(a, CT + 2, CT + 6, CW)
    cplx_sq(a, CW + 2, CT + 2, CW)
    cplx_sq(a, CT, CW + 2, CW)
    cplx_sq(a, CT + 2, CT, CW)
    cplx_sq(a, CW + 2, CT + 2, CW)
    cplx_sq(a, CT + 2, CW + 2, CW)
    a(f"v_mov_b32 v{CW}, 0\nv_mov_b32 v{CW+1}, 0")
    for i in range(15):
        a(f"s_cmp_le_u32 s37, {i}\ns_cbranch_scc1 K3_hd")
        cmul_acc(a, CW + 2, CW, CT + 4, CE + 2 * i)
        a(f"v_mov_b32 v{CW}, v{CW+2}\nv_mov_b32 v{CW+1}, v{CW+3}")
    a("K3_hd:")
    a("s_cmp_eq_u32 s38, 0\ns_cbranch_scc1 K3_hg")
    cmul_acc(a, CW + 2, CW, CT + 2, None)
    a(f"v_mov_b32 v{CW}, v{CW+2}\nv_mov_b32 v{CW+1}, v{CW+3}")
    a("K3_hg:")
    cur = CW
    for q in range(8):
        a(f"v_pk_add_f32 v[{CS+2*q}:{CS+2*q+1}], v[{CS+2*q}:{CS+2*q+1}], v[{cur}:{cur+1}]")
        a(f"ds_write_b64 v{11 if q < 4 else 12}, v[{CS+2*q}:{CS+2*q+1}] offset:{(q & 3)*4096}")
        if q < 7:
            nxt = CW + 2 if cur == CW else CW
            cmul_acc(a, nxt, cur, CT, None)
            cur = nxt
    a("s_waitcnt lgkmcnt(0)\ns_barrier")
    stamp(a, 3)
    for i in range(8):
        a(f"ds_read_b64 v[{CAR+2*i}:{CAR+2*i+1}], v15 offset:{i*512}")
        a(f"ds_read_b64 v[{LAM+2*i}:{LAM+2*i+1}], v8 offset:{i*256}")
    if LATE0:
        for q in range(4): cdma(0, q)
    for q in range(4): cdma(1, q)
    for j in range(4): bu_load(1, j)
    def scan_list(i):
        b = BUR + (i % NB) * 16; L = LAM + 2 * i
        o1 = []
        pr, pi = CAR + 2 * i, CAR + 2 * i + 1
        for k in range(8):
            t = ST + 2 * (k & 1)
            o1 += [f"v_fma_f32 v{t}, v{pr}, v{L}, v{b+2*k}",
                   f"v_fma_f32 v{t+1}, v{pi}, v{L}, v{b+2*k+1}",
                   f"v_fma_f32 v{HR+k}, v{pi}, -v{L+1}, v{t}",
                   f"v_fma_f32 v{HI+k}, v{pr}, v{L+1}, v{t+1}"]
            pr, pi = HR + k, HI + k
        hi = []
        for q in range(4):
            hi.append(f"v_cvt_pk_bf16_f32 v{P+q}, v{HR+2*q}, v{HR+2*q+1}")
        for q in range(4):
            hi.append(f"v_cvt_pk_bf16_f32 v{P+8+q}, -v{HI+2*q}, -v{HI+2*q+1}")
        um = [f"v_mfma_f32_16x16x32_bf16 v[{b}:{b+3}], v[{SELN+2}:{SELN+5}], v[{P}:{P+3}], v[{HR}:{HR+3}]",
              f"v_mfma_f32_16x16x32_bf16 v[{b+4}:{b+7}], v[{SELN}:{SELN+3}], v[{P}:{P+3}], v[{HR+4}:{HR+7}]",
              f"v_mfma_f32_16x16x32_bf16 v[{b+8}:{b+11}], v[{SELP+2}:{SELP+5}], v[{P+8}:{P+11}], v[{HI}:{HI+3}]",
              f"v_mfma_f32_16x16x32_bf16 v[{b+12}:{b+15}], v[{SELP}:{SELP+3}], v[{P+8}:{P+11}], v[{HI+4}:{HI+7}]"]
        lo = []
        for q in range(4):
            lo.append(f"v_cvt_pk_bf16_f32 v{P+4+q}, v{b+2*q}, v{b+2*q+1}")
        for q in range(4):
            lo.append(f"v_cvt_pk_bf16_f32 v{P+12+q}, -v{b+8+2*q}, -v{b+8+2*q+1}")
        w = [f"ds_write_b128 v{VPW}, v[{P+4*pl}:{P+4*pl+3}] offset:{pl * 1024}" for pl in range(4)]
        return o1, hi, um, lo, w
    def hf(i, pl):
        return HF + 4 * pl if (pl < 2 or i % 2 == 0) else HF2 + 4 * (pl - 2)
    def tr_reads(i):
        o = []
        for pl in range(4):
            h = hf(i, pl)
            o.append(f"ds_read_b64_tr_b16 v[{h}:{h+1}], v{VTR0} offset:{pl*1024}")
            o.append(f"ds_read_b64_tr_b16 v[{h+2}:{h+3}], v{VTR1} offset:{pl*1024}")
        return o
    def c_reads(i, q):
        b = CF + (q & 1) * 16
        return [f"ds_read_b128 v[{b+4*dt}:{b+4*dt+3}], v{VCR} offset:{(i % 4) * 16384 + q * 4096 + dt * 1024}" for dt in range(4)]
    a(f"s_waitcnt vmcnt({vm.after(('bu', 0))}) lgkmcnt(0)")
    o1, hi, um, lo, w = scan_list(0)
    for l in o1 + hi + um: a(l)
    a(w[0]); a(w[2])
    for q in range(4): cdma(2, q)
    for j in range(4): bu_load(2, j)
    for l in lo: a(l)
    a(w[1]); a(w[3])
    for l in tr_reads(0): a(l)
    stamp(a, 4)
    XR, STR, DR = 48, 56, 64
    for i in range(8):
        if not STAG or i == 0:
            if i < 7:
                n = min(vm.after(("c", i + 1)), vm.after(("bu", i + 1)))
                a(f"s_waitcnt vmcnt({n}) lgkmcnt(0)\ns_barrier")
            else:
                a("s_waitcnt lgkmcnt(0)\ns_barrier")
        else:
            if i < 7:
                n = min(vm.after(("c", i + 1)), vm.after(("bu", i + 1)))
                a(f"""
                s_cmp_lg_u32 s39, 0
                s_cbranch_scc1 K3_t1_{i}
                s_waitcnt vmcnt({n}) lgkmcnt(0)
                s_barrier
                K3_t1_{i}:
                s_waitcnt vmcnt({vm.after(("bu", i + 1))}) lgkmcnt(0)
                """)
            else:
                a(f"""
                s_waitcnt lgkmcnt(0)
                s_cmp_lg_u32 s39, 0
                s_cbranch_scc1 K3_t1_{i}
                s_barrier
                K3_t1_{i}:
                """)
        lg = Cnt()
        if i == 0:
            for l in c_reads(0, 0): a(l)
            a("s_waitcnt lgkmcnt(0)")
        if i == 6: arrive("s", VD)
        fill = {g: [] for g in range(32)}
        if i < 7:
            o1, hi, um, lo, w = scan_list(i + 1)
            if XP & 1: o1 = []
            if XP & 2: hi = []; lo = []
            if XP & 4: um = []
            if XP & 8: w = ["s_nop 0"] * 4
            if XP & 64: w = [f"ds_write_b64 v{VPW}, v[{P+4*pl}:{P+4*pl+1}] offset:{pl * 1024}\nds_write_b64 v{VPW}, v[{P+4*pl+2}:{P+4*pl+3}] offset:{pl * 1024 + 8}" for pl in range(4)]
            if XP & 128: w[1] = "s_nop 0"; w[3] = "s_nop 0"
            if XP & 256: w = [f"ds_write_b128 v{VPW}, v[{SELP}:{SELP+3}] offset:{pl * 1024}" for pl in range(4)]
            if XP & 512: w = [f"ds_write_b32 v{VPW}, v{P+4*pl} offset:{pl * 1024}" for pl in range(4)]
            for k, l in enumerate(o1): fill[k // 3].append(l)
            for k, l in enumerate(hi): fill[11 + k // 3].append(l)
            fill[14] += um
            fill[14].append(("w", w[0])); fill[15].append(("w", w[2]))
            for k, l in enumerate(lo): fill[18 + k // 3].append(l)
            fill[21].append(("w", w[1])); fill[22].append(("w", w[3]))
            if not XP & 16:
                for k, l in enumerate(tr_reads(i + 1)): fill[TRG + k // 2].append(("w", l))
        if i + 3 <= 7:
            for j in range(4): fill[1 + 2 * j].append(("bu", i + 3, j))
            for q, g in enumerate((17, 20, 23, 26) if STAG else (9, 13, 17, 23)): fill[g].append(("c", i + 3, q))
        if i == 5: fill[10].append(("epi",))
        for q in range(4):
            nq = c_reads(i, q + 1) if q < 3 else (c_reads(i + 1, 0) if i < 7 else [])
            if XP & 32: nq = ["s_nop 0"] * 4
            for k in range(8):
                g = q * 8 + k
                pl = (q >> 1) * 2 + (k >> 2); dt = k & 3
                ac = SACC + ((q & 1) * 4 + dt) * 4
                cf = CF + (q & 1) * 16 + dt * 4
                if g == 16 and STAG and i < 7:
                    a(f"""
                    s_cmp_eq_u32 s39, 0
                    s_cbranch_scc1 K3_m0_{i}
                    s_waitcnt vmcnt({vm.after(("c", i + 1))})
                    s_barrier
                    K3_m0_{i}:
                    """)
                if k == 0 and q > 0: a(f"s_waitcnt lgkmcnt({lg.after(('q', q))})")
                a(f"v_mfma_f32_16x16x32_bf16 v[{ac}:{ac+3}], v[{cf}:{cf+3}], v[{hf(i, pl)}:{hf(i, pl)+3}], v[{ac}:{ac+3}]")
                if k < 4 and nq:
                    a(nq[k]); lg.issue(("q", q + 1))
                for l in fill[g]:
                    if isinstance(l, str): a(l)
                    elif l[0] == "w": a(l[1]); lg.issue("w")
                    elif l[0] == "bu": bu_load(l[1], l[2])
                    elif l[0] == "c": cdma(l[1], l[2])
                    elif l[0] == "epi": vm.issue("epi", epi_loads(XR, STR, DR))
        stamp(a, 5 + i)
    decide("s", VD, DEC_S)
    swz(11, 9, 6)
    a(f"""
    v_xor_b32 v11, v11, v10                 ; ^ g
    s_lshl_b32 s88, s35, 13
    s_lshl_b32 s89, s39, 15
    s_add_u32 s88, s88, s89
    v_lshl_add_u32 v6, v9, 9, s88
    s_waitcnt lgkmcnt(0)
    s_barrier
    """)
    for dt in range(4):
        a(f"v_xor_b32 v8, {4*dt}, v11\nv_lshl_add_u32 v8, v8, 4, v6")
        a(f"ds_write_b128 v8, v[{SACC+4*dt}:{SACC+4*dt+3}]")
        a(f"ds_write_b128 v8, v[{SACC+16+4*dt}:{SACC+16+4*dt+3}] offset:256")
    early("s", VD, DEC_S)
    swz(11, 4, 6)
    a(f"""
    v_xor_b32 v6, v5, v11
    v_lshlrev_b32 v6, 4, v6
    v_lshl_add_u32 v6, v4, 9, v6            ; chunk c8 (e=0)
    v_xor_b32 v8, 128, v6                   ; e=1
    s_waitcnt lgkmcnt(0)
    s_barrier
    """)
    stamp(a, 20)
    M, M2, XF, XN, DU, OT, TMP = 16, 32, 80, 96, 112, 128, 144
    for gq in range(2):
        for e in range(4):
            a(f"ds_read_b128 v[{M+16*gq+4*e}:{M+16*gq+4*e+3}], v{6 if e % 2 == 0 else 8} offset:{gq*32768 + (e >> 1)*256}")
    early2("s", VD, OT)
    for e in range(8):
        a(f"v_lshlrev_b32 v{XF+2*e}, 16, v{XR+e}\nv_and_b32 v{XF+1+2*e}, 0xffff0000, v{XR+e}")
        a(f"v_lshlrev_b32 v{DU+2*e}, 16, v{DR+e}\nv_and_b32 v{DU+1+2*e}, 0xffff0000, v{DR+e}")
    for e in range(0, 16, 2):
        a(f"v_pk_add_f32 v[{XN+e}:{XN+1+e}], v[{XF+e}:{XF+1+e}], v[{STR}:{STR+1}] op_sel_hi:[1,0] neg_lo:[0,1] neg_hi:[0,1]")
    rnd(XN, 16, TMP)
    for e in range(0, 16, 2):
        a(f"v_pk_mul_f32 v[{XN+e}:{XN+1+e}], v[{XN+e}:{XN+1+e}], v[{STR}:{STR+1}] op_sel:[0,1] op_sel_hi:[1,1]")
    rnd(XN, 16, TMP)
    for e in range(0, 16, 2): a(f"v_pk_mul_f32 v[{XN+e}:{XN+1+e}], v[{XN+e}:{XN+1+e}], v[{DU+e}:{DU+1+e}]")
    rnd(XN, 16, TMP)
    a("s_waitcnt lgkmcnt(0)")
    for e in range(0, 16, 2):
        a(f"v_pk_add_f32 v[{M+e}:{M+e+1}], v[{M+e}:{M+e+1}], v[{M2+e}:{M2+e+1}]")
    for e in range(16): a(f"v_fma_f32 v{M+e}, v{M+e}, 2.0, v{XN+e}")
    stamp(a, 21)
    finish("s", VD, M, XF, OT)

    a("K3_ffn:")
    ACC, WR, HB = 16, 80, 176
    assert WR + 16 * ND <= HB
    VW, VH, VHR, VD = 208, 212, 214, 216
    XR = 220
    DEC_F = 131072
    vm = Cnt()
    a("""
    s_mul_i32 s59, s57, 7
    s_lshr_b32 s59, s59, 2                  ; R (0..12)
    """)
    if HALF: a("s_mul_i32 s59, s63, 7\ns_lshr_b32 s59, s59, 2")
    for p in range(14):
        if HALF:
            a(f"""
            s_add_u32 s88, s59, {p % 7}
            s_sub_u32 s89, s88, 7
            s_cmp_ge_u32 s88, 7
            s_cselect_b32 s88, s89, s88
            s_add_u32 s88, s88, {(p // 7) * 7}
            s_lshl_b32 s{RO+p}, s88, 10
            """)
        else:
            a(f"""
            s_add_u32 s88, s59, {p}
            s_sub_u32 s89, s88, 14
            s_cmp_ge_u32 s88, 14
            s_cselect_b32 s88, s89, s88
            s_lshl_b32 s{RO+p}, s88, 10
            """)
    a(f"""
    s_mul_i32 s88, s35, {14 * 1024}
    s_lshl_b32 s89, s33, 3
    s_lshl_b32 s58, s39, 2
    s_add_u32 s89, s89, s58
    s_mul_i32 s89, s89, {FT}
    s_add_u32 s89, s89, s88
    s_add_u32 s89, s89, {WS_W2F}
    v_add_u32 v{VW}, s89, v1
    s_lshl_b32 s89, s32, 2
    s_lshl_b32 s58, s39, 1
    s_add_u32 s89, s89, s58
    s_mul_i32 s89, s89, {FT}
    s_add_u32 s89, s89, s88
    s_add_u32 s89, s89, {WS_H1F}
    v_add_u32 v{VH}, s89, v1
    v_add_u32 v{VH+1}, {FT}, v{VH}
    s_lshl_b32 s88, s35, 12
    v_add_u32 v{VHR}, s88, v1
    v_add_u32 v{VHR+1}, 65536, v{VHR}
    s_lshl_b32 s58, s39, 11
    s_add_u32 s58, s58, s88
    """)
    for i in range(1, 4):
        a(f"v_add_u32 v{VW+i}, {i * FT}, v{VW}")
    def hdma(i, j):
        a(f"""
        s_add_u32 m0, s58, {(i % NS) * 16384 + j * 1024}
        s_nop 0
        buffer_load_dwordx4 v{VH+j}, s[4:7], s{RO+i} offen lds
        """)
        vm.issue(("h", i))
    def wload(i, dt):
        b = WR + (i % ND) * 16 + dt * 4
        a(f"buffer_load_dwordx4 v[{b}:{b+3}], v{VW+dt}, s[4:7], s{RO+i} offen")
        vm.issue(("w", i))
    def h_reads(i):
        sl = i % NS
        b = HB + (i & 1) * 16
        return [f"ds_read_b128 v[{b+4*tt}:{b+4*tt+3}], v{VHR + (sl >> 2)} offset:{(sl & 3) * 16384 + tt * 1024}" for tt in range(4)]
    for i in range(max(NS, ND)):
        if i < NS:
            for j in range(2): hdma(i, j)
        if i < ND:
            for dt in range(4): wload(i, dt)
        if i == 1:
            for r in range(64): a(f"v_mov_b32 v{ACC+r}, 0")
    stamp(a, 3)
    a(f"s_waitcnt vmcnt({vm.after(('h', 0))})\ns_barrier")
    for l in h_reads(0): a(l)
    stamp(a, 4)
    for i in range(14):
        n = vm.after(("w", i))
        if i < 13: n = min(n, vm.after(("h", i + 1)))
        a(f"s_waitcnt vmcnt({n}) lgkmcnt(0)\ns_barrier")
        if i == 12: arrive("f", VD)
        hr = h_reads(i + 1) if i < 13 else []
        b = WR + (i % ND) * 16
        hb = HB + (i & 1) * 16
        for dt in range(4):
            for tt in range(4):
                g = dt * 4 + tt
                ac = ACC + g * 4
                a(f"v_mfma_f32_16x16x32_bf16 v[{ac}:{ac+3}], v[{b+4*dt}:{b+4*dt+3}], v[{hb+4*tt}:{hb+4*tt+3}], v[{ac}:{ac+3}]")
                if g < 4 and hr: a(hr[g])
                if g in (5, 9) and i + NS < 14: hdma(i + NS, 0 if g == 5 else 1)
            if i + ND < 14: wload(i + ND, dt)
        if i == 10: vm.issue("epi", epi_loads(XR, None, None))
        stamp(a, 5 + i)
    decide("f", VD, DEC_F)
    a(f"""
    v_lshrrev_b32 v11, 2, v9
    v_and_b32 v6, 3, v9
    v_lshl_add_u32 v11, v11, 3, v6          ; t0 = 8(n>>2) + (n&3)     (tt=0)
    """)
    swz(12, 11, 6)
    a(f"""
    v_xor_b32 v6, v12, v10                  ; ^ g
    s_lshl_b32 s88, s35, 15
    s_lshl_b32 s89, s39, 14
    s_add_u32 s88, s88, s89
    v_lshl_add_u32 v11, v11, 8, s88
    s_waitcnt lgkmcnt(0)
    s_barrier
    """)
    for tq in range(2):
        for dt in range(4):
            a(f"v_xor_b32 v8, {(4 * dt) ^ (4 * tq)}, v6\nv_lshl_add_u32 v8, v8, 4, v11")
            for th in range(2):
                tt = th * 2 + tq
                ac = ACC + (dt * 4 + tt) * 4
                a(f"ds_write_b128 v8, v[{ac}:{ac+3}] offset:{th * 8192 + tq * 1024}")
    early("f", VD, DEC_F)
    swz(11, 4, 6)
    a(f"""
    v_xor_b32 v6, v5, v11
    v_lshlrev_b32 v6, 4, v6
    v_lshl_add_u32 v6, v4, 8, v6            ; chunk c8 (e=0)
    v_xor_b32 v8, 128, v6                   ; e=1
    v_add_u32 v11, 65536, v6
    v_add_u32 v12, 65536, v8
    s_waitcnt lgkmcnt(0)
    s_barrier
    """)
    stamp(a, 20)
    M, XF, OT, TMP = 16, 80, 96, 112
    for wq in range(4):
        for e in range(4):
            va = (6 if e % 2 == 0 else 8) if wq < 2 else (11 if e % 2 == 0 else 12)
            a(f"ds_read_b128 v[{M+16*wq+4*e}:{M+16*wq+4*e+3}], v{va} offset:{(wq & 1)*32768 + (e >> 1)*16384}")
    early2("f", VD, OT)
    for e in range(8):
        a(f"v_lshlrev_b32 v{XF+2*e}, 16, v{XR+e}\nv_and_b32 v{XF+1+2*e}, 0xffff0000, v{XR+e}")
    a(f"s_mov_b32 s92, {f2u(-1.4426950408889634):#x}")
    a("s_waitcnt lgkmcnt(0)")
    for e in range(0, 16, 2):
        a(f"v_pk_add_f32 v[{M+e}:{M+e+1}], v[{M+e}:{M+e+1}], v[{M+16+e}:{M+17+e}]")
        a(f"v_pk_add_f32 v[{M+32+e}:{M+33+e}], v[{M+32+e}:{M+33+e}], v[{M+48+e}:{M+49+e}]")
    for e in range(0, 16, 2):
        a(f"v_pk_add_f32 v[{M+e}:{M+e+1}], v[{M+e}:{M+e+1}], v[{M+32+e}:{M+33+e}]")
    rnd(M, 16, TMP)
    T2 = 128
    for e in range(16): a(f"v_mul_f32 v{T2+e}, s92, v{M+e}")
    for e in range(16): a(f"v_exp_f32 v{T2+e}, v{T2+e}")
    for e in range(16): a(f"v_add_f32 v{T2+e}, 1.0, v{T2+e}")
    for e in range(16): a(f"v_rcp_f32 v{T2+e}, v{T2+e}")
    for e in range(16): a(f"v_mul_f32 v{M+e}, v{M+e}, v{T2+e}")
    rnd(M, 16, TMP)
    stamp(a, 21)
    finish("f", VD, M, XF, OT)
    a("K3_end:")
    if STAMP: a("s_waitcnt vmcnt(0)")
    stamp(a, 22)
    stamp_store(a, 4, 1)
    a("K3_done:\ns_endpgm")
HEADER = open("recurrent_scan__ssm_conv_s5__dense_activation_silu__prompt.s.ref").read().split("; Override launch")[0]

def build(kernels):
    a = Asm()
    launches = []
    if "k1" in kernels: launches.append(f"; @launch kernel=k1_kernel grid=(256,1,1) block=(512,1,1) lds={K1_LDS}")
    if "k3" in kernels: launches.append(f"; @launch kernel=k3_kernel grid=(256,1,1) block=(512,1,1) lds={K3_LDS}")
    a.raw(HEADER.rstrip("\n"))
    for l in launches: a.raw(l)
    a.raw('.amdgcn_target "amdgcn-amd-amdhsa--gfx950"\n.text')
    if "k1" in kernels: gen_k1(a)
    if "k3" in kernels: gen_k3(a)
    a.raw('.section .rodata,"a"\n.p2align 6')
    if "k1" in kernels: a.raw(kd("k1_kernel", 256))
    if "k3" in kernels: a.raw(".p2align 6\n" + kd("k3_kernel", 256))
    return a.text()

if __name__ == "__main__":
    ks = sys.argv[2].split(",") if len(sys.argv) > 2 else ["k1", "k3"]
    STAMP = "stamp" in ks
    open(sys.argv[1], "w").write(build(ks))
```

```python
import sys, struct
sys.path.insert(0, "dev")
from asmlib import Asm, kd

import os
PAD = int(os.environ.get("PAD", "0"))
ROT = int(os.environ.get("ROT", "1"))
MAP = int(os.environ.get("MAP", "1"))
BU_JS = 8192 + 512 * PAD
BU_SS = 4 * BU_JS + 256 * PAD
FT = 56 * 1024 + 256 * PAD
WS_BU  = 0
WS_H1F = 10 << 20
WS_W2F = 18 << 20
WS_S8X = 20 << 20
WS_E   = 21 << 20
WS_TP  = (21 << 20) + (64 << 10)
WS_TL  = (21 << 20) + (128 << 10)
WS_ST  = (21 << 20) + (192 << 10)
WS_CF  = 22 << 20
WS_FL  = 23 << 20
WS_G   = 26 << 20
WS_DBG = 24 << 20
WS_SIZE = 28 << 20
STAMP = False

def stamp(a, i):
    if not STAMP: return
    a(f"""
    s_memtime s[96:97]
    s_waitcnt lgkmcnt(0)
    v_writelane_b32 v255, s96, {i}
    """)

def rstamp(a, i):
    if not STAMP: return
    a(f"""
    s_memrealtime s[96:97]
    s_waitcnt lgkmcnt(0)
    v_writelane_b32 v255, s96, {i}
    """)

def stamp_store(a, srd, k):
    if not STAMP: return
    rstamp(a, 63)
    a(f"""
    s_mov_b64 exec, -1
    v_and_b32 v254, 63, v0
    v_lshlrev_b32 v254, 2, v254
    s_lshl_b32 s96, s2, 3
    s_add_u32 s96, s96, s34
    s_lshl_b32 s96, s96, 8
    s_add_u32 s96, s96, {WS_DBG + k * (1 << 20)}
    buffer_store_dword v255, v254, s[{srd}:{srd+3}], s96 offen
    """)

def srd(a, d, base, nbytes):
    a(f"""
    s_mov_b32 s{d}, s{base}
    s_and_b32 s{d+1}, s{base+1}, 0xffff
    s_mov_b32 s{d+2}, {nbytes}
    s_mov_b32 s{d+3}, 0x00020000
    """)

def f2u(x):
    return struct.unpack("<I", struct.pack("<f", x))[0]

def cplx_sq(a, d, s, t):
    a(f"""
    v_mul_f32 v{t}, v{s+1}, v{s+1}
    v_mul_f32 v{d+1}, v{s}, v{s+1}
    v_fma_f32 v{d}, v{s}, v{s}, -v{t}
    v_add_f32 v{d+1}, v{d+1}, v{d+1}
    """)

def cmul_acc(a, d, x, m, add):
    if add is None:
        a(f"v_pk_mul_f32 v[{d}:{d+1}], v[{x}:{x+1}], v[{m}:{m+1}] op_sel_hi:[1,0]")
    else:
        a(f"v_pk_fma_f32 v[{d}:{d+1}], v[{x}:{x+1}], v[{m}:{m+1}], v[{add}:{add+1}] op_sel_hi:[1,0,1]")
    a(f"v_pk_fma_f32 v[{d}:{d+1}], v[{x}:{x+1}], v[{m}:{m+1}], v[{d}:{d+1}] op_sel:[1,1,0] op_sel_hi:[0,1,1] neg_lo:[0,1,0]")

class Cnt:
    def __init__(self): self.n = 0; self.tags = {}
    def issue(self, tag=None, k=1):
        self.n += k
        if tag is not None: self.tags[tag] = self.n
    def after(self, tag): return self.n - self.tags[tag]
    def copy(self):
        c = Cnt(); c.n = self.n; c.tags = dict(self.tags); return c

def interleave(a, main, fill, lead=0):
    k = 0
    for l in fill[:lead]: a(l)
    k = lead
    n = len(main)
    rest = len(fill) - k
    for i, m in enumerate(main):
        a(m)
        tgt = lead + (rest * (i + 1)) // n
        while k < tgt:
            a(fill[k]); k += 1

L_A, L_W, L_PW, L_M = 0, 49152, 114688, 147456
L_TABL = L_M
L_E8 = L_M + 1024
L_SCR = L_M + 5120
L_ST = L_M + 13312
L_CNT = L_M + 14336
L_CR = L_M
L_X = 65536
KF_LDS = 163840
WS_OP = 26 << 20
WS_SIZE = 32 << 20
ND = int(os.environ.get("ND", "4"))
BSC = " sc1" if int(os.environ.get("BSC", "0")) else ""
SPIN = 0x4000
KNAME = "recurrent_scan__ssm_conv_s5__dense_activation_silu__prompt_kernel"

def gen_kf(a):
    X, MR, TM, NM, AFR, BF, ACC = 16, 80, 84, 100, 108, 124, 156
    W2R, CRR = 188, 192
    VB, VW, VAW, VAR, VF = 196, 197, 198, 199, 200
    VA0, VA1 = 104, 105
    SELR = 206
    ST, L8 = 244, 248
    vm = Cnt()
    a.raw(f".globl {KNAME}\n.p2align 8\n.type {KNAME},@function\n{KNAME}:")
    a("""
    s_cmp_ge_u32 s2, 256
    s_cbranch_scc1 KF_done
    """)
    rstamp(a, 62)
    stamp(a, 30)
    a("""
    s_load_dwordx16 s[72:87], s[0:1], 0
    s_load_dwordx4 s[88:91], s[0:1], 80     ; w1 w2
    s_load_dwordx4 s[92:95], s[0:1], 104
    v_lshrrev_b32 v1, 6, v0
    v_and_b32 v2, 63, v0                    ; lane
    v_readfirstlane_b32 s34, v1             ; wave
    s_bfe_u32 s32, s2, 0x20001
    s_lshl_b32 s32, s32, 2
    s_bfe_u32 s48, s2, 0x20003
    s_add_u32 s32, s32, s48
    s_and_b32 s33, s2, 1
    s_lshl_b32 s33, s33, 3
    s_lshr_b32 s48, s2, 5
    s_add_u32 s33, s33, s48
    s_and_b32 s35, s34, 3
    s_lshr_b32 s36, s34, 2
    v_and_b32 v14, 15, v2                   ; n
    v_lshrrev_b32 v15, 4, v2                ; g
    v_lshlrev_b32 v1, 4, v2                 ; lane*16
    s_lshl_b32 s48, s32, 7
    s_lshl_b32 s49, s34, 4
    s_add_u32 s48, s48, s49
    v_add_u32 v10, s48, v14                 ; row
    v_lshlrev_b32 v3, 10, v10
    v_lshl_add_u32 v3, v15, 4, v3
    s_and_b32 s48, s32, 3
    s_lshl_b32 s48, s48, 1
    s_add_u32 s50, s33, s48
    v_lshlrev_b32 v5, 1, v0                 ; tid*2
    v_and_b32 v9, 7, v2                     ; p
    """)
    for pos in range(8):
        a(f"s_add_u32 s48, s50, {pos}\ns_and_b32 s48, s48, 7\ns_lshl_b32 s{64+pos}, s48, 7")
    a(f"""
    v_lshrrev_b32 v12, 3, v2
    s_lshl_b32 s48, s34, 3
    v_add_u32 v12, s48, v12                 ; row 0..63
    v_bfe_u32 v13, v12, 1, 3                ; key
    v_xor_b32 v13, v13, v9                  ; chunk
    v_and_b32 v12, 31, v12
    s_lshl_b32 s48, s33, 5
    v_add_u32 v12, s48, v12                 ; p
    v_lshlrev_b32 v12, 10, v12
    v_lshl_add_u32 v{VB}, v13, 4, v12
    s_and_b32 s48, s34, 1
    s_lshl_b32 s48, s48, 2
    v_or_b32 v13, s48, v15                  ; s(k)
    v_bfe_u32 v4, v2, 1, 3                  ; pair'
    v_xor_b32 v13, v13, v4                  ; pair
    v_lshlrev_b32 v13, 5, v13
    v_and_b32 v4, 1, v2
    v_lshl_add_u32 v13, v4, 4, v13
    s_lshl_b32 s48, s34, 3
    v_add_u32 v12, s48, v15                 ; k local (j=0)
    s_movk_i32 s49, 3584
    v_mul_lo_u32 v12, v12, s49
    s_mul_i32 s48, s33, 224
    v_add3_u32 v{VW}, v12, v13, s48
    s_lshl_b32 s51, s34, 10                 ; wave*1024
    s_lshl_b32 s52, s34, 11                 ; wave*2048
    """)
    if STAMP: a("s_memtime s[98:99]")
    a("s_waitcnt lgkmcnt(0)")
    if STAMP: a("v_writelane_b32 v255, s98, 31")
    stamp(a, 0)
    srd(a, 20, 74, 1024)
    srd(a, 24, 76, 1024)
    srd(a, 28, 86, 1024)
    srd(a, 4, 72, 2048 * 1024)
    a("""
    buffer_load_ushort v6, v5, s[20:23], 0 offen
    buffer_load_ushort v7, v5, s[24:27], 0 offen
    buffer_load_ushort v11, v5, s[28:31], 0 offen
    """)
    vm.issue("par", 3)
    def xload(c):
        for h in range(2):
            r = X + (c * 2 + h) * 4
            a(f"buffer_load_dwordx4 v[{r}:{r+3}], v3, s[4:7], s{64+c} offen offset:{h*64}")
            vm.issue(("x", c))
    for c in range(8): xload(c)
    srd(a, 16, 94, WS_SIZE)
    a("""
    s_cmp_lt_u32 s34, 4
    s_cselect_b32 s48, s78, s80
    s_cselect_b32 s49, s79, s81
    """)
    srd(a, 8, 48, 512 * 1024)
    srd(a, 12, 88, 512 * 3584)
    srd(a, 28, 90, 1792 * 1024)
    srd(a, 20, 92, 256)
    a("""
    s_and_b32 s48, s2, 1
    s_cmp_eq_u32 s48, 0
    s_cselect_b32 s48, s82, s84
    s_cselect_b32 s49, s83, s85
    """)
    srd(a, 24, 48, 512 * 1024)
    a(f"""
    s_lshl_b32 s37, s32, 7
    s_lshl_b32 s38, s33, 2
    s_add_u32 s37, s37, s38
    s_add_u32 s37, s37, {WS_FL}
    s_lshl_b32 s38, s32, 4
    s_add_u32 s38, s38, s33
    s_lshl_b32 s39, s38, 7
    s_add_u32 s39, s39, {WS_FL + 8192}
    s_cmp_lg_u32 s34, 1
    s_cbranch_scc1 KF_nz
    v_mov_b32 v4, 0
    s_add_u32 s48, s37, 4096
    v_mov_b32 v8, {L_CNT}
    s_mov_b64 exec, 1
    buffer_store_dword v4, v4, s[16:19], s37 offen sc1
    buffer_store_dword v4, v4, s[16:19], s48 offen sc1
    buffer_store_dword v4, v4, s[16:19], s39 offen sc1
    ds_write_b32 v8, v4
    s_mov_b64 exec, -1
    KF_nz:
    """)
    stamp(a, 16)
    def dma_piece(st, i):
        base = L_W + (st % 4) * 16384
        if i == 0:
            a(f"""
            s_add_u32 m0, s52, {base}
            s_mul_i32 s49, s{64+st}, 1792
            buffer_load_dwordx4 v{VW}, s[12:15], s49 offen lds
            """)
        else:
            a(f"""
            s_mul_i32 s49, s{64+st}, 1792
            s_add_u32 m0, s52, {base + 1024}
            s_add_u32 s49, s49, {4 * 3584}
            buffer_load_dwordx4 v{VW}, s[12:15], s49 offen lds
            """)
        vm.issue(("dma", st), 1)
    def boff(s): return 16384 + s * 8192 if s < 6 else (s - 6) * 8192
    def bdma(s):
        a(f"""
        s_add_u32 m0, s51, {32768 + boff(s)}
        s_nop 0
        buffer_load_dwordx4 v{VB}, s[8:11], s{64+s} offen lds
        """)
        vm.issue("bdma", 1)
    a(f"""
    v_add_u32 v{VAW}, s52, v1
    s_lshl_b32 s48, s35, 12
    v_add_u32 v{VAR}, s48, v1
    v_bfe_u32 v12, v14, 1, 3                ; key = (n>>1)&7
    v_xor_b32 v12, v12, v15
    v_lshlrev_b32 v13, 7, v14
    v_add_u32 v13, 32768, v13
    v_lshl_add_u32 v{VA0}, v12, 4, v13
    v_xor_b32 v12, 4, v12
    v_lshl_add_u32 v{VA1}, v12, 4, v13
    v_bfe_u32 v12, v2, 2, 2                 ; r
    v_and_b32 v13, 1, v15
    v_lshl_or_b32 v13, v13, 2, v12          ; sw
    v_lshl_add_u32 v12, v15, 3, v12         ; 8g + r
    v_lshlrev_b32 v12, 8, v12
    v_and_b32 v4, 3, v2
    v_lshl_add_u32 v12, v4, 3, v12          ; + c*8
    v_add_u32 v12, {L_W}, v12
    s_and_b32 s54, s33, 1                   ; par
    s_lshl_b32 s55, s36, 2
    s_add_u32 s55, s55, s54
    s_add_u32 s56, s55, 2
    s_cmp_lg_u32 s54, 0
    s_cselect_b32 s48, 0, 6
    s_cmp_lg_u32 s36, 0
    s_cselect_b32 s56, s48, s56
    """)
    for p, sreg in ((0, "s55"), (1, None), (2, "s56"), (3, None)):
        if sreg is None:
            a(f"s_add_u32 s48, s55, {p}")
            sreg = "s48"
        a(f"v_xor_b32 v4, {sreg}, v13\nv_lshl_add_u32 v{VF+p}, v4, 5, v12")
    a(f"""
    v_lshrrev_b32 v4, 2, v14                ; m>>2
    v_cmp_eq_u32 vcc, v4, v15
    v_and_b32 v4, 1, v14
    v_lshlrev_b32 v4, 4, v4
    v_mov_b32 v8, 0x3f80
    v_lshlrev_b32 v4, v4, v8
    v_cndmask_b32 v4, 0, v4, vcc
    v_and_b32 v8, 2, v14
    v_cmp_eq_u32 vcc, 0, v8
    v_cndmask_b32 v{SELR+2}, 0, v4, vcc
    v_cndmask_b32 v{SELR+3}, v4, 0, vcc
    v_mov_b32 v{SELR}, 0
    v_mov_b32 v{SELR+1}, 0
    v_mov_b32 v{SELR+4}, 0
    v_mov_b32 v{SELR+5}, 0
    s_add_u32 s63, s33, s32
    s_and_b32 s63, s63, 3                   ; phi
    s_lshl_b32 s48, s63, 7
    v_subrev_u32 v8, s48, v0
    v_and_b32 v8, 511, v8                   ; idx
    v_lshlrev_b32 v8, 3, v8
    v_add_u32 v8, {L_PW}, v8
    """)
    T0 = 124
    PWR = 156
    def t(i): return T0 + i
    a(f"""
    s_waitcnt vmcnt({vm.after('par')})
    v_lshlrev_b32 v{t(0)}, 16, v6               ; Lre
    v_lshlrev_b32 v{t(1)}, 16, v7               ; Lim
    v_lshlrev_b32 v{t(2)}, 16, v11              ; log_dt
    v_mul_f32 v{t(2)}, {f2u(1.4426950408889634):#x}, v{t(2)}
    v_exp_f32 v{t(2)}, v{t(2)}
    v_cvt_pk_bf16_f32 v{t(2)}, v{t(2)}, v{t(2)}
    v_lshlrev_b32 v{t(2)}, 16, v{t(2)}
    v_mul_f32 v{t(3)}, v{t(2)}, v{t(0)}                 ; a
    v_mul_f32 v{t(4)}, v{t(2)}, v{t(1)}                 ; b
    v_mul_f32 v{t(3)}, {f2u(1.4426950408889634):#x}, v{t(3)}
    v_exp_f32 v{t(3)}, v{t(3)}                      ; e^a
    v_mul_f32 v{t(5)}, {f2u(0.6366197723675814):#x}, v{t(4)}
    v_rndne_f32 v{t(5)}, v{t(5)}                    ; n
    v_mov_b32 v{t(6)}, {f2u(1.5703125):#x}
    v_fma_f32 v{t(4)}, -v{t(5)}, v{t(6)}, v{t(4)}
    v_mov_b32 v{t(6)}, {f2u(4.837512969970703125e-4):#x}
    v_fma_f32 v{t(4)}, -v{t(5)}, v{t(6)}, v{t(4)}
    v_mov_b32 v{t(6)}, {f2u(7.54978995489188216e-8):#x}
    v_fma_f32 v{t(4)}, -v{t(5)}, v{t(6)}, v{t(4)}           ; r
    v_cvt_i32_f32 v{t(5)}, v{t(5)}                  ; q
    v_mul_f32 v{t(6)}, v{t(4)}, v{t(4)}                 ; z
    v_mov_b32 v{t(7)}, {f2u(-1.9515295891e-4):#x}
    v_mov_b32 v{t(8)}, {f2u(8.3321608736e-3):#x}
    v_fma_f32 v{t(7)}, v{t(7)}, v{t(6)}, v{t(8)}
    v_mov_b32 v{t(8)}, {f2u(-1.6666654611e-1):#x}
    v_fma_f32 v{t(7)}, v{t(7)}, v{t(6)}, v{t(8)}
    v_mul_f32 v{t(7)}, v{t(7)}, v{t(6)}
    v_fma_f32 v{t(7)}, v{t(7)}, v{t(4)}, v{t(4)}            ; sin r
    v_mov_b32 v{t(8)}, {f2u(2.443315711809948e-5):#x}
    v_mov_b32 v{t(9)}, {f2u(-1.388731625493765e-3):#x}
    v_fma_f32 v{t(8)}, v{t(8)}, v{t(6)}, v{t(9)}
    v_mov_b32 v{t(9)}, {f2u(4.166664568298827e-2):#x}
    v_fma_f32 v{t(8)}, v{t(8)}, v{t(6)}, v{t(9)}
    v_mul_f32 v{t(8)}, v{t(8)}, v{t(6)}
    v_fma_f32 v{t(8)}, v{t(8)}, v{t(6)}, 1.0
    v_fma_f32 v{t(8)}, v{t(6)}, -0.5, v{t(8)}           ; cos r
    v_and_b32 v{t(9)}, 1, v{t(5)}
    v_cmp_eq_u32 vcc, 1, v{t(9)}
    v_cndmask_b32 v{t(10)}, v{t(7)}, v{t(8)}, vcc
    v_cndmask_b32 v{t(11)}, v{t(8)}, v{t(7)}, vcc
    v_lshlrev_b32 v{t(9)}, 30, v{t(5)}
    v_and_b32 v{t(9)}, 0x80000000, v{t(9)}
    v_xor_b32 v{t(10)}, v{t(10)}, v{t(9)}                 ; sin b
    v_add_u32 v{t(9)}, 1, v{t(5)}
    v_lshlrev_b32 v{t(9)}, 30, v{t(9)}
    v_and_b32 v{t(9)}, 0x80000000, v{t(9)}
    v_xor_b32 v{t(11)}, v{t(11)}, v{t(9)}                 ; cos b
    v_mul_f32 v{t(12)}, v{t(3)}, v{t(11)}
    v_mul_f32 v{t(13)}, v{t(3)}, v{t(10)}
    v_add_f32 v{t(4)}, -1.0, v{t(12)}                ; Lr-1
    v_mul_f32 v{t(5)}, v{t(13)}, v{t(1)}
    v_fma_f32 v{t(5)}, v{t(4)}, v{t(0)}, v{t(5)}
    v_mul_f32 v{t(6)}, v{t(4)}, v{t(1)}
    v_fma_f32 v{t(6)}, v{t(13)}, v{t(0)}, -v{t(6)}
    v_mul_f32 v{t(7)}, v{t(1)}, v{t(1)}
    v_fma_f32 v{t(7)}, v{t(0)}, v{t(0)}, v{t(7)}            ; den
    v_rcp_f32 v{t(8)}, v{t(7)}
    v_fma_f32 v{t(9)}, -v{t(7)}, v{t(8)}, 2.0
    v_mul_f32 v{t(8)}, v{t(8)}, v{t(9)}
    v_mul_f32 v{t(14)}, v{t(5)}, v{t(8)}
    v_mul_f32 v{t(15)}, v{t(6)}, v{t(8)}
    """)
    L1 = t(12)
    def pw_write(k):
        f = (k & 3) | ((k >> 2) << 3)
        if f: a(f"v_xor_b32 v4, {f*16}, v8")
        src = L1 if k == 0 else (L8 if k == 7 else PWR + 2 * k)
        a(f"ds_write_b64 v{4 if f else 8}, v[{src}:{src+1}] offset:{k*4096}")
    pw_write(0)
    cplx_sq(a, PWR + 2, L1, t(4))
    pw_write(1)
    cmul_acc(a, PWR + 4, PWR + 2, L1, None)
    pw_write(2)
    cplx_sq(a, PWR + 6, PWR + 2, t(4))
    pw_write(3)
    cmul_acc(a, PWR + 8, PWR + 6, L1, None)
    pw_write(4)
    cplx_sq(a, PWR + 10, PWR + 4, t(4))
    pw_write(5)
    cmul_acc(a, PWR + 12, PWR + 6, PWR + 4, None)
    pw_write(6)
    cplx_sq(a, L8, PWR + 6, t(4))
    pw_write(7)
    a(f"""
    s_lshl_b32 s48, s33, 5
    v_subrev_u32 v4, s48, v0
    v_cmp_gt_u32 vcc, 32, v4
    v_lshlrev_b32 v4, 5, v4
    v_add_u32 v4, {L_TABL}, v4
    s_and_saveexec_b64 s[48:49], vcc
    ds_write_b128 v4, v[{t(12)}:{t(15)}]
    ds_write_b64 v4, v[{L8}:{L8+1}] offset:16
    s_mov_b64 exec, s[48:49]
    """)
    stamp(a, 1)
    S1, S2 = TM, TM + 2
    a("s_mov_b32 s53, 0x3f803f80")
    for c in range(8):
        a(f"s_waitcnt vmcnt({vm.after(('x', c))})")
        stamp(a, 20 + c)
        if c in (4, 6):
            for i in range(2): dma_piece((c - 4) // 2, i)
        for d in range(8):
            x = X + c * 8 + d
            s1 = S1 + (d & 1); s2 = S2 + (d & 1)
            first = (c == 0 and d < 2)
            a(f"v_dot2_f32_bf16 v{s1}, v{x}, s53, {'0' if first else 'v%d' % s1}")
            a(f"v_dot2_f32_bf16 v{s2}, v{x}, v{x}, {'0' if first else 'v%d' % s2}")
    stamp(a, 2)
    Q = TM + 8
    a(f"""
    v_add_f32 v{Q}, v{S1}, v{S1+1}
    v_add_f32 v{Q+1}, v{S2}, v{S2+1}
    """)
    for op in ("v_permlane16_swap_b32", "v_permlane32_swap_b32"):
        a(f"""
        v_mov_b32 v{Q+2}, v{Q}
        v_mov_b32 v{Q+3}, v{Q+1}
        {op} v{Q}, v{Q+2}
        {op} v{Q+1}, v{Q+3}
        v_add_f32 v{Q}, v{Q}, v{Q+2}
        v_add_f32 v{Q+1}, v{Q+1}, v{Q+3}
        """)
    a(f"""
    v_mul_f32 v{Q}, {f2u(1/512):#x}, v{Q}
    v_mul_f32 v{Q+1}, {f2u(1/512):#x}, v{Q+1}
    v_fma_f32 v{Q+1}, -v{Q}, v{Q}, v{Q+1}
    v_max_f32 v{Q+1}, 0, v{Q+1}
    v_cvt_pk_bf16_f32 v{Q+2}, v{Q}, v{Q+1}
    v_lshlrev_b32 v{MR}, 16, v{Q+2}
    v_and_b32 v{Q+1}, 0xffff0000, v{Q+2}
    v_xor_b32 v{NM}, 0x80000000, v{MR}
    v_add_f32 v{Q+1}, {f2u(1e-5):#x}, v{Q+1}
    v_mov_b32 v{NM+1}, v{NM}
    v_cvt_pk_bf16_f32 v{Q+1}, v{Q+1}, v{Q+1}
    v_mov_b32 v{NM+2}, v{NM}
    v_lshlrev_b32 v{Q+1}, 16, v{Q+1}
    v_mov_b32 v{NM+3}, v{NM}
    v_sqrt_f32 v{Q+1}, v{Q+1}
    v_cvt_pk_bf16_f32 v{Q+1}, v{Q+1}, v{Q+1}
    v_lshlrev_b32 v{Q+1}, 16, v{Q+1}
    v_rcp_f32 v{Q+2}, v{Q+1}
    v_fma_f32 v{Q+3}, -v{Q+1}, v{Q+2}, 2.0
    v_mul_f32 v{MR+1}, v{Q+2}, v{Q+3}
    """)
    def unpack(c, j):
        x0 = X + (c * 2 + j) * 4
        T = TM + 8 * j
        return [f"v_mfma_f32_16x16x32_bf16 v[{T}:{T+3}], v[{SELR+2}:{SELR+5}], v[{x0}:{x0+3}], v[{NM}:{NM+3}]",
                f"v_mfma_f32_16x16x32_bf16 v[{T+4}:{T+7}], v[{SELR}:{SELR+3}], v[{x0}:{x0+3}], v[{NM}:{NM+3}]"]
    def norm_valu(c, j):
        x0 = X + (c * 2 + j) * 4
        T = TM + 8 * j
        o = []
        for e in range(8): o.append(f"v_cvt_pk_bf16_f32 v{T+e}, 0, v{T+e}")
        for e in range(8): o.append(f"v_mul_f32 v{T+e}, v{T+e}, v{MR+1}")
        for d in range(4): o.append(f"v_cvt_pk_bf16_f32 v{x0+d}, v{T+2*d}, v{T+2*d+1}")
        return o
    def norm_write(c, j):
        return f"ds_write_b128 v{VAW}, v[{X+(c*2+j)*4}:{X+(c*2+j)*4+3}] offset:{(c % 3) * 16384 + j * 1024}"
    for c in range(2):
        for j in range(2):
            for l in unpack(c, j): a(l)
        for j in range(2):
            for l in norm_valu(c, j) + [norm_write(c, j)]: a(l)
    a(f"""
    s_lshl_b32 s48, s34, 7
    v_lshl_add_u32 v4, v14, 3, s48
    v_add_u32 v4, {L_ST}, v4
    ds_write_b64 v4, v[{MR}:{MR+1}]
    s_lshl_b32 s57, s2, 3
    s_add_u32 s57, s57, s34                 ; b
    s_sub_u32 s48, s57, 256
    s_cmp_ge_u32 s57, 1792
    s_cselect_b32 s57, s48, s57
    s_lshr_b32 s58, s57, 5                  ; kstep
    s_and_b32 s59, s57, 31                  ; dtile
    """)
    stamp(a, 3)
    a(f"s_waitcnt vmcnt({vm.after(('dma', 1))}) lgkmcnt(0)\ns_barrier")
    a(f"""
    s_bfe_u32 s48, s33, 0x10002             ; rh
    s_lshl_b32 s48, s48, 1
    s_lshr_b32 s49, s33, 3                  ; kh
    s_add_u32 s62, s48, s49
    s_lshl_b32 s48, s62, 8
    v_lshl_add_u32 v4, v14, 3, s48
    v_add_u32 v4, {L_ST}, v4
    ds_read_b64 v[{ST}:{ST+1}], v4
    ds_read_b64 v[{ST+2}:{ST+3}], v4 offset:128
    s_cmp_lg_u32 s36, 0
    s_cbranch_scc1 KF_main1
    """)
    vm0 = vm
    for wc in range(2):
        vm = vm0.copy()
        nf = 4 if wc == 0 else 3
        if wc == 1: a("KF_main1:")
        def reads(st, ks):
            ab = (st % 3) * 16384 + ks * 1024
            b = BF + ks * 16
            so = (st % 4) * 16384
            o = []
            r = AFR + (ks * 2) * 4
            o.append(f"ds_read_b128 v[{r}:{r+3}], v{VAR} offset:{ab}")
            for p in range(nf):
                o.append(f"ds_read_b64_tr_b16 v[{b+4*p}:{b+1+4*p}], v{VF+p} offset:{so + ks*8192}")
                o.append(f"ds_read_b64_tr_b16 v[{b+2+4*p}:{b+3+4*p}], v{VF+p} offset:{so + ks*8192+1024}")
            o.append(f"ds_read_b128 v[{r+4}:{r+7}], v{VAR} offset:{ab + 2048}")
            return o
        def mfmas(st, ks):
            b = BF + ks * 16
            mf = []
            for Tt in range(2):
                af = AFR + (ks * 2 + Tt) * 4
                for p in range(nf):
                    ac = ACC + (p * 2 + Tt) * 4
                    c = "0" if (st == 0 and ks == 0) else f"v[{ac}:{ac+3}]"
                    mf.append(f"v_mfma_f32_16x16x32_bf16 v[{ac}:{ac+3}], v[{b+4*p}:{b+4*p+3}], v[{af}:{af+3}], {c}")
            return mf
        def half(mf, rd, items, dma):
            n = len(mf)
            ri = 0
            for g in range(n):
                for (gg, l) in items:
                    if gg == g - 0.5: a(l)
                a(mf[g])
                for _ in range(2):
                    if ri < len(rd): a(rd[ri]); ri += 1
                if g in dma:
                    for f in dma[g]: f()
                for (gg, l) in items:
                    if gg == g: a(l)
            assert ri == len(rd)
        def sched(va, g0, g1):
            k = g1 - g0 + 1
            return [(g0 + (i * k) // len(va), l) for i, l in enumerate(va)]
        def st_load():
            a(f"""
            s_lshl_b32 s48, s58, 15
            s_lshl_b32 s49, s59, 5
            s_add_u32 s48, s48, s49
            v_lshrrev_b32 v12, 1, v2
            v_lshlrev_b32 v12, 10, v12
            v_and_b32 v13, 1, v2
            v_lshl_add_u32 v12, v13, 4, v12
            buffer_load_dwordx4 v[{W2R}:{W2R+3}], v12, s[28:31], s48 offen
            """)
            vm.issue("stl")
            if wc == 0:
                a(f"""
                s_lshr_b32 s48, s2, 5                   ; ct
                s_lshl_b32 s48, s48, 2
                s_add_u32 s48, s48, s34
                s_lshl_b32 s48, s48, 14
                s_bfe_u32 s49, s2, 0x40001              ; round
                s_lshl_b32 s49, s49, 6
                s_add_u32 s48, s48, s49
                v_lshlrev_b32 v12, 10, v14
                v_lshl_add_u32 v12, v15, 4, v12
                buffer_load_dwordx4 v[{CRR}:{CRR+3}], v12, s[24:27], s48 offen
                """)
                vm.issue("stl")
        def st_mid():
            a(f"""
            s_add_u32 s48, s51, {L_SCR}
            v_add_u32 v8, s48, v1
            s_waitcnt vmcnt({vm.after('stl')})
            ds_write_b128 v8, v[{W2R}:{W2R+3}]
            v_bfe_u32 v8, v2, 2, 2
            v_lshl_add_u32 v8, v15, 2, v8           ; 4g + r
            v_lshlrev_b32 v8, 5, v8
            v_and_b32 v9, 3, v2
            v_lshl_add_u32 v8, v9, 3, v8
            v_add_u32 v8, s48, v8
            ds_read_b64_tr_b16 v[{W2R}:{W2R+1}], v8
            ds_read_b64_tr_b16 v[{W2R+2}:{W2R+3}], v8 offset:512
            """)
        def st_store():
            a(f"""
            s_mul_i32 s48, s59, {FT}
            s_lshl_b32 s49, s58, 10
            s_add_u32 s48, s48, s49
            s_add_u32 s48, s48, {WS_W2F}
            buffer_store_dwordx4 v[{W2R}:{W2R+3}], v1, s[16:19], s48 offen sc1
            """)
            vm.issue("sts")
            if wc == 0:
                a(f"""
                s_lshl_b32 s48, s2, 12
                s_add_u32 s48, s48, s51
                s_add_u32 s48, s48, {WS_CF}
                buffer_store_dwordx4 v[{CRR}:{CRR+3}], v1, s[16:19], s48 offen sc1
                """)
                vm.issue("sts")
        for l in reads(0, 0): a(l)
        a("s_waitcnt lgkmcnt(0)")
        n = 2 * nf
        P = lambda st, i: (lambda: dma_piece(st, i))
        Bp = lambda s: (lambda: bdma(s))
        for st in range(8):
            stamp(a, 4 + st)
            nz = st < 6
            it0 = []; it1 = []
            if nz:
                c = st + 2
                it0 += [(-0.5, l) for l in unpack(c, 0)]
                it0 += sched(norm_valu(c, 0), 2, n - 2) + [(n - 2, norm_write(c, 0))]
                it0 += [(n - 2.5, l) for l in unpack(c, 1)]
                it1 += sched(norm_valu(c, 1), 0, n - 3) + [(n - 3, norm_write(c, 1))]
            d0 = {}; d1 = {}
            if st == 0:
                d0 = {0: [P(2, 0)], 2: [P(2, 1)], 4: [P(3, 0)]}; d1 = {0: [P(3, 1)], 3: [st_load]}
            elif st <= 4:
                if wc == 0: d0 = {1: [P(st + 3, 0)], 5: [P(st + 3, 1)]}
                else: d0 = {4: [P(st + 3, 0)]}; d1 = {2: [P(st + 3, 1)]}
            elif st == 5: d0 = {1: [Bp(0)], 4: [Bp(1)]}
            elif st == 6: d0 = {1: [Bp(2)], 4: [Bp(3)]}; d1 = {1: [Bp(6)], 4: [Bp(7)]}
            else: d0 = {1: [Bp(4)], 4: [Bp(5)]}
            exl = 0
            if st == 2:
                d1.setdefault(n - 1, []).append(st_mid)
            if st == 3:
                d0.setdefault(0, []).append(st_store)
            half(mfmas(st, 0), reads(st, 1), it0, d0)
            a(f"s_waitcnt lgkmcnt({1 if nz else 0})")
            half(mfmas(st, 1), reads(st + 1, 0) if st < 7 else [], it1, d1)
            if st < 7:
                ws_ = []
                if st + 2 <= 7: ws_.append(vm.after(('dma', st + 2)))
                if st == 4: ws_.append(vm.after('sts'))
                w = f"vmcnt({min(ws_)}) " if ws_ else ""
                a(f"s_waitcnt {w}lgkmcnt(0)\ns_barrier")
                if st == 4 and wc == 0:
                    a(f"""
                    s_cmp_lg_u32 s34, 0
                    s_cbranch_scc1 KF_nsf
                    v_mov_b32 v4, 1
                    v_mov_b32 v8, 0
                    s_mov_b64 exec, 1
                    buffer_store_byte v4, v8, s[20:23], s38 offen sc1
                    s_mov_b64 exec, -1
                    KF_nsf:
                    """)
        vmE = vm
        if wc == 0: a("s_branch KF_epi"); vmE0 = vm
    a("KF_epi:")
    vm = Cnt(); vm.tags["bdma"] = 0
    stamp(a, 12)
    a(f"""
    s_cmp_lg_u32 s34, 0
    s_cbranch_scc1 KF_np0
    v_lshlrev_b32 v4, 2, v2
    buffer_load_dword v5, v4, s[20:23], 0 offen sc1
    KF_np0:
    s_lshl_b32 s48, s32, 2
    s_add_u32 s48, s48, s35
    s_mul_i32 s48, s48, {2 * FT}
    s_add_u32 s48, s48, {WS_H1F}
    s_mul_i32 s49, s33, 7
    s_add_u32 s58, s49, s55
    s_lshl_b32 s58, s58, 9
    s_add_u32 s58, s58, s48
    s_add_u32 s59, s49, s56
    s_lshr_b32 s60, s59, 1
    s_lshl_b32 s60, s60, 10
    s_and_b32 s59, s59, 1
    s_lshl_b32 s59, s59, 3
    s_add_u32 s59, s59, s60
    s_add_u32 s59, s59, s48
    s_add_u32 s60, s58, {FT}
    s_add_u32 s61, s59, {FT}
    s_mov_b32 s53, {f2u(-1.4426950408889634):#x}
    """)
    def silu_tile(p, Tt, dst):
        ac = ACC + (p * 2 + Tt) * 4
        tt = 80 + ((p * 2 + Tt) & 1) * 12
        a(f"""
        v_cvt_pk_bf16_f32 v{tt}, v{ac}, v{ac+1}
        v_cvt_pk_bf16_f32 v{tt+1}, v{ac+2}, v{ac+3}
        v_lshlrev_b32 v{tt+4}, 16, v{tt}
        v_and_b32 v{tt+5}, 0xffff0000, v{tt}
        v_lshlrev_b32 v{tt+6}, 16, v{tt+1}
        v_and_b32 v{tt+7}, 0xffff0000, v{tt+1}
        """)
        for r in range(4): a(f"v_mul_f32 v{tt+8+r}, s53, v{tt+4+r}")
        for r in range(4): a(f"v_exp_f32 v{tt+8+r}, v{tt+8+r}")
        for r in range(4): a(f"v_add_f32 v{tt+8+r}, 1.0, v{tt+8+r}")
        for r in range(4): a(f"v_rcp_f32 v{tt+8+r}, v{tt+8+r}")
        for r in range(4): a(f"v_mul_f32 v{tt+4+r}, v{tt+4+r}, v{tt+8+r}")
        a(f"""
        v_cvt_pk_bf16_f32 v{dst}, v{tt+4}, v{tt+5}
        v_cvt_pk_bf16_f32 v{dst+1}, v{tt+6}, v{tt+7}
        """)
    for Tt in range(2):
        o = 108 + Tt * 4
        silu_tile(0, Tt, o); silu_tile(1, Tt, o + 2)
        a(f"buffer_store_dwordx4 v[{o}:{o+3}], v1, s[16:19], s{58 + 2*Tt} offen sc1")
    a("s_cmp_lg_u32 s36, 0\ns_cbranch_scc1 KF_sing")
    for Tt in range(2):
        o = 116 + Tt * 4
        silu_tile(2, Tt, o); silu_tile(3, Tt, o + 2)
        a(f"buffer_store_dwordx4 v[{o}:{o+3}], v1, s[16:19], s{59 + 2*Tt} offen sc1")
    a("s_branch KF_fin\nKF_sing:")
    for Tt in range(2):
        o = 116 + Tt * 4
        silu_tile(2, Tt, o)
        a(f"buffer_store_dwordx2 v[{o}:{o+1}], v1, s[16:19], s{59 + 2*Tt} offen sc1")
    a("KF_fin:")
    vm.issue("h1s", 4)
    stamp(a, 13)
    WR, VW2 = 140, 240
    RO = 40
    a(f"""
    s_add_u32 s48, s33, s32
    s_lshl_b32 s49, s32, 1
    s_add_u32 s48, s48, s49
    s_and_b32 s48, s48, 7
    s_cmp_eq_u32 s48, 7
    s_cselect_b32 s59, 3, s48               ; rot7
    """)
    for p in range(7):
        a(f"""
        s_add_u32 s48, s59, {p}
        s_sub_u32 s49, s48, 7
        s_cmp_ge_u32 s48, 7
        s_cselect_b32 s48, s49, s48
        s_lshl_b32 s{RO+p}, s48, 10
        """)
    a(f"""
    s_and_b32 s48, s33, 3                   ; cq
    s_lshl_b32 s48, s48, 3
    s_add_u32 s48, s48, s34                 ; cq*8 + w
    s_mul_i32 s48, s48, {FT}
    s_lshr_b32 s49, s33, 3                  ; kh
    s_mul_i32 s60, s49, {28 * 1024}
    s_add_u32 s48, s48, s60
    s_add_u32 s48, s48, {WS_W2F}
    v_add_u32 v{VW2}, s48, v1
    v_add_u32 v{VW2+1}, {7 * 1024}, v{VW2}
    v_add_u32 v{VW2+2}, {14 * 1024}, v{VW2}
    v_add_u32 v{VW2+3}, {21 * 1024}, v{VW2}
    s_cmp_lg_u32 s34, 0
    s_cbranch_scc1 KF_np1
    s_movk_i32 s61, {SPIN}
    s_waitcnt vmcnt(4)
    KF_pl0:
    v_cmp_ne_u32 vcc, 0x01010101, v5
    s_cbranch_vccz KF_np1
    s_sub_u32 s61, s61, 1
    s_cbranch_scc1 KF_np1
    s_sleep 1
    buffer_load_dword v5, v4, s[20:23], 0 offen sc1
    s_waitcnt vmcnt(0)
    s_branch KF_pl0
    KF_np1:
    s_waitcnt vmcnt(4)
    s_barrier
    """)
    stamp(a, 14)
    ACCB, BB = 84, 108
    def breads(s):
        pos, ks = s >> 1, s & 1
        b = BB + (s & 1) * 16
        return [f"ds_read_b128 v[{b+4*q}:{b+4*q+3}], v{VA0 if ks == 0 else VA1} offset:{boff(pos) + (q >> 1) * 4096 + (q & 1) * 2048}" for q in range(4)]
    def wload(i, q):
        b = WR + (i % ND) * 16 + q * 4
        a(f"buffer_load_dwordx4 v[{b}:{b+3}], v{VW2+q}, s[16:19], s{RO+i} offen{BSC}")
        vm.issue(("w", i))
    order = [0, 1, 2, 3, 6, 7, 4, 5]
    steps = [p * 2 + k for p in order for k in range(2)]
    def breads2(j):
        s = steps[j]; pos, ks = s >> 1, s & 1
        b = BB + (j & 1) * 16
        return [f"ds_read_b128 v[{b+4*q}:{b+4*q+3}], v{VA0 if ks == 0 else VA1} offset:{boff(pos) + (q >> 1) * 4096 + (q & 1) * 2048}" for q in range(4)]
    for l in breads2(0): a(l)
    wl = [(i, q) for i in range(ND) for q in range(4)]
    FSIG = int(os.environ.get("FSIG", "11"))
    lg = Cnt()
    for j in range(16):
        s = steps[j]
        b = BB + (j & 1) * 16
        a(f"s_waitcnt lgkmcnt({lg.after(('b', j)) if j else 0})")
        nr = breads2(j + 1) if j < 15 else []
        for q in range(4):
            ac = ACCB + 4 * q
            c = "0" if j == 0 else f"v[{ac}:{ac+3}]"
            a(f"v_mfma_f32_16x16x32_bf16 v[{ac}:{ac+3}], v[{X+4*s}:{X+4*s+3}], v[{b+4*q}:{b+4*q+3}], {c}")
            if nr: a(nr[q]); lg.issue(("b", j + 1))
            if q in (1, 3) and wl: wload(*wl.pop(0))
        if j == FSIG:
            a(f"""
            v_mov_b32 v4, {L_CNT}
            v_mov_b32 v5, 1
            s_waitcnt vmcnt({vm.after('h1s')})
            s_mov_b64 exec, 1
            ds_add_rtn_u32 v6, v4, v5
            s_mov_b64 exec, -1
            """)
            lg.issue("cnt")
        if j == FSIG + 2:
            a(f"""
            s_waitcnt lgkmcnt({lg.after('cnt')})
            v_readfirstlane_b32 s48, v6
            s_cmp_lg_u32 s48, 7
            s_cbranch_scc1 KF_nf1
            v_mov_b32 v4, 0
            s_mov_b64 exec, 1
            buffer_store_dword v5, v4, s[16:19], s37 offen sc1
            s_mov_b64 exec, -1
            KF_nf1:
            """)
    while wl: wload(*wl.pop(0))
    stamp(a, 15)
    U, TBL, VT, CI, RD = 16, 32, 40, 48, 56
    a(f"""
    v_lshlrev_b32 v12, 5, v14
    v_add_u32 v12, {L_TABL}, v12
    ds_read_b128 v[{TBL}:{TBL+3}], v12
    ds_read_b128 v[{TBL+4}:{TBL+7}], v12 offset:512
    s_lshl_b32 s48, s34, 12
    v_bfe_u32 v12, v14, 1, 2                ; j
    v_lshlrev_b32 v13, 10, v12
    v_lshl_add_u32 v13, v12, 4, v13
    v_lshl_add_u32 v13, v15, 6, v13
    v_lshrrev_b32 v12, 3, v14
    v_lshl_add_u32 v13, v12, 8, v13
    v_and_b32 v12, 1, v14
    v_lshl_add_u32 v13, v12, 3, v13
    v_add_u32 v{VT}, s48, v13
    v_xor_b32 v{VT+1}, 16, v{VT}
    v_xor_b32 v{VT+2}, 32, v{VT}
    v_xor_b32 v{VT+3}, 48, v{VT}
    v_add_u32 v{VT+4}, s48, v1
    v_xor_b32 v{VT+5}, 16, v{VT+4}
    v_xor_b32 v{VT+6}, 32, v{VT+4}
    v_xor_b32 v{VT+7}, 48, v{VT+4}
    s_lshl_b32 s48, s32, 3
    s_add_u32 s48, s48, s34                 ; tile16
    s_lshl_b32 s48, s48, 16
    s_lshl_b32 s49, s33, 12
    s_add_u32 s57, s48, s49
    ; E8 address
    v_lshrrev_b32 v12, 1, v15
    v_lshlrev_b32 v12, 8, v12
    v_lshl_add_u32 v12, v14, 3, v12
    s_lshl_b32 s48, s34, 9
    s_add_u32 s48, s48, {L_E8}
    v_add_u32 v12, s48, v12
    s_waitcnt lgkmcnt(0)
    """)
    for ct in range(2):
        tb = TBL + 4 * ct
        for r in range(4):
            u = U + ct * 8 + 2 * r
            re = ACCB + (0 * 2 + ct) * 4 + r
            im = ACCB + (1 * 2 + ct) * 4 + r
            a(f"""
            v_mul_f32 v{u}, v{tb+3}, v{im}
            v_mul_f32 v{u+1}, v{tb+3}, v{re}
            v_fma_f32 v{u}, v{tb+2}, v{re}, -v{u}
            v_fma_f32 v{u+1}, v{tb+2}, v{im}, v{u+1}
            """)
    for r in range(1, 4):
        for ct in range(2):
            c = U + ct * 8 + 2 * r; p = c - 2; tb = TBL + 4 * ct
            a(f"v_pk_fma_f32 v[{c}:{c+1}], v[{p}:{p+1}], v[{tb}:{tb+1}], v[{c}:{c+1}] op_sel_hi:[1,0,1]")
            a(f"v_pk_fma_f32 v[{c}:{c+1}], v[{p}:{p+1}], v[{tb}:{tb+1}], v[{c}:{c+1}] op_sel:[1,1,0] op_sel_hi:[0,1,1] neg_lo:[0,1,0]")
    for ct in range(2):
        for e in range(2):
            a(f"v_mov_b32 v{CI+ct*4+e}, 0\nv_mov_b32 v{RD+ct*2+e}, v{U+ct*8+6+e}")
    for ct in range(2):
        for e in range(2):
            a(f"v_permlane16_swap_b32 v{CI+ct*4+e}, v{RD+ct*2+e}")
    for r in range(4):
        for ct in range(2):
            tb = TBL + 4 * ct
            src = CI + ct * 4 + (r & 1) * 2; dst = CI + ct * 4 + ((r + 1) & 1) * 2
            cmul_acc(a, dst, src, tb, None)
            u = U + ct * 8 + 2 * r
            a(f"v_pk_add_f32 v[{u}:{u+1}], v[{u}:{u+1}], v[{dst}:{dst+1}]")
            a(f"ds_write_b64 v{VT+r}, v[{u}:{u+1}] offset:{ct*512}")
    a(f"""
    s_mov_b32 s48, 0xffff0000
    s_mov_b32 s49, 0xffff0000
    s_mov_b64 exec, s[48:49]
    ds_write_b64 v12, v[{U+6}:{U+7}]
    ds_write_b64 v12, v[{U+14}:{U+15}] offset:128
    s_mov_b64 exec, -1
    """)
    for j in range(4):
        a(f"ds_read_b128 v[{RD+4*j}:{RD+4*j+3}], v{VT+4+j} offset:{j*1024}")
    VH, VHR1 = 100, 106
    a(f"""
    s_lshl_b32 s48, s32, 7
    s_lshr_b32 s49, s33, 3
    s_lshl_b32 s49, s49, 5
    s_add_u32 s48, s48, s49
    s_add_u32 s58, s48, {WS_FL}
    v_and_b32 v4, 7, v2
    v_lshlrev_b32 v4, 2, v4
    buffer_load_dword v5, v4, s[16:19], s58 offen sc1
    s_bfe_u32 s48, s33, 0x10002             ; rh
    s_lshl_b32 s48, s48, 2
    s_lshl_b32 s49, s32, 3
    s_add_u32 s48, s48, s49
    s_mul_i32 s48, s48, {FT}
    s_add_u32 s48, s48, s60                 ; + kh*28K
    s_mul_i32 s49, s35, {7 * 1024}
    s_add_u32 s48, s48, s49
    s_add_u32 s48, s48, {WS_H1F}
    v_add_u32 v{VH}, s48, v1
    v_add_u32 v{VH+1}, {FT}, v{VH}
    v_add_u32 v{VH+2}, {2 * FT}, v{VH}
    v_add_u32 v{VH+3}, {3 * FT}, v{VH}
    v_add_u32 v{VHR1}, 65536, v1
    s_cmp_eq_u32 s36, 0
    s_cselect_b32 s53, s{RO}, s{RO+1}
    s_mul_i32 s48, s36, {2 * FT}
    v_add_u32 v12, s48, v{VH}
    v_add_u32 v13, {FT}, v12
    s_lshl_b32 s59, s34, 12                 ; w*4096
    s_lshl_b32 s48, s35, 12
    s_lshl_b32 s49, s36, 11
    s_add_u32 s60, s48, s49
    s_movk_i32 s61, {SPIN}
    s_waitcnt lgkmcnt(0)
    s_barrier
    """)
    stamp(a, 17)
    R = 16
    a(f"""
    s_cmp_lg_u32 s34, 7
    s_cbranch_scc1 KF_nopre0
    v_and_b32 v9, 31, v2
    v_lshlrev_b32 v10, 5, v9
    v_add_u32 v10, {L_TABL}, v10
    ds_read_b64 v[6:7], v10 offset:16
    v_lshlrev_b32 v10, 3, v9
    v_add_u32 v11, {L_E8}, v10
    """)
    for sgm in range(16):
        a(f"ds_read_b64 v[{R+2+2*sgm}:{R+3+2*sgm}], v11 offset:{sgm*256}")
    a(f"""
    v_mov_b32 v{R}, 0
    v_mov_b32 v{R+1}, 0
    s_lshl_b32 s48, s33, 5
    v_add_u32 v9, s48, v9                   ; ch
    v_lshlrev_b32 v10, 4, v9                ; ch*16
    v_lshlrev_b32 v9, 3, v9
    s_lshl_b32 s47, s32, 16
    s_add_u32 s47, s47, {WS_S8X}
    s_waitcnt lgkmcnt(0)
    """)
    for sgm in range(1, 16):
        c = R + 2 + 2 * sgm; p = c - 2
        a(f"v_pk_fma_f32 v[{c}:{c+1}], v[{p}:{p+1}], v[6:7], v[{c}:{c+1}] op_sel_hi:[1,0,1]")
        a(f"v_pk_fma_f32 v[{c}:{c+1}], v[{p}:{p+1}], v[6:7], v[{c}:{c+1}] op_sel:[1,1,0] op_sel_hi:[0,1,1] neg_lo:[0,1,0]")
    a("KF_nopre0:")
    a(f"""
    KF_pl1:
    s_waitcnt vmcnt(0)
    v_cmp_ne_u32 vcc, 1, v5
    s_cbranch_vccz KF_ok1
    s_sub_u32 s61, s61, 1
    s_cbranch_scc1 KF_ok1
    s_sleep 1
    buffer_load_dword v5, v4, s[16:19], s58 offen sc1
    s_branch KF_pl1
    KF_ok1:
    """)
    stamp(a, 18)
    vm = Cnt()
    for i in range(ND): vm.tags[("w", i)] = 0
    for tt in range(4):
        a(f"""
        s_add_u32 m0, s59, {tt * 1024}
        s_nop 0
        buffer_load_dwordx4 v{VH+tt}, s[16:19], s53 offen{BSC} lds
        """)
    vm.issue(("h", 0), 4); vm.tags[("h", 1)] = vm.n
    for i in range(2, 7):
        for j in range(2):
            a(f"""
            s_add_u32 m0, s60, {i * 16384 + j * 1024}
            s_nop 0
            buffer_load_dwordx4 v{12+j}, s[16:19], s{RO+i} offen{BSC} lds
            """)
            vm.issue(("h", i))
        if i == 2:
            for j in range(4):
                a(f"buffer_store_dwordx4 v[{RD+4*j}:{RD+4*j+3}], v1, s[16:19], s57 offen offset:{j*1024} sc1")
            vm.issue("hls", 4)
    a("s_cmp_lg_u32 s34, 7\ns_cbranch_scc1 KF_nopre")
    a(f"""
    s_lshl_b32 s48, s32, 12
    s_add_u32 s48, s48, {WS_E}
    buffer_store_dwordx2 v[{R+32}:{R+33}], v9, s[16:19], s48 offen sc1
    """)
    for q in range(8):
        a(f"s_add_u32 s48, s47, {q * 8192}")
        a(f"buffer_store_dwordx4 v[{R+4*q}:{R+4*q+3}], v10, s[16:19], s48 offen sc1")
    a("KF_nopre:")
    vm.tags["pre"] = vm.n
    ACC2, HB = 84, 108
    CE, CS, BUR, OP = 204, 236, 24, 16
    VHL, VCR = 100, 101
    YO = 64
    def h_reads(i, q):
        b = HB + (q & 1) * 16
        return [f"ds_read_b128 v[{b+4*tt}:{b+4*tt+3}], v{1 if i < 4 else VHR1} offset:{(i & 3) * 16384 + q * 4096 + tt * 1024}" for tt in range(4)]
    a(f"""
    s_and_b32 s35, s34, 1                   ; t16
    s_lshr_b32 s36, s34, 1                  ; gq
    """)
    for i in range(4):
        a(f"s_add_u32 s48, s63, {i}\ns_and_b32 s48, s48, 3\ns_lshl_b32 s48, s48, 2\ns_add_u32 s48, s48, s36\ns_lshl_b32 s{YO+i}, s48, 12")
    a(f"""
    s_lshl_b32 s48, s32, 2
    s_add_u32 s48, s48, s62
    s_lshl_b32 s48, s48, 1
    s_add_u32 s48, s48, s35                 ; tile16
    s_lshl_b32 s68, s48, 16
    s_and_b32 s48, s33, 3
    s_lshl_b32 s48, s48, 1
    s_add_u32 s48, s48, s35
    s_lshl_b32 s48, s48, 17
    s_add_u32 s69, s48, {WS_CF}
    s_lshl_b32 s70, s36, 13                 ; gq*8192
    s_lshl_b32 s48, s35, 12
    s_add_u32 s71, s70, s48                 ; + t16*4096
    s_lshl_b32 s48, s32, 2
    s_add_u32 s48, s48, 3
    v_min_u32 v4, s48, v2
    v_lshrrev_b32 v5, 2, v4
    v_and_b32 v4, 3, v4
    v_lshlrev_b32 v4, 4, v4
    v_lshl_add_u32 v4, v5, 7, v4
    v_lshlrev_b32 v8, 3, v0                 ; tid*8
    v_lshlrev_b32 v9, 4, v0                 ; tid*16
    """)
    def cdma(hs, dt):
        i, ri = hs >> 1, hs & 1
        a(f"""
        s_lshl_b32 s48, s{YO+i}, 1
        s_add_u32 m0, s71, {(hs % 3) * 32768 + dt * 1024}
        s_add_u32 s48, s48, s69
        """)
        if ri or dt: a(f"s_add_u32 s48, s48, {ri * 4096 + dt * 1024}")
        a(f"buffer_load_dwordx4 v1, s[16:19], s48 offen{BSC} lds")
        vm.issue(("c", hs))
    def bu_load(i, j):
        b = BUR + (i % 3) * 16
        a(f"buffer_load_dwordx4 v[{b+4*j}:{b+4*j+3}], v{VHL}, s[16:19], s{YO+i} offen offset:{j*1024}{BSC}")
        vm.issue(("bu", i))
    def wait7(n, tag, lgk):
        if n <= vm.after("pre"):
            a(f"s_waitcnt vmcnt({n}){lgk}")
        else:
            a(f"""
            s_cmp_lg_u32 s34, 7
            s_cbranch_scc1 KF_w7a{tag}
            s_waitcnt vmcnt({min(n + 9, 63)}){lgk}
            s_branch KF_w7b{tag}
            KF_w7a{tag}:
            s_waitcnt vmcnt({n}){lgk}
            KF_w7b{tag}:
            """)
    wait7(vm.after(('h', 0)), "p", "")
    a("s_barrier")
    for l in h_reads(0, 0): a(l)
    stamp(a, 19)
    SIG2 = int(os.environ.get("SIG2", "2"))
    PI = int(os.environ.get("PI", "3"))
    for i in range(7):
        n = vm.after(("w", i))
        if i < 6: n = min(n, vm.after(("h", i + 1)))
        if i == PI + 1:
            a(f"""
            s_movk_i32 s61, {SPIN}
            s_add_u32 s49, s37, 0
            s_waitcnt vmcnt({vm.after('p2')})
            KF_pl2:
            v_and_b32 v10, v10, v11
            v_and_b32 v12, v12, v13
            v_and_b32 v10, v10, v12
            v_cmp_ne_u32 vcc, 1, v10
            s_cbranch_vccz KF_ok2
            s_sub_u32 s61, s61, 1
            s_cbranch_scc1 KF_ok2
            s_sleep 1
            s_mov_b32 s48, {WS_FL + 4096}
            buffer_load_dwordx4 v[10:13], v4, s[16:19], s48 offen sc1
            s_waitcnt vmcnt(0)
            s_branch KF_pl2
            KF_ok2:
            v_add_u32 v{VHL}, s68, v1
            """)
        if i == SIG2: n = min(n, vm.after("pre"))
        wait7(n, str(i), " lgkmcnt(0)")
        a("s_barrier")
        if i == SIG2:
            a(f"""
            s_cmp_lg_u32 s34, 0
            s_cbranch_scc1 KF_nf2
            v_mov_b32 v5, 1
            v_mov_b32 v6, 0
            s_add_u32 s48, s37, 4096
            s_mov_b64 exec, 1
            buffer_store_dword v5, v6, s[16:19], s48 offen sc1
            s_mov_b64 exec, -1
            KF_nf2:
            """)
        b = WR + (i % ND) * 16
        fill = {g: [] for g in range(16)}
        if i == PI: fill[1].append(("p2",))
        if i in (2, 4, 6):
            for dt in range(4): fill[1 + 3 * dt].append(("c", (i - 2) // 2, dt))
        if i == PI + 1:
            for j in range(15): fill[j].append(("e", j))
            fill[15] += [("s", 0), ("s", 1)]
        if i == PI + 2:
            for k in range(3):
                for j in range(4): fill[k * 4 + j].append(("bu", k, j))
        for q in range(4):
            hr = h_reads(i, q + 1) if q < 3 else (h_reads(i + 1, 0) if i < 6 else [])
            hb = HB + (q & 1) * 16
            if q > 0: a("s_waitcnt lgkmcnt(0)")
            for tt in range(4):
                g = q * 4 + tt
                ac = ACC2 + tt * 4
                c = "0" if (i == 0 and q == 0) else f"v[{ac}:{ac+3}]"
                a(f"v_mfma_f32_16x16x32_bf16 v[{ac}:{ac+3}], v[{b+4*q}:{b+4*q+3}], v[{hb+4*tt}:{hb+4*tt+3}], {c}")
                if hr: a(hr[tt])
                for f in fill[g]:
                    if f[0] == "p2":
                        a(f"s_mov_b32 s48, {WS_FL + 4096}\nbuffer_load_dwordx4 v[10:13], v4, s[16:19], s48 offen sc1")
                        vm.issue("p2")
                    elif f[0] == "c": cdma(f[1], f[2])
                    elif f[0] == "bu": bu_load(f[1], f[2])
                    elif f[0] == "e":
                        j = f[1]
                        a(f"""
                        s_sub_u32 s48, s32, {15 - j}
                        s_lshl_b32 s49, s48, 12
                        s_add_u32 s49, s49, {WS_E}
                        s_cmp_ge_u32 s32, {15 - j}
                        s_cselect_b32 s49, s49, {WS_SIZE}
                        buffer_load_dwordx2 v[{CE+2*j}:{CE+2*j+1}], v8, s[16:19], s49 offen sc1
                        """)
                        vm.issue("e")
                    elif f[0] == "s":
                        a(f"""
                        s_lshl_b32 s48, s32, 16
                        s_lshl_b32 s49, s62, 14
                        s_add_u32 s48, s48, s49
                        s_add_u32 s48, s48, {WS_S8X + f[1] * 8192}
                        buffer_load_dwordx4 v[{CS+4*f[1]}:{CS+4*f[1]+3}], v9, s[16:19], s48 offen sc1
                        """)
                        vm.issue("e")
            if i + ND < 7: wload(i + ND, q)
        stamp(a, 32 + i)
    SACC, HF, TB, CF, SELP, SELN, HR, HI = 140, 172, 108, 204, 72, 78, 84, 92
    VPA, VCA = 236, 240
    CW, CT = 172, 180
    a(f"""
    s_lshl_b32 s48, s38, 14
    s_add_u32 s48, s48, s52
    s_add_u32 s57, s48, {WS_OP}
    s_xor_b32 s58, s57, {8 << 14}
    s_cmp_ge_u32 s33, 8
    s_cbranch_scc1 KF_x1
    buffer_store_dwordx4 v[{ACC2+8}:{ACC2+11}], v1, s[16:19], s57 offen sc1
    buffer_store_dwordx4 v[{ACC2+12}:{ACC2+15}], v1, s[16:19], s57 offen offset:1024 sc1
    """)
    for r in range(8): a(f"v_mov_b32 v{OP+r}, v{ACC2+r}")
    a(f"""
    s_branch KF_x2
    KF_x1:
    buffer_store_dwordx4 v[{ACC2}:{ACC2+3}], v1, s[16:19], s57 offen sc1
    buffer_store_dwordx4 v[{ACC2+4}:{ACC2+7}], v1, s[16:19], s57 offen offset:1024 sc1
    """)
    for r in range(8): a(f"v_mov_b32 v{OP+r}, v{ACC2+8+r}")
    a("KF_x2:")
    vm.issue("ops", 2)
    cplx_sq(a, CT, L8, CW)
    cplx_sq(a, CT + 2, CT, CW)
    cplx_sq(a, CT + 4, CT + 2, CW)
    cplx_sq(a, CT + 6, CT + 4, CW)
    a(f"""
    s_lshl_b32 s48, s63, 7
    v_subrev_u32 v6, s48, v0
    v_and_b32 v6, 511, v6                   ; idx
    v_lshlrev_b32 v6, 3, v6
    v_add_u32 v12, {L_CR}, v6
    v_xor_b32 v13, 128, v12
    s_waitcnt vmcnt({vm.after('e')})
    """)
    cur = CE
    for j in range(1, 15):
        cmul_acc(a, CE + 2 * j, cur, CT + 6, CE + 2 * j) if False else None
        d = CE + 2 * j
        a(f"v_pk_fma_f32 v[{d}:{d+1}], v[{cur}:{cur+1}], v[{CT+6}:{CT+7}], v[{d}:{d+1}] op_sel_hi:[1,0,1]")
        a(f"v_pk_fma_f32 v[{d}:{d+1}], v[{cur}:{cur+1}], v[{CT+6}:{CT+7}], v[{d}:{d+1}] op_sel:[1,1,0] op_sel_hi:[0,1,1] neg_lo:[0,1,0]")
        cur = d
    a(f"v_mov_b32 v{CW}, v{cur}\nv_mov_b32 v{CW+1}, v{cur+1}")
    a("s_bitcmp0_b32 s62, 0\ns_cbranch_scc1 KF_h1")
    cmul_acc(a, CW + 2, CW, CT + 2, None)
    a(f"v_mov_b32 v{CW}, v{CW+2}\nv_mov_b32 v{CW+1}, v{CW+3}")
    a("KF_h1:\ns_bitcmp0_b32 s62, 1\ns_cbranch_scc1 KF_h2")
    cmul_acc(a, CW + 2, CW, CT + 4, None)
    a(f"v_mov_b32 v{CW}, v{CW+2}\nv_mov_b32 v{CW+1}, v{CW+3}")
    a("KF_h2:")
    cur = CW
    for q in range(4):
        a(f"v_pk_add_f32 v[{CS+2*q}:{CS+2*q+1}], v[{CS+2*q}:{CS+2*q+1}], v[{cur}:{cur+1}]")
        a(f"ds_write_b64 v{12 if q % 2 == 0 else 13}, v[{CS+2*q}:{CS+2*q+1}] offset:{q*4096}")
        if q < 3:
            nxt = CW + 2 if cur == CW else CW
            cmul_acc(a, nxt, cur, L8, None)
            cur = nxt
    a(f"""
    v_and_b32 v4, 7, v14                    ; k
    v_and_b32 v5, 3, v4
    v_lshrrev_b32 v6, 2, v4
    v_lshl_or_b32 v5, v6, 3, v5             ; f(k)
    v_lshlrev_b32 v6, 2, v15
    v_xor_b32 v5, v5, v6
    v_lshlrev_b32 v5, 4, v5
    v_lshl_add_u32 v5, v4, 12, v5
    s_lshl_b32 s48, s36, 8
    s_add_u32 s49, s48, {L_PW}
    s_waitcnt lgkmcnt(0)
    v_add_u32 v{VPA}, s49, v5
    v_lshrrev_b32 v4, 3, v14                ; sp
    v_lshlrev_b32 v5, 3, v4
    v_xor_b32 v5, v5, v6
    v_lshlrev_b32 v5, 4, v5
    v_lshl_add_u32 v5, v4, 12, v5
    s_lshl_b32 s49, s35, 13
    s_add_u32 s49, s49, s48
    s_add_u32 s49, s49, {L_CR}
    v_add_u32 v{VCA}, s49, v5
    v_add_u32 v{VCR}, s70, v1
    """)
    for j in range(1, 4):
        a(f"v_xor_b32 v{VPA+j}, {j*16}, v{VPA}\nv_xor_b32 v{VCA+j}, {j*16}, v{VCA}")
    a(f"""
    v_lshrrev_b32 v4, 2, v14
    v_cmp_eq_u32 vcc, v4, v15
    v_and_b32 v4, 1, v14
    v_lshlrev_b32 v4, 4, v4
    v_mov_b32 v5, 0x3f80
    v_lshlrev_b32 v7, v4, v5
    v_cndmask_b32 v7, 0, v7, vcc
    v_mov_b32 v5, 0xbf80
    v_lshlrev_b32 v8, v4, v5
    v_cndmask_b32 v8, 0, v8, vcc            ; -1.0
    v_and_b32 v5, 2, v14
    v_cmp_eq_u32 vcc, 0, v5
    v_cndmask_b32 v{SELP+2}, 0, v7, vcc
    v_cndmask_b32 v{SELP+3}, v7, 0, vcc
    v_cndmask_b32 v{SELN+2}, 0, v8, vcc
    v_cndmask_b32 v{SELN+3}, v8, 0, vcc
    """)
    for S in (SELP, SELN):
        for i in (0, 1, 4, 5): a(f"v_mov_b32 v{S+i}, 0")
    a(f"s_waitcnt vmcnt({min(vm.after(('c', 0)), vm.after(('bu', 0)))})\ns_barrier")
    stamp(a, 40)
    def tb_reads(i):
        o = []
        for j in range(4):
            o.append(f"ds_read_b128 v[{TB+4*j}:{TB+4*j+3}], v{VPA+j} offset:{i*1024}")
            o.append(f"ds_read_b128 v[{TB+16+4*j}:{TB+16+4*j+3}], v{VCA+j} offset:{i*1024}")
        return o
    def scan_list(i):
        b = BUR + (i % 3) * 16; F = HF + (i & 1) * 16
        o1 = []
        for k in range(8):
            p = TB + 2 * k; c = TB + 16 + 2 * k; h = b + 2 * k
            o1 += [f"v_fma_f32 v{h}, v{p}, v{c}, v{h}",
                   f"v_fma_f32 v{h+1}, v{p}, v{c+1}, v{h+1}",
                   f"v_fma_f32 v{HR+k}, -v{p+1}, v{c+1}, v{h}",
                   f"v_fma_f32 v{HI+k}, v{p+1}, v{c}, v{h+1}"]
        hi = []
        for q in range(4):
            hi.append(f"v_cvt_pk_bf16_f32 v{F+q}, v{HR+2*q}, v{HR+2*q+1}")
        for q in range(4):
            hi.append(f"v_cvt_pk_bf16_f32 v{F+8+q}, -v{HI+2*q}, -v{HI+2*q+1}")
        um = [f"v_mfma_f32_16x16x32_bf16 v[{b}:{b+3}], v[{SELN+2}:{SELN+5}], v[{F}:{F+3}], v[{HR}:{HR+3}]",
              f"v_mfma_f32_16x16x32_bf16 v[{b+4}:{b+7}], v[{SELN}:{SELN+3}], v[{F}:{F+3}], v[{HR+4}:{HR+7}]",
              f"v_mfma_f32_16x16x32_bf16 v[{b+8}:{b+11}], v[{SELP+2}:{SELP+5}], v[{F+8}:{F+11}], v[{HI}:{HI+3}]",
              f"v_mfma_f32_16x16x32_bf16 v[{b+12}:{b+15}], v[{SELP}:{SELP+3}], v[{F+8}:{F+11}], v[{HI+4}:{HI+7}]"]
        lo = []
        for q in range(4):
            lo.append(f"v_cvt_pk_bf16_f32 v{F+4+q}, v{b+2*q}, v{b+2*q+1}")
        for q in range(4):
            lo.append(f"v_cvt_pk_bf16_f32 v{F+12+q}, -v{b+8+2*q}, -v{b+8+2*q+1}")
        return o1, hi, um, lo
    def c_reads(Qn):
        hs, c2 = Qn >> 1, Qn & 1
        b = CF + (Qn & 1) * 16
        return [f"ds_read_b128 v[{b+4*dt}:{b+4*dt+3}], v{VCR + (1 if hs % 3 == 2 else 0)} offset:{((hs % 3) & 1) * 32768 + c2 * 4096 + dt * 1024}" for dt in range(4)]
    a(f"v_add_u32 v{VCR+1}, 65536, v{VCR}")
    for l in tb_reads(0): a(l)
    for l in c_reads(0): a(l)
    a("s_waitcnt lgkmcnt(4)")
    o1, hi, um, lo = scan_list(0)
    for l in o1 + hi + um: a(l)
    for l in lo: a(l)
    for j in range(4): bu_load(3, j)
    stamp(a, 41)
    XR, DR, PR = 40, 44, 48
    def epi_loads():
        a(f"""
        s_load_dwordx2 s[72:73], s[0:1], 64     ; Dskip
        s_load_dwordx2 s[74:75], s[0:1], 96     ; out
        s_lshl_b32 s48, s32, 7
        s_lshl_b32 s49, s62, 5
        s_add_u32 s48, s48, s49
        v_add_u32 v6, s48, v14
        v_lshlrev_b32 v7, 10, v6
        s_and_b32 s48, s33, 3
        s_lshl_b32 s48, s48, 8
        s_lshl_b32 s49, s34, 5
        s_add_u32 s48, s48, s49
        v_lshl_add_u32 v8, v15, 3, s48
        v_add_u32 v7, v7, v8
        s_movk_i32 s48, 16384
        buffer_load_dwordx2 v[{XR}:{XR+1}], v7, s[4:7], 0 offen
        buffer_load_dwordx2 v[{XR+2}:{XR+3}], v7, s[4:7], s48 offen
        v_lshlrev_b32 v7, 1, v7
        """)
        vm.issue("x", 2)
    lg = Cnt()
    lg.issue(("q", 0), 4)
    for i in range(4):
        fill = {g: [] for g in range(32)}
        if i < 3:
            o1, hi, um, lo = scan_list(i + 1)
            for k, l in enumerate(tb_reads(i + 1)): fill[k // 2].append(("t", l))
            fill[6].append(("tw", i + 1))
            for k, l in enumerate(o1): fill[6 + k // 2].append(l)
            for k, l in enumerate(hi): fill[22 + k // 3].append(l)
            fill[25] += um
            for k, l in enumerate(lo): fill[29 + k // 3].append(l)
        for ri in range(2):
            hs = 2 * i + ri
            if hs + 3 <= 7:
                for dt in range(4): fill[ri * 16 + 9 + dt].append(("c", hs + 3, dt))
        if i == 1: fill[2].append(("epi",))
        if i == 2: fill[2].append(("p3",)); fill[16].append(("dsk",))
        if i == 3: fill[2].append(("c3",))
        for q in range(4):
            Qn = i * 4 + q
            hs = Qn >> 1
            if q & 1:
                ws_ = []
                if hs + 1 <= 7: ws_.append(vm.after(("c", hs + 1)))
                if Qn == 3: ws_.append(vm.after("ops"))
                w = f"vmcnt({min(ws_)}) " if ws_ else ""
                a(f"s_waitcnt {w}lgkmcnt(0)\ns_barrier")
                lg = Cnt(); lg.tags[("q", Qn)] = 0; lg.tags["t"] = 0
                if Qn == 3:
                    a(f"""
                    s_cmp_lg_u32 s34, 0
                    s_cbranch_scc1 KF_nf3
                    v_mov_b32 v5, 1
                    v_mov_b32 v6, 0
                    s_mov_b64 exec, 1
                    buffer_store_dword v5, v6, s[16:19], s39 offen sc1
                    s_mov_b64 exec, -1
                    KF_nf3:
                    """)
            else:
                a(f"s_waitcnt lgkmcnt({lg.after(('q', Qn))})")
            nq = c_reads(Qn + 1) if Qn < 15 else []
            for k in range(8):
                g = q * 8 + k
                pl = (q >> 1) * 2 + (k >> 2); dt = k & 3
                ac = SACC + ((q & 1) * 4 + dt) * 4
                cf = CF + (q & 1) * 16 + dt * 4
                h = HF + (i & 1) * 16 + 4 * pl
                c = "0" if (i == 0 and q < 2 and k < 4) else f"v[{ac}:{ac+3}]"
                a(f"v_mfma_f32_16x16x32_bf16 v[{ac}:{ac+3}], v[{cf}:{cf+3}], v[{h}:{h+3}], {c}")
                if k < 4 and nq:
                    a(nq[k]); lg.issue(("q", Qn + 1))
                for l in fill[g]:
                    if isinstance(l, str): a(l)
                    elif l[0] == "t": a(l[1]); lg.issue("t")
                    elif l[0] == "tw": a(f"s_waitcnt vmcnt({vm.after(('bu', l[1]))}) lgkmcnt({lg.after('t')})")
                    elif l[0] == "c": cdma(l[1], l[2])
                    elif l[0] == "epi": epi_loads()
                    elif l[0] == "dsk":
                        a("s_waitcnt lgkmcnt(0)")
                        lg = Cnt(); lg.tags[("q", Qn)] = 0; lg.tags[("q", Qn + 1)] = 0; lg.tags["t"] = 0
                        srd(a, 12, 72, 1024)
                        srd(a, 8, 74, 2048 * 2048)
                        a(f"buffer_load_dwordx2 v[{DR}:{DR+1}], v8, s[12:15], 0 offen")
                        vm.issue("x")
                    elif l[0] == "p3":
                        a(f"""
                        s_xor_b32 s59, s39, {8 << 7}
                        v_mov_b32 v10, 0
                        buffer_load_dword v9, v10, s[16:19], s59 offen sc1
                        """)
                        vm.issue("p3")
                    elif l[0] == "c3":
                        a(f"""
                        s_movk_i32 s61, {SPIN}
                        s_waitcnt vmcnt({vm.after('p3')})
                        KF_pl3:
                        v_cmp_ne_u32 vcc, 1, v9
                        s_cbranch_vccz KF_ok3
                        s_sub_u32 s61, s61, 1
                        s_cbranch_scc1 KF_ok3
                        s_sleep 1
                        buffer_load_dword v9, v10, s[16:19], s59 offen sc1
                        s_waitcnt vmcnt(0)
                        s_branch KF_pl3
                        KF_ok3:
                        buffer_load_dwordx4 v[{PR}:{PR+3}], v1, s[16:19], s58 offen sc1
                        buffer_load_dwordx4 v[{PR+4}:{PR+7}], v1, s[16:19], s58 offen offset:1024 sc1
                        """)
                        vm.issue("pr", 2)
        stamp(a, 42 + i)
    RR, M, XF, XN, DU, TMP, T2 = 172, 56, 108, 116, 124, 128, 84
    a(f"""
    s_lshl_b32 s48, s35, 2
    s_add_u32 s48, s48, s36
    s_lshl_b32 s48, s48, 10
    s_add_u32 s48, s48, {L_X}
    v_add_u32 v11, s48, v1
    s_lshl_b32 s48, s34, 13
    s_add_u32 s48, s48, {L_X}
    v_add_u32 v12, s48, v1
    """)
    for dt in range(8): a(f"ds_write_b128 v11, v[{SACC+4*dt}:{SACC+4*dt+3}] offset:{dt*8192}")
    a(f"s_mov_b32 s53, {f2u(-1.4426950408889634):#x}\ns_waitcnt vmcnt(0)")
    def rnd(base, n, tmp):
        for e in range(n // 2): a(f"v_cvt_pk_bf16_f32 v{tmp+e}, v{base+2*e}, v{base+1+2*e}")
        for e in range(n // 2): a(f"v_lshlrev_b32 v{base+2*e}, 16, v{tmp+e}\nv_and_b32 v{base+1+2*e}, 0xffff0000, v{tmp+e}")
    for e in range(8): a(f"v_add_f32 v{OP+e}, v{OP+e}, v{PR+e}")
    a("s_waitcnt lgkmcnt(0)\ns_barrier")
    stamp(a, 46)
    for k in range(8): a(f"ds_read_b128 v[{RR+4*k}:{RR+4*k+3}], v12 offset:{k*1024}")
    rnd(OP, 8, TMP)
    for e in range(8): a(f"v_mul_f32 v{T2+e}, s53, v{OP+e}")
    for e in range(8): a(f"v_exp_f32 v{T2+e}, v{T2+e}")
    for e in range(8): a(f"v_add_f32 v{T2+e}, 1.0, v{T2+e}")
    for e in range(8): a(f"v_rcp_f32 v{T2+e}, v{T2+e}")
    for e in range(8): a(f"v_mul_f32 v{OP+e}, v{OP+e}, v{T2+e}")
    rnd(OP, 8, TMP)
    for e in range(4):
        a(f"v_lshlrev_b32 v{XF+2*e}, 16, v{XR+e}\nv_and_b32 v{XF+1+2*e}, 0xffff0000, v{XR+e}")
    for e in range(2):
        a(f"v_lshlrev_b32 v{DU+2*e}, 16, v{DR+e}\nv_and_b32 v{DU+1+2*e}, 0xffff0000, v{DR+e}")
    for e in range(8): a(f"v_sub_f32 v{XN+e}, v{XF+e}, v{ST+2*(e>>2)}")
    rnd(XN, 8, TMP)
    for e in range(8): a(f"v_mul_f32 v{XN+e}, v{XN+e}, v{ST+1+2*(e>>2)}")
    rnd(XN, 8, TMP)
    for e in range(8): a(f"v_mul_f32 v{XN+e}, v{XN+e}, v{DU+(e&3)}")
    rnd(XN, 8, TMP)
    a("s_waitcnt lgkmcnt(0)")
    for tq in range(2):
        for r in range(4):
            b = RR + tq * 16 + r
            a(f"v_add_f32 v{b}, v{b}, v{b+4}\nv_add_f32 v{b+8}, v{b+8}, v{b+12}")
    for tq in range(2):
        for r in range(4):
            b = RR + tq * 16 + r
            a(f"v_add_f32 v{M+tq*4+r}, v{b}, v{b+8}")
    for e in range(8): a(f"v_fma_f32 v{M+e}, v{M+e}, 2.0, v{XN+e}")
    for e in range(8): a(f"v_mul_f32 v{M+e}, v{M+e}, v{OP+e}")
    for e in range(8): a(f"v_add_f32 v{M+e}, v{M+e}, v{XF+e}")
    a(f"""
    s_mov_b32 s48, 32768
    buffer_store_dwordx4 v[{M}:{M+3}], v7, s[8:11], 0 offen
    buffer_store_dwordx4 v[{M+4}:{M+7}], v7, s[8:11], s48 offen
    """)
    if STAMP: a("s_waitcnt vmcnt(0)")
    stamp(a, 47)
    stamp_store(a, 16, 0)
    a("KF_done:\ns_endpgm")

HEADER = open("recurrent_scan__ssm_conv_s5__dense_activation_silu__prompt.s.ref").read().split("; Override launch")[0]

def build():
    a = Asm()
    a.raw(HEADER.rstrip("\n"))
    a.raw(f"; @launch grid=(256,1,1) block=(512,1,1) lds={KF_LDS}")
    a.raw('.amdgcn_target "amdgcn-amd-amdhsa--gfx950"\n.text')
    gen_kf(a)
    a.raw('.section .rodata,"a"\n.p2align 6')
    a.raw(kd(KNAME, 256))
    return a.text()

if __name__ == "__main__":
    STAMP = len(sys.argv) > 2 and "stamp" in sys.argv[2]
    open(sys.argv[1], "w").write(build())
```

```python
import sys, struct
sys.path.insert(0, "dev")
from asmlib import Asm, kd

import os
PAD = int(os.environ.get("PAD", "0"))
ROT = int(os.environ.get("ROT", "1"))
MAP = int(os.environ.get("MAP", "1"))
BU_JS = 8192 + 512 * PAD
BU_SS = 4 * BU_JS + 256 * PAD
FT = 56 * 1024 + 256 * PAD
WS_BU  = 0
WS_H1F = 10 << 20
WS_W2F = 18 << 20
WS_S8X = 20 << 20
WS_E   = 21 << 20
WS_TP  = (21 << 20) + (64 << 10)
WS_TL  = (21 << 20) + (128 << 10)
WS_ST  = (21 << 20) + (192 << 10)
WS_CF  = 22 << 20
WS_FL  = 23 << 20
WS_G   = 26 << 20
WS_DBG = 24 << 20
WS_SIZE = 28 << 20
STAMP = False

def stamp(a, i):
    if not STAMP: return
    a(f"""
    s_memtime s[96:97]
    s_waitcnt lgkmcnt(0)
    v_writelane_b32 v255, s96, {i}
    """)

def rstamp(a, i):
    if not STAMP: return
    a(f"""
    s_memrealtime s[96:97]
    s_waitcnt lgkmcnt(0)
    v_writelane_b32 v255, s96, {i}
    """)

def stamp_store(a, srd, k):
    if not STAMP: return
    rstamp(a, 63)
    a(f"""
    s_mov_b64 exec, -1
    v_and_b32 v254, 63, v0
    v_lshlrev_b32 v254, 2, v254
    s_lshl_b32 s96, s2, 3
    s_add_u32 s96, s96, s34
    s_lshl_b32 s96, s96, 8
    s_add_u32 s96, s96, {WS_DBG + k * (1 << 20)}
    buffer_store_dword v255, v254, s[{srd}:{srd+3}], s96 offen
    """)

def srd(a, d, base, nbytes):
    a(f"""
    s_mov_b32 s{d}, s{base}
    s_and_b32 s{d+1}, s{base+1}, 0xffff
    s_mov_b32 s{d+2}, {nbytes}
    s_mov_b32 s{d+3}, 0x00020000
    """)

def f2u(x):
    return struct.unpack("<I", struct.pack("<f", x))[0]

def cplx_sq(a, d, s, t):
    a(f"""
    v_mul_f32 v{t}, v{s+1}, v{s+1}
    v_mul_f32 v{d+1}, v{s}, v{s+1}
    v_fma_f32 v{d}, v{s}, v{s}, -v{t}
    v_add_f32 v{d+1}, v{d+1}, v{d+1}
    """)

def cmul_acc(a, d, x, m, add):
    if add is None:
        a(f"v_pk_mul_f32 v[{d}:{d+1}], v[{x}:{x+1}], v[{m}:{m+1}] op_sel_hi:[1,0]")
    else:
        a(f"v_pk_fma_f32 v[{d}:{d+1}], v[{x}:{x+1}], v[{m}:{m+1}], v[{add}:{add+1}] op_sel_hi:[1,0,1]")
    a(f"v_pk_fma_f32 v[{d}:{d+1}], v[{x}:{x+1}], v[{m}:{m+1}], v[{d}:{d+1}] op_sel:[1,1,0] op_sel_hi:[0,1,1] neg_lo:[0,1,0]")

class Cnt:
    def __init__(self): self.n = 0; self.tags = {}
    def issue(self, tag=None, k=1):
        self.n += k
        if tag is not None: self.tags[tag] = self.n
    def after(self, tag): return self.n - self.tags[tag]
    def copy(self):
        c = Cnt(); c.n = self.n; c.tags = dict(self.tags); return c

def interleave(a, main, fill, lead=0):
    k = 0
    for l in fill[:lead]: a(l)
    k = lead
    n = len(main)
    rest = len(fill) - k
    for i, m in enumerate(main):
        a(m)
        tgt = lead + (rest * (i + 1)) // n
        while k < tgt:
            a(fill[k]); k += 1

L_M = 131072
L_TAB, L_ST, L_Z, L_E16, L_HIN, L_CNT = (L_M, L_M + 20480, L_M + 21504, L_M + 23552, L_M + 25600, L_M + 25856)
KF_LDS = 163840
WS_HF = 0
WS_OP = 26 << 20
WS_TK = WS_FL + 65536
WS_SIZE = 40 << 20
SPIN = 0x4000
KNAME = "recurrent_scan__ssm_conv_s5__dense_activation_silu__prompt_kernel"
def env(n, d): return int(os.environ.get(n, str(d)))
FORCE = env("FORCE", 0)
TOUCH = env("TOUCH", 1)

def gen_kf(a):
    X, MR, NM, TM = 16, 80, 84, 88
    ACC, BF = 104, 132
    ACCB, BB = 132, 148
    U, Q, MM, LAM, COEF, L4, L16, G1, GG = 164, 180, 184, 188, 192, 196, 200, 204, 208
    WA, WB = 212, 216
    VF, VW, VC, VHB, VW2 = 220, 234, 235, 237, 238
    SELR, VA, W2R, CRR, VXS, VXR, VB, VT = 104, 110, 116, 120, 124, 126, 128, 129
    vm = Cnt()
    _af = vm.after
    vm.after = lambda tg: min(63, _af(tg))
    tail = []
    ndual = [0]
    def dual(lines):
        k = ndual[0]; ndual[0] += 1
        a(f"s_cmp_lg_u32 s101, 0\ns_cbranch_scc1 KF_alt{k}")
        for l in lines: a(l)
        a.raw(f"KF_j{k}:")
        tail.append(f"KF_alt{k}:\n    s_nop 7\n    s_nop 7\n" + "".join(f"    {l} sc1\n" for l in lines) + f"    s_nop 7\n    s_branch KF_j{k}")
    a.raw(f".globl {KNAME}\n.p2align 8\n.type {KNAME},@function\n{KNAME}:")
    a("""
    s_cmp_ge_u32 s2, 256
    s_cbranch_scc1 KF_done
    """)
    rstamp(a, 62)
    stamp(a, 30)
    a(f"""
    s_getreg_b32 s3, hwreg(HW_REG_XCC_ID, 0, 3)
    s_mov_b32 s101, 0                       ; mode
    KF_top:
    s_load_dwordx16 s[72:87], s[0:1], 0
    s_load_dwordx4 s[88:91], s[0:1], 80     ; w1 w2
    s_load_dwordx4 s[92:95], s[0:1], 104
    v_lshrrev_b32 v1, 6, v0
    v_and_b32 v2, 63, v0                    ; lane
    v_readfirstlane_b32 s34, v1             ; wave
    v_and_b32 v14, 15, v2                   ; n
    v_lshrrev_b32 v15, 4, v2                ; g
    v_lshlrev_b32 v1, 4, v2                 ; lane*16
    s_and_b32 s35, s34, 3
    s_lshr_b32 s36, s34, 2
    s_lshl_b32 s51, s34, 10                 ; wave*1024
    s_lshl_b32 s52, s34, 14                 ; region
    s_cmp_lg_u32 s34, 2
    s_cbranch_scc1 KF_nz0
    v_mov_b32 v16, 0
    v_mov_b32 v17, 0
    v_mov_b32 v18, 0
    v_mov_b32 v19, 0
    v_add_u32 v9, {L_Z}, v1
    ds_write_b128 v9, v[16:19]
    ds_write_b128 v9, v[16:19] offset:1024
    v_mov_b32 v9, {L_CNT}
    ds_write_b128 v9, v[16:19]
    ds_write_b128 v9, v[16:19] offset:16
    KF_nz0:
    s_and_b32 s63, s3, 1
    s_bfe_u32 s48, s2, 0x10005
    s_cmp_lg_u32 s101, 0
    s_cselect_b32 s63, s48, s63
    s_lshl_b32 s48, s63, 9
    v_lshl_add_u32 v5, v0, 1, s48
    s_lshl_b32 s57, s2, 3
    s_add_u32 s57, s57, s34                 ; b
    s_sub_u32 s48, s57, 256
    s_cmp_ge_u32 s57, 1792
    s_cselect_b32 s57, s48, s57
    s_lshr_b32 s58, s57, 5                  ; kstep
    s_and_b32 s59, s57, 31                  ; dtile
    v_lshrrev_b32 v12, 1, v2
    v_lshlrev_b32 v12, 10, v12
    v_and_b32 v13, 1, v2
    v_lshl_add_u32 v12, v13, 4, v12
    v_lshlrev_b32 v13, 10, v14
    v_lshl_add_u32 v13, v15, 4, v13
    v_mov_b32 v4, 31
    v_mov_b32 v8, 0
    v_lshlrev_b32 v3, 7, v2                 ; lane*128
    v_mov_b32 v244, 0
    v_mov_b32 v245, 0
    v_mov_b32 v246, 0
    v_mov_b32 v247, 0
    s_lshr_b32 s48, s34, 1
    s_mul_i32 s49, s48, 58
    s_add_u32 s49, s49, 37
    s_mul_i32 s49, s49, s2
    s_lshr_b32 s49, s49, 5
    s_lshr_b32 s50, s2, 3
    s_cmp_eq_u32 s48, 0
    s_cselect_b32 s49, s50, s49
    s_and_b32 s49, s49, 31
    s_lshl_b32 s49, s49, 1
    s_and_b32 s48, s34, 1
    s_add_u32 s49, s49, s48
    s_lshl_b32 s60, s49, 13                 ; x group * 8192
    s_lshr_b32 s48, s3, 1
    s_lshl_b32 s48, s48, 19
    s_add_u32 s60, s60, s48
    s_mul_i32 s49, s35, 58
    s_add_u32 s49, s49, 37
    s_mul_i32 s49, s49, s2
    s_lshr_b32 s49, s49, 5
    s_cmp_eq_u32 s35, 0
    s_cselect_b32 s49, s50, s49
    s_and_b32 s49, s49, 31
    s_lshl_b32 s61, s49, 13                 ; B group * 8192
    s_lshl_b32 s48, s63, 18
    s_add_u32 s61, s61, s48
    """)
    if STAMP: a("s_memtime s[98:99]")
    a("s_waitcnt lgkmcnt(0)")
    if STAMP: a("v_writelane_b32 v255, s98, 31")
    srd(a, 16, 94, WS_SIZE)
    a(f"""
    s_xor_b32 s48, s34, 4
    s_or_b32 s48, s48, s101
    s_cmp_lg_u32 s48, 0
    s_cbranch_scc1 KF_nt0
    s_lshl_b32 s48, s3, 12
    s_add_u32 s48, s48, {WS_TK}
    s_mov_b64 exec, 1
    buffer_atomic_inc v4, v8, s[16:19], s48 offen sc0 sc1
    s_mov_b64 exec, -1
    KF_nt0:
    s_barrier
    """)
    stamp(a, 0)
    srd(a, 8, 74, 1024)
    srd(a, 12, 76, 1024)
    srd(a, 24, 86, 1024)
    srd(a, 28, 90, 1792 * 1024)
    a(f"""
    s_cmp_lg_u32 s36, 0
    s_cbranch_scc1 KF_np
    buffer_load_ushort v6, v5, s[8:11], 0 offen
    buffer_load_ushort v7, v5, s[12:15], 0 offen
    buffer_load_ushort v11, v5, s[24:27], 0 offen
    KF_np:
    s_lshl_b32 s48, s58, 15
    s_lshl_b32 s49, s59, 5
    s_add_u32 s48, s48, s49
    buffer_load_dwordx4 v[{W2R}:{W2R+3}], v12, s[28:31], s48 offen
    s_bitcmp0_b32 s2, 1
    s_cselect_b32 s48, s82, s84
    s_cselect_b32 s49, s83, s85
    """)
    vm.issue("w2r")
    srd(a, 24, 48, 512 * 1024)
    a(f"""
    s_cmp_eq_u32 s36, 0
    s_cbranch_scc1 KF_nc0
    s_lshr_b32 s48, s2, 6                   ; cq
    s_lshl_b32 s48, s48, 3
    s_and_b32 s49, s2, 1
    s_lshl_b32 s49, s49, 2
    s_add_u32 s48, s48, s49
    s_add_u32 s48, s48, s35                 ; d tile
    s_lshl_b32 s48, s48, 14
    s_bfe_u32 s49, s2, 0x40002
    s_lshl_b32 s49, s49, 6
    s_add_u32 s48, s48, s49
    buffer_load_dwordx4 v[{CRR}:{CRR+3}], v13, s[24:27], s48 offen
    KF_nc0:
    """)
    srd(a, 4, 72, 2048 * 1024)
    srd(a, 20, 92, 256)
    a("""
    s_cmp_lt_u32 s34, 4
    s_cselect_b32 s48, s78, s80
    s_cselect_b32 s49, s79, s81
    """)
    srd(a, 8, 48, 512 * 1024)
    srd(a, 12, 88, 512 * 3584)
    if TOUCH:
        a("buffer_load_dword v16, v3, s[4:7], s60 offen\nbuffer_load_dword v17, v3, s[8:11], s61 offen")
        vm.issue("tch", 2)
    a(f"""
    v_lshrrev_b32 v9, 3, v2                 ; r8
    v_and_b32 v10, 7, v2                    ; slot
    v_lshrrev_b32 v12, 1, v9
    v_xor_b32 v13, v12, v10
    v_lshlrev_b32 v{VXS}, 10, v9
    v_lshl_add_u32 v{VXS}, v13, 4, v{VXS}
    v_xor_b32 v13, 4, v13
    v_lshlrev_b32 v{VXS+1}, 10, v9
    v_lshl_add_u32 v{VXS+1}, v13, 4, v{VXS+1}
    v_add_u32 v{VXS+1}, 8192, v{VXS+1}
    s_and_b32 s48, s34, 1
    s_lshl_b32 s48, s48, 2
    v_or_b32 v12, s48, v12
    v_xor_b32 v12, v12, v10
    s_lshl_b32 s48, s35, 3
    v_add_u32 v13, s48, v9
    v_lshlrev_b32 v13, 10, v13
    v_lshl_add_u32 v{VB}, v12, 4, v13
    v_bfe_u32 v12, v14, 1, 3                ; key = (n>>1)&7
    v_xor_b32 v12, v12, v15                 ; g ^ key
    v_lshlrev_b32 v13, 7, v14
    v_add_u32 v13, s52, v13
    v_lshl_add_u32 v{VXR}, v12, 4, v13
    v_xor_b32 v{VXR+1}, 64, v{VXR}
    v_and_b32 v13, 7, v14
    v_lshlrev_b32 v13, 7, v13
    v_lshrrev_b32 v9, 3, v14
    v_lshl_add_u32 v13, v9, 14, v13
    v_lshl_add_u32 v{VA}, v12, 4, v13
    v_xor_b32 v{VA+1}, 64, v{VA}
    v_add_u32 v{VA+2}, 65536, v{VA}
    v_add_u32 v{VA+3}, 65536, v{VA+1}
    s_and_b32 s48, s34, 1
    s_lshl_b32 s48, s48, 2
    v_or_b32 v13, s48, v15                  ; s(k)
    v_bfe_u32 v9, v2, 1, 3                  ; pair'
    v_xor_b32 v13, v13, v9                  ; pair
    v_lshlrev_b32 v13, 5, v13
    v_and_b32 v9, 1, v2
    v_lshl_add_u32 v13, v9, 4, v13
    s_lshl_b32 s48, s34, 3
    v_add_u32 v12, s48, v15                 ; k local (j=0)
    s_movk_i32 s49, 3584
    v_mul_lo_u32 v12, v12, s49
    v_add_u32 v{VW}, v12, v13
    v_lshrrev_b32 v9, 2, v14                ; m>>2
    v_cmp_eq_u32 vcc, v9, v15
    v_and_b32 v9, 1, v14
    v_lshlrev_b32 v9, 4, v9
    v_mov_b32 v10, 0x3f80
    v_lshlrev_b32 v9, v9, v10
    v_cndmask_b32 v9, 0, v9, vcc
    v_and_b32 v10, 2, v14
    v_cmp_eq_u32 vcc, 0, v10
    v_cndmask_b32 v{SELR+2}, 0, v9, vcc
    v_cndmask_b32 v{SELR+3}, v9, 0, vcc
    v_mov_b32 v{SELR}, 0
    v_mov_b32 v{SELR+1}, 0
    v_mov_b32 v{SELR+4}, 0
    v_mov_b32 v{SELR+5}, 0
    s_cmp_lg_u32 s34, 4
    s_cbranch_scc1 KF_nt1
    s_waitcnt vmcnt({vm.n + 1})
    v_readfirstlane_b32 s48, v4
    s_min_u32 s48, s48, 31
    s_lshl_b32 s49, s3, 5
    s_add_u32 s49, s49, s48
    s_cmp_lg_u32 s101, 0
    s_cselect_b32 s49, s2, s49
    s_add_u32 s49, s49, 1
    v_mov_b32 v4, s49
    v_mov_b32 v8, {L_CNT}
    ds_write_b32 v8, v4
    KF_nt1:
    """)
    stamp(a, 56)
    a(f"""
    v_add_u32 v8, s52, v1
    v_bfe_u32 v9, v2, 2, 2
    v_lshl_add_u32 v9, v15, 2, v9           ; 4g + r
    v_lshlrev_b32 v9, 5, v9
    v_and_b32 v10, 3, v2
    v_lshl_add_u32 v9, v10, 3, v9
    v_add_u32 v9, s52, v9
    s_waitcnt vmcnt({2 if TOUCH else 0})
    """)
    stamp(a, 57)
    a(f"""
    ds_write_b128 v8, v[{W2R}:{W2R+3}]
    ds_read_b64_tr_b16 v[{W2R}:{W2R+1}], v9
    ds_read_b64_tr_b16 v[{W2R+2}:{W2R+3}], v9 offset:512
    s_cmp_eq_u32 s36, 0
    s_cbranch_scc1 KF_nc1
    s_lshl_b32 s48, s2, 12
    s_lshl_b32 s49, s35, 10
    s_add_u32 s48, s48, s49
    s_add_u32 s48, s48, {WS_CF}
    buffer_store_dwordx4 v[{CRR}:{CRR+3}], v1, s[16:19], s48 offen sc1
    KF_nc1:
    s_mul_i32 s48, s59, {FT}
    s_lshl_b32 s49, s58, 10
    s_add_u32 s48, s48, s49
    s_add_u32 s48, s48, {WS_W2F}
    v_mov_b32 v20, -1
    v_mov_b32 v21, -1
    v_mov_b32 v22, -1
    v_mov_b32 v23, -1
    s_waitcnt lgkmcnt(0)
    buffer_store_dwordx4 v[{W2R}:{W2R+3}], v1, s[16:19], s48 offen sc1
    s_cmp_lg_u32 s34, 5
    s_cbranch_scc1 KF_nz
    v_mov_b32 v4, 0
    s_and_b32 s48, s2, 15
    s_lshl_b32 s48, s48, 12
    s_lshr_b32 s49, s2, 4
    s_lshl_b32 s49, s49, 8
    s_add_u32 s48, s48, s49
    s_add_u32 s48, s48, {WS_E}
    s_bfe_u32 s50, s2, 0x10003
    s_lshl_b32 s50, s50, 7
    s_add_u32 s49, s49, s50
    s_and_b32 s50, s2, 7
    s_lshl_b32 s50, s50, 2
    s_add_u32 s49, s49, s50
    s_add_u32 s49, s49, {WS_FL}
    s_add_u32 s50, s49, 4096
    s_mov_b64 exec, 0xffff
    buffer_store_dwordx4 v[20:23], v1, s[16:19], s48 offen sc1
    s_mov_b64 exec, 1
    buffer_store_dword v4, v4, s[16:19], s49 offen sc1
    buffer_store_dword v4, v4, s[16:19], s50 offen sc1
    s_lshl_b32 s48, s2, 7
    s_add_u32 s48, s48, {WS_FL + 8192}
    s_mov_b64 exec, 0xff
    v_lshlrev_b32 v8, 2, v2
    buffer_store_dword v4, v8, s[16:19], s48 offen sc1
    s_mov_b64 exec, -1
    KF_nz:
    """)
    vm.issue("sts", 1)
    stamp(a, 1)
    T0 = 136
    def t(i): return T0 + i
    a(f"""
    s_cmp_lg_u32 s36, 0
    s_cbranch_scc1 KF_ntab
    v_lshlrev_b32 v{t(1)}, 16, v7               ; Lim
    v_lshlrev_b32 v{t(0)}, 16, v6               ; Lre
    v_lshlrev_b32 v{t(2)}, 16, v11              ; log_dt
    v_mul_f32 v{t(2)}, {f2u(1.4426950408889634):#x}, v{t(2)}
    v_exp_f32 v{t(2)}, v{t(2)}
    v_cvt_pk_bf16_f32 v{t(2)}, v{t(2)}, v{t(2)}
    v_lshlrev_b32 v{t(2)}, 16, v{t(2)}
    v_mul_f32 v{t(3)}, v{t(2)}, v{t(0)}                 ; a
    v_mul_f32 v{t(4)}, v{t(2)}, v{t(1)}                 ; b
    v_mul_f32 v{t(3)}, {f2u(1.4426950408889634):#x}, v{t(3)}
    v_exp_f32 v{t(3)}, v{t(3)}                      ; e^a
    v_mul_f32 v{t(5)}, {f2u(0.6366197723675814):#x}, v{t(4)}
    v_rndne_f32 v{t(5)}, v{t(5)}                    ; n
    v_mov_b32 v{t(6)}, {f2u(1.5703125):#x}
    v_fma_f32 v{t(4)}, -v{t(5)}, v{t(6)}, v{t(4)}
    v_mov_b32 v{t(6)}, {f2u(4.837512969970703125e-4):#x}
    v_fma_f32 v{t(4)}, -v{t(5)}, v{t(6)}, v{t(4)}
    v_mov_b32 v{t(6)}, {f2u(7.54978995489188216e-8):#x}
    v_fma_f32 v{t(4)}, -v{t(5)}, v{t(6)}, v{t(4)}           ; r
    v_cvt_i32_f32 v{t(5)}, v{t(5)}                  ; q
    v_mul_f32 v{t(6)}, v{t(4)}, v{t(4)}                 ; z
    v_mov_b32 v{t(7)}, {f2u(-1.9515295891e-4):#x}
    v_mov_b32 v{t(8)}, {f2u(8.3321608736e-3):#x}
    v_fma_f32 v{t(7)}, v{t(7)}, v{t(6)}, v{t(8)}
    v_mov_b32 v{t(8)}, {f2u(-1.6666654611e-1):#x}
    v_fma_f32 v{t(7)}, v{t(7)}, v{t(6)}, v{t(8)}
    v_mul_f32 v{t(7)}, v{t(7)}, v{t(6)}
    v_fma_f32 v{t(7)}, v{t(7)}, v{t(4)}, v{t(4)}            ; sin r
    v_mov_b32 v{t(8)}, {f2u(2.443315711809948e-5):#x}
    v_mov_b32 v{t(9)}, {f2u(-1.388731625493765e-3):#x}
    v_fma_f32 v{t(8)}, v{t(8)}, v{t(6)}, v{t(9)}
    v_mov_b32 v{t(9)}, {f2u(4.166664568298827e-2):#x}
    v_fma_f32 v{t(8)}, v{t(8)}, v{t(6)}, v{t(9)}
    v_mul_f32 v{t(8)}, v{t(8)}, v{t(6)}
    v_fma_f32 v{t(8)}, v{t(8)}, v{t(6)}, 1.0
    v_fma_f32 v{t(8)}, v{t(6)}, -0.5, v{t(8)}           ; cos r
    v_and_b32 v{t(9)}, 1, v{t(5)}
    v_cmp_eq_u32 vcc, 1, v{t(9)}
    v_cndmask_b32 v{t(10)}, v{t(7)}, v{t(8)}, vcc
    v_cndmask_b32 v{t(11)}, v{t(8)}, v{t(7)}, vcc
    v_lshlrev_b32 v{t(9)}, 30, v{t(5)}
    v_and_b32 v{t(9)}, 0x80000000, v{t(9)}
    v_xor_b32 v{t(10)}, v{t(10)}, v{t(9)}                 ; sin b
    v_add_u32 v{t(9)}, 1, v{t(5)}
    v_lshlrev_b32 v{t(9)}, 30, v{t(9)}
    v_and_b32 v{t(9)}, 0x80000000, v{t(9)}
    v_xor_b32 v{t(11)}, v{t(11)}, v{t(9)}                 ; cos b
    v_mul_f32 v{t(12)}, v{t(3)}, v{t(11)}
    v_mul_f32 v{t(13)}, v{t(3)}, v{t(10)}
    v_lshrrev_b32 v4, 5, v0
    v_lshlrev_b32 v4, 8, v4
    v_lshl_add_u32 v4, v14, 4, v4
    v_and_b32 v8, 1, v15
    v_lshl_add_u32 v4, v8, 3, v4
    v_add_u32 v4, {L_TAB}, v4
    ds_write_b64 v4, v[{t(12)}:{t(13)}]
    """)
    P = {1: t(12)}
    for k in range(1, 8):
        P[1 << k] = t(14 + 2 * k)
        cplx_sq(a, P[1 << k], P[1 << (k - 1)], t(30))
        ent = {2: 2, 3: 3, 4: 5, 5: 6, 6: 8, 7: 9}.get(k)
        if ent is not None: a(f"ds_write_b64 v4, v[{P[1<<k]}:{P[1<<k]+1}] offset:{ent*2048}")
    cmul_acc(a, t(32), P[4], P[8], None); a(f"ds_write_b64 v4, v[{t(32)}:{t(33)}] offset:{4*2048}")
    cmul_acc(a, t(34), P[16], P[32], None); a(f"ds_write_b64 v4, v[{t(34)}:{t(35)}] offset:{7*2048}")
    a(f"""
    v_add_f32 v{t(4)}, -1.0, v{t(12)}                ; Lr-1
    v_mul_f32 v{t(5)}, v{t(13)}, v{t(1)}
    v_fma_f32 v{t(5)}, v{t(4)}, v{t(0)}, v{t(5)}
    v_mul_f32 v{t(6)}, v{t(4)}, v{t(1)}
    v_fma_f32 v{t(6)}, v{t(13)}, v{t(0)}, -v{t(6)}
    v_mul_f32 v{t(7)}, v{t(1)}, v{t(1)}
    v_fma_f32 v{t(7)}, v{t(0)}, v{t(0)}, v{t(7)}            ; den
    v_rcp_f32 v{t(8)}, v{t(7)}
    v_fma_f32 v{t(9)}, -v{t(7)}, v{t(8)}, 2.0
    v_mul_f32 v{t(8)}, v{t(8)}, v{t(9)}
    v_mul_f32 v{t(14)}, v{t(5)}, v{t(8)}
    v_mul_f32 v{t(15)}, v{t(6)}, v{t(8)}
    ds_write_b64 v4, v[{t(14)}:{t(15)}] offset:2048
    KF_ntab:
    """)
    stamp(a, 28)
    a(f"""
    v_mov_b32 v8, {L_CNT}
    s_mov_b32 s61, 0x100000
    KF_tkl:
    ds_read_b32 v4, v8
    s_waitcnt lgkmcnt(0)
    v_readfirstlane_b32 s100, v4
    s_cmp_lg_u32 s100, 0
    s_cbranch_scc1 KF_tkd
    s_sub_u32 s61, s61, 1
    s_cbranch_scc0 KF_tkl
    KF_tkd:
    s_sub_u32 s100, s100, 1
    s_and_b32 s100, s100, 255               ; slot
    """)
    stamp(a, 29)
    a(f"""
    s_bfe_u32 s32, s100, 0x20006
    s_lshl_b32 s32, s32, 2
    s_and_b32 s48, s100, 3
    s_add_u32 s32, s32, s48
    s_bfe_u32 s33, s100, 0x10005
    s_lshl_b32 s33, s33, 3
    s_bfe_u32 s48, s100, 0x30002
    s_add_u32 s33, s33, s48
    s_lshl_b32 s48, s32, 17
    s_add_u32 s48, s48, s52
    v_add_u32 v{VXS}, s48, v{VXS}
    v_add_u32 v{VXS+1}, s48, v{VXS+1}
    s_and_b32 s48, s32, 3
    s_lshl_b32 s48, s48, 1
    s_add_u32 s50, s33, s48
    """)
    for pos in range(8):
        a(f"s_add_u32 s48, s50, {pos}\ns_and_b32 s48, s48, 7\ns_lshl_b32 s{64+pos}, s48, 7")
        for hh in range(2):
            a(f"""
            s_add_u32 m0, s52, {pos * 2048 + hh * 1024}
            s_nop 0
            buffer_load_dwordx4 v{VXS+hh}, s[4:7], s{64+pos} offen lds
            """)
            vm.issue(("x", pos))
    stamp(a, 16)
    a(f"""
    s_lshl_b32 s48, s33, 15
    v_add_u32 v{VB}, s48, v{VB}
    s_mul_i32 s48, s33, 224
    v_add_u32 v{VW}, s48, v{VW}
    s_lshl_b32 s37, s32, 8
    s_lshl_b32 s48, s63, 7
    s_add_u32 s37, s37, s48
    s_add_u32 s39, s37, {WS_FL}
    s_and_b32 s48, s33, 7
    s_lshl_b32 s48, s48, 2
    s_add_u32 s37, s39, s48
    s_lshl_b32 s38, s32, 4
    s_add_u32 s38, s38, s33
    s_lshl_b32 s47, s33, 12
    s_lshl_b32 s48, s32, 8
    s_add_u32 s47, s47, s48
    s_add_u32 s47, s47, {WS_E}
    s_and_b32 s48, s33, 7
    s_lshl_b32 s48, s48, 8
    s_add_u32 s48, s48, {L_TAB}
    v_lshl_add_u32 v{VT}, v14, 4, s48
    v_bfe_u32 v12, v2, 2, 2                 ; r
    v_and_b32 v13, 1, v15
    v_lshl_or_b32 v13, v13, 2, v12          ; sw
    v_lshlrev_b32 v12, 8, v12
    v_lshl_add_u32 v12, v15, 14, v12        ; g*16384 + r*256
    v_and_b32 v4, 3, v2
    v_lshl_add_u32 v12, v4, 3, v12          ; + c*8
    s_and_b32 s54, s33, 1                   ; par
    s_cmp_lg_u32 s54, 0
    s_cselect_b32 s56, 0, 6
    """)
    for p in range(7):
        if p < 6: a(f"s_add_u32 s48, s54, {p}")
        sreg = "s48" if p < 6 else "s56"
        a(f"v_xor_b32 v4, {sreg}, v13\nv_lshl_add_u32 v{VF+p}, v4, 5, v12\nv_add_u32 v{VF+7+p}, 65536, v{VF+p}")
    def sto(st): return 8192 + st * 2048 if st < 4 else (st - 4) * 2048
    def dma_piece(st, i):
        base = sto(st)
        if i == 0:
            a(f"""
            s_add_u32 m0, s52, {base}
            s_mul_i32 s49, s{64+st}, 1792
            buffer_load_dwordx4 v{VW}, s[12:15], s49 offen lds
            """)
        else:
            a(f"""
            s_mul_i32 s49, s{64+st}, 1792
            s_add_u32 m0, s52, {base + 1024}
            s_add_u32 s49, s49, {4 * 3584}
            buffer_load_dwordx4 v{VW}, s[12:15], s49 offen lds
            """)
        vm.issue(("dma", st), 1)
    def bdma(s):
        a(f"""
        s_add_u32 m0, s52, {s * 1024}
        s_nop 0
        buffer_load_dwordx4 v{VB}, s[8:11], s{64+s} offen lds
        """)
        vm.issue("bdma", 1)
    def arrive(word, reg):
        a(f"""
        v_mov_b32 v8, {L_CNT + word}
        v_mov_b32 v9, 1
        s_mov_b64 exec, 1
        ds_add_rtn_u32 v{reg}, v8, v9
        s_mov_b64 exec, -1
        """)
    S1, S2 = TM, TM + 2
    a("s_mov_b32 s53, 0x3f803f80")
    def xread(c):
        a(f"s_waitcnt vmcnt({vm.after(('x', c))})")
        for h in range(2):
            r = X + (c * 2 + h) * 4
            a(f"ds_read_b128 v[{r}:{r+3}], v{VXR+h} offset:{c*2048}")
    xread(0)
    arrive(8, 10)
    for c in range(8):
        if c < 7: xread(c + 1)
        stamp(a, 20 + c)
        a(f"s_waitcnt lgkmcnt({2 if c < 7 else 0})")
        if c < 4:
            bdma(2 * c); bdma(2 * c + 1)
        else:
            dma_piece(c - 4, 0); dma_piece(c - 4, 1)
        if c == 0:
            a(f"""
            v_readfirstlane_b32 s48, v10
            s_cmp_lg_u32 s48, 7
            s_cbranch_scc1 KF_narr
            s_lshl_b32 s48, s101, 4
            s_add_u32 s48, s48, s3
            {'s_cmp_eq_u32 s2, 0' if FORCE else ''}
            {'s_cselect_b32 s49, 1, 0' if FORCE else ''}
            {'s_xor_b32 s48, s48, s49' if FORCE else ''}
            s_add_u32 s48, s48, 1
            v_mov_b32 v9, s48
            v_mov_b32 v8, s2
            s_mov_b64 exec, 1
            buffer_store_byte v9, v8, s[20:23], 0 offen sc1
            s_mov_b64 exec, -1
            KF_narr:
            """)
        for d in range(8):
            x = X + c * 8 + d
            s1 = S1 + (d & 1); s2 = S2 + (d & 1)
            first = (c == 0 and d < 2)
            a(f"v_dot2_f32_bf16 v{s1}, v{x}, s53, {'0' if first else 'v%d' % s1}")
            a(f"v_dot2_f32_bf16 v{s2}, v{x}, v{x}, {'0' if first else 'v%d' % s2}")
    stamp(a, 2)
    Qs = TM + 8
    a(f"""
    v_add_f32 v{Qs}, v{S1}, v{S1+1}
    v_add_f32 v{Qs+1}, v{S2}, v{S2+1}
    """)
    for op in ("v_permlane16_swap_b32", "v_permlane32_swap_b32"):
        a(f"""
        v_mov_b32 v{Qs+2}, v{Qs}
        v_mov_b32 v{Qs+3}, v{Qs+1}
        {op} v{Qs}, v{Qs+2}
        {op} v{Qs+1}, v{Qs+3}
        v_add_f32 v{Qs}, v{Qs}, v{Qs+2}
        v_add_f32 v{Qs+1}, v{Qs+1}, v{Qs+3}
        """)
    a(f"""
    v_mul_f32 v{Qs}, {f2u(1/512):#x}, v{Qs}
    v_mul_f32 v{Qs+1}, {f2u(1/512):#x}, v{Qs+1}
    v_fma_f32 v{Qs+1}, -v{Qs}, v{Qs}, v{Qs+1}
    v_max_f32 v{Qs+1}, 0, v{Qs+1}
    v_cvt_pk_bf16_f32 v{Qs+2}, v{Qs}, v{Qs+1}
    v_lshlrev_b32 v{MR}, 16, v{Qs+2}
    v_and_b32 v{Qs+1}, 0xffff0000, v{Qs+2}
    v_xor_b32 v{NM}, 0x80000000, v{MR}
    v_add_f32 v{Qs+1}, {f2u(1e-5):#x}, v{Qs+1}
    v_mov_b32 v{NM+1}, v{NM}
    v_cvt_pk_bf16_f32 v{Qs+1}, v{Qs+1}, v{Qs+1}
    v_mov_b32 v{NM+2}, v{NM}
    v_lshlrev_b32 v{Qs+1}, 16, v{Qs+1}
    v_mov_b32 v{NM+3}, v{NM}
    v_sqrt_f32 v{Qs+1}, v{Qs+1}
    v_cvt_pk_bf16_f32 v{Qs+1}, v{Qs+1}, v{Qs+1}
    v_lshlrev_b32 v{Qs+1}, 16, v{Qs+1}
    v_rcp_f32 v{Qs+2}, v{Qs+1}
    v_fma_f32 v{Qs+3}, -v{Qs+1}, v{Qs+2}, 2.0
    v_mul_f32 v{MR+1}, v{Qs+2}, v{Qs+3}
    """)
    def unpack(f):
        x0 = X + f * 4
        T = TM + 8 * (f & 1)
        return [f"v_mfma_f32_16x16x32_bf16 v[{T}:{T+3}], v[{SELR+2}:{SELR+5}], v[{x0}:{x0+3}], v[{NM}:{NM+3}]",
                f"v_mfma_f32_16x16x32_bf16 v[{T+4}:{T+7}], v[{SELR}:{SELR+3}], v[{x0}:{x0+3}], v[{NM}:{NM+3}]"]
    def norm_valu(f):
        x0 = X + f * 4
        T = TM + 8 * (f & 1)
        o = []
        for e in range(8): o.append(f"v_cvt_pk_bf16_f32 v{T+e}, 0, v{T+e}")
        for e in range(8): o.append(f"v_mul_f32 v{T+e}, v{T+e}, v{MR+1}")
        for d in range(4): o.append(f"v_cvt_pk_bf16_f32 v{x0+d}, v{T+2*d}, v{T+2*d+1}")
        return o
    for l in unpack(0) + unpack(1): a(l)
    a(f"""
    s_lshl_b32 s48, s34, 7
    v_lshl_add_u32 v4, v14, 3, s48
    v_add_u32 v4, {L_ST}, v4
    ds_write_b64 v4, v[{MR}:{MR+1}]
    v_lshl_add_u32 v4, v15, 11, v{VT}       ; + g*2048
    s_lshl_b32 s48, s35, 11
    v_add_u32 v5, s48, v{VT}
    """)
    for l in norm_valu(0): a(l)
    for l in unpack(2): a(l)
    stamp(a, 3)
    a(f"s_waitcnt vmcnt({vm.after('bdma')}) lgkmcnt(0)\ns_barrier")
    def breads(j):
        pos, ks = j >> 1, j & 1
        b = BB + (j & 1) * 16
        return [f"ds_read_b128 v[{b+4*q}:{b+4*q+3}], v{VA + ks + 2 * (q >> 1)} offset:{pos * 1024 + (q & 1) * 32768}" for q in range(4)]
    for l in breads(0): a(l)
    lg = Cnt()
    lg.tags[("b", 0)] = 0
    a(f"""
    ds_read_b128 v[{LAM}:{LAM+3}], v{VT}
    ds_read_b128 v[{COEF}:{COEF+3}], v{VT} offset:2048
    ds_read_b128 v[{L4}:{L4+3}], v{VT} offset:4096
    ds_read_b128 v[{L16}:{L16+3}], v{VT} offset:{5*2048}
    ds_read_b128 v[{GG}:{GG+3}], v4 offset:2048
    ds_read_b128 v[{WA}:{WA+3}], v5 offset:{4*2048}
    ds_read_b128 v[{WB}:{WB+3}], v{VT} offset:{8*2048}
    """)
    lg.issue(None, 7)
    for l in norm_valu(1): a(l)
    stamp(a, 4)
    for j in range(16):
        b = BB + (j & 1) * 16
        a(f"s_waitcnt lgkmcnt({lg.after(('b', j))})")
        main = []
        for q in range(4):
            ac = ACCB + 4 * q
            c = "0" if j == 0 else f"v[{ac}:{ac+3}]"
            main.append(f"v_mfma_f32_16x16x32_bf16 v[{ac}:{ac+3}], v[{X+4*j}:{X+4*j+3}], v[{b+4*q}:{b+4*q+3}], {c}")
        if j + 3 < 16:
            un = unpack(j + 3)
            main = [main[0], main[1], main[2], main[3], un[0], un[1]]
        nr = breads(j + 1) if j < 15 else []
        va = norm_valu(j + 2) if j + 2 < 16 else []
        interleave(a, main, nr + va, lead=0)
        lg.issue(("b", j + 1), len(nr))
        if j == 7:
            a("s_barrier")
            dma_piece(4, 0); dma_piece(4, 1)
        if j == 8:
            dma_piece(5, 0); dma_piece(5, 1)
        if j == 13:
            a(f"""
            v_lshlrev_b32 v3, 2, v2
            s_cmp_lg_u32 s34, 7
            s_cbranch_scc1 KF_np0
            buffer_load_dword v13, v3, s[20:23], 0 offen sc1
            KF_np0:
            v_cmp_eq_u32 vcc, 0, v15
            """)
            for e in range(4): a(f"v_cndmask_b32 v{GG+e}, v{GG+e}, {'1.0' if e % 2 == 0 else '0'}, vcc")
            a("v_and_b32 v4, 1, v15\nv_cmp_eq_u32 vcc, 1, v4")
            for e in range(4): a(f"v_cndmask_b32 v{G1+e}, {'1.0' if e % 2 == 0 else '0'}, v{L4+e}, vcc")
            a("s_cmp_eq_u32 s35, 0\ns_cselect_b64 vcc, -1, 0")
            for e in range(4): a(f"v_cndmask_b32 v{WA+e}, v{WA+e}, {'1.0' if e % 2 == 0 else '0'}, vcc")
            a("s_cmp_eq_u32 s36, 0\ns_cselect_b64 vcc, -1, 0")
            for e in range(4): a(f"v_cndmask_b32 v{WB+e}, v{WB+e}, {'1.0' if e % 2 == 0 else '0'}, vcc")
        if j == 14:
            for ct in range(2): cmul_acc(a, Q + 2 * ct, WA + 2 * ct, WB + 2 * ct, None)
            for ct in range(2): cmul_acc(a, MM + 2 * ct, Q + 2 * ct, GG + 2 * ct, None)
    stamp(a, 5)
    for ct in range(2):
        cf = COEF + 2 * ct
        for r in range(4):
            u = U + ct * 8 + 2 * r
            re = ACCB + (0 * 2 + ct) * 4 + r
            im = ACCB + (1 * 2 + ct) * 4 + r
            a(f"""
            v_mul_f32 v{u}, v{cf+1}, v{im}
            v_mul_f32 v{u+1}, v{cf+1}, v{re}
            v_fma_f32 v{u}, v{cf}, v{re}, -v{u}
            v_fma_f32 v{u+1}, v{cf}, v{im}, v{u+1}
            """)
    for r in range(1, 4):
        for ct in range(2):
            c = U + ct * 8 + 2 * r
            cmul_acc(a, c, c - 2, LAM + 2 * ct, c)
    TT, CC, E8, X1, SS = 88, 92, 96, 100, 148
    def e4(i): return U + (i >> 1) * 8 + 6 + (i & 1)
    for i in range(4): a(f"v_mov_b32 v{TT+i}, 0\nv_mov_b32 v{CC+i}, v{e4(i)}")
    for i in range(4): a(f"v_permlane16_swap_b32 v{TT+i}, v{CC+i}")
    for ct in range(2): cmul_acc(a, E8 + 2 * ct, TT + 2 * ct, L4 + 2 * ct, e4(2 * ct))
    for i in range(4): a(f"v_mov_b32 v{X1+i}, v{E8+i}\nv_mov_b32 v{SS+i}, 0")
    for i in range(4): a(f"v_permlane16_swap_b32 v{X1+i}, v{E8+i}")
    for i in range(4): a(f"v_permlane32_swap_b32 v{SS+i}, v{E8+i}")
    for ct in range(2): cmul_acc(a, Q + 2 * ct, SS + 2 * ct, G1 + 2 * ct, TT + 2 * ct)
    for ct in range(2): cmul_acc(a, G1 + 2 * ct, Q + 2 * ct, L4 + 2 * ct, e4(2 * ct))
    E16 = G1
    a(f"""
    s_lshl_b32 s48, s34, 8
    s_add_u32 s48, s48, {L_E16}
    v_lshl_add_u32 v4, v14, 4, s48
    s_mov_b32 s48, 0
    s_mov_b32 s49, 0xffff0000
    s_mov_b64 exec, s[48:49]
    ds_write_b128 v4, v[{E16}:{E16+3}]
    s_mov_b64 exec, -1
    v_subrev_u32 v12, {7 * 256}, v4         ; e16[w-7]
    """)
    stamp(a, 6)
    a(f"""
    s_cmp_lg_u32 s34, 7
    s_cbranch_scc1 KF_nck
    s_movk_i32 s61, {SPIN}
    s_mov_b32 s50, 1
    s_cmp_lg_u32 s101, 0
    s_cselect_b32 s59, 0, 0x0f0f0f0f
    s_mov_b32 s60, 0x10101010
    s_cselect_b32 s58, s60, s59
    s_waitcnt vmcnt(0)
    KF_ckl:
    v_and_b32 v4, s58, v13
    v_add_u32 v4, s59, v4
    v_and_b32 v4, s60, v4
    v_cmp_ne_u32 vcc, s60, v4
    s_cbranch_vccz KF_cka
    s_sub_u32 s61, s61, 1
    s_cbranch_scc1 KF_ckd
    s_sleep 1
    buffer_load_dword v13, v3, s[20:23], 0 offen sc1
    s_waitcnt vmcnt(0)
    s_branch KF_ckl
    KF_cka:
    s_cmp_lg_u32 s101, 0
    s_cbranch_scc1 KF_ckd
    v_mov_b32 v4, 0
    v_mov_b32 v5, 0
    """)
    for j in range(4):
        a(f"""
        v_bfe_u32 v8, v13, {8*j}, 4
        v_lshlrev_b32 v8, 3, v8
        v_subrev_u32 v8, 8, v8
        v_lshlrev_b64 v[6:7], v8, 1
        v_add_u32 v4, v4, v6
        v_add_u32 v5, v5, v7
        """)
    for r in (1, 2, 4, 8):
        a(f"v_add_u32_dpp v4, v4, v4 row_ror:{r} row_mask:0xf bank_mask:0xf\nv_add_u32_dpp v5, v5, v5 row_ror:{r} row_mask:0xf bank_mask:0xf")
    for op in ("v_permlane16_swap_b32", "v_permlane32_swap_b32"):
        a(f"""
        v_mov_b32 v6, v4
        v_mov_b32 v7, v5
        {op} v4, v6
        {op} v5, v7
        v_add_u32 v4, v4, v6
        v_add_u32 v5, v5, v7
        """)
    a(f"""
    v_readfirstlane_b32 s48, v4
    v_readfirstlane_b32 s49, v5
    s_xor_b32 s48, s48, 0x20202020
    s_xor_b32 s49, s49, 0x20202020
    s_or_b32 s48, s48, s49
    s_cmp_lg_u32 s48, 0
    s_cselect_b32 s50, 2, 1
    KF_ckd:
    v_mov_b32 v13, s50
    v_mov_b32 v3, {L_CNT + 4}
    ds_write_b32 v3, v13
    KF_nck:
    v_mov_b32 v3, {L_CNT + 4}
    s_waitcnt vmcnt({vm.after(('dma', 3))}) lgkmcnt(0)
    s_barrier
    ds_read_b32 v3, v3
    """)
    stamp(a, 7)
    EBL = [88, 92, 96, 100, 84, 4, 8]
    for j in range(7): a(f"ds_read_b128 v[{EBL[j]}:{EBL[j]+3}], v12 offset:{j*256}")
    lg = Cnt()
    def fread(i):
        k, p = divmod(i, 7)
        st, ks = k >> 1, k & 1
        b = BF + (i % 8) * 4
        a(f"ds_read_b64_tr_b16 v[{b}:{b+1}], v{VF+7*ks+p} offset:{sto(st)}")
        a(f"ds_read_b64_tr_b16 v[{b+2}:{b+3}], v{VF+7*ks+p} offset:{sto(st)+1024}")
        lg.issue(("f", i), 2)
    a("s_waitcnt lgkmcnt(7)\nv_readfirstlane_b32 s48, v3\ns_cmp_eq_u32 s48, 2\ns_cbranch_scc1 KF_restart")
    lg.issue("p2b", 7)
    a("s_load_dwordx2 s[88:89], s[0:1], 64     ; Dskip\ns_load_dwordx2 s[90:91], s[0:1], 96     ; out")
    for i in range(4): fread(i)
    dma_piece(6, 0); dma_piece(6, 1)
    for i in range(4, 7): fread(i)
    dma_piece(7, 0); dma_piece(7, 1)
    RO, SCB, SHB = 40, 72, 80
    a(f"""
    s_add_u32 s48, s33, s32
    s_lshl_b32 s49, s32, 1
    s_add_u32 s48, s48, s49
    s_and_b32 s62, s48, 7                   ; rot8
    s_cmp_eq_u32 s62, 7
    s_cselect_b32 s59, 3, s62               ; rot7
    s_and_b32 s60, s33, 3                   ; cq
    s_lshl_b32 s61, s60, 18
    s_lshl_b32 s48, s63, 17
    s_add_u32 s61, s61, s48
    s_add_u32 s61, s61, {WS_CF}
    s_lshl_b32 s58, s63, 15
    """)
    for p in range(7):
        a(f"""
        s_add_u32 s48, s59, {p}
        s_sub_u32 s49, s48, 7
        s_cmp_ge_u32 s48, 7
        s_cselect_b32 s48, s49, s48
        s_lshl_b32 s{RO+p}, s48, 12
        """)
    for p in range(8):
        a(f"""
        s_add_u32 s48, s62, {p}
        s_and_b32 s48, s48, 7
        s_lshl_b32 s49, s48, 14
        s_add_u32 s{SCB+p}, s49, s61
        s_lshl_b32 s49, s48, 12
        s_add_u32 s{SHB+p}, s49, s58
        """)
    a(f"""
    s_lshl_b32 s48, s60, 3
    s_add_u32 s48, s48, s34                 ; cq*8 + w
    s_mul_i32 s48, s48, {FT}
    s_mul_i32 s60, s63, {28 * 1024}         ; kh * 28K
    s_add_u32 s48, s48, s60
    s_add_u32 s48, s48, {WS_W2F}
    v_add_u32 v{VW2}, s48, v1
    v_add_u32 v{VC}, s51, v1
    v_add_u32 v{VC+1}, 8192, v{VC}
    s_bfe_u32 s48, s33, 0x10002             ; rh
    s_lshl_b32 s48, s48, 1
    s_add_u32 s62, s48, s63
    s_lshl_b32 s48, s32, 3
    s_add_u32 s48, s48, s34
    s_lshl_b32 s48, s48, 16
    s_lshl_b32 s49, s33, 12
    s_add_u32 s57, s48, s49
    """)
    WF = {}
    def wload(i, q, reg):
        a(f"buffer_load_dwordx4 v[{reg}:{reg+3}], v{VW2}, s[16:19], s{RO+i} offen offset:{q*1024}")
        vm.issue(("w", i)); WF[(i, q)] = reg
    def cload(b, ri):
        reg = X + 8 * b + 4 * ri
        a(f"buffer_load_dwordx4 v[{reg}:{reg+3}], v{VC+ri}, s[16:19], s{SCB+b} offen")
        vm.issue(("c", b))
    class L:
        def __init__(s): s.l = []
        def __call__(s, t_): s.l += [x.strip() for x in t_.strip().split("\n") if x.strip()]
    a(f"s_waitcnt lgkmcnt({min(15, lg.after('p2b'))})")
    for j in range(1, 7):
        for ct in range(2): cmul_acc(a, EBL[j] + 2 * ct, EBL[j - 1] + 2 * ct, L16 + 2 * ct, EBL[j] + 2 * ct)
    for ct in range(2): cmul_acc(a, E16 + 2 * ct, EBL[6] + 2 * ct, L16 + 2 * ct, E16 + 2 * ct)
    a(f"""
    s_cmp_lg_u32 s34, 7
    s_cbranch_scc1 KF_npub
    v_lshlrev_b32 v3, 4, v14
    s_mov_b32 s48, 0
    s_mov_b32 s49, 0xffff0000
    s_mov_b64 exec, s[48:49]
    buffer_store_dwordx4 v[{E16}:{E16+3}], v3, s[16:19], s47 offen sc1
    s_mov_b64 exec, -1
    KF_npub:
    """)
    for ct in range(2): cmul_acc(a, Q + 2 * ct, EBL[6] + 2 * ct, GG + 2 * ct, Q + 2 * ct)
    PC, PH, PL, PT = 192, 200, 208, 216
    def psf_valu():
        o = L()
        for ct in range(2): cmul_acc(o, PC + 2 * ct, PT + 2 * ct, MM + 2 * ct, Q + 2 * ct)
        for r in range(4):
            for ct in range(2):
                src = PC + (r & 1) * 4 + 2 * ct; dst = PC + ((r + 1) & 1) * 4 + 2 * ct
                cmul_acc(o, dst, src, LAM + 2 * ct, None)
                u = U + ct * 8 + 2 * r
                o(f"v_pk_add_f32 v[{u}:{u+1}], v[{u}:{u+1}], v[{dst}:{dst+1}]")
        return o.l
    def psf_split(ri):
        o = L(); ng = "-" if ri else ""
        for ct in range(2):
            h = PH + ri * 4 + ct * 2; l = PL + ri * 4 + ct * 2
            u = lambda r: U + ct * 8 + 2 * r + ri
            for pr in range(2):
                o(f"v_cvt_pk_bf16_f32 v{h+pr}, {ng}v{u(2*pr)}, {ng}v{u(2*pr+1)}")
            for pr in range(2):
                o(f"v_lshlrev_b32 v{PT+2*pr}, 16, v{h+pr}\nv_and_b32 v{PT+2*pr+1}, 0xffff0000, v{h+pr}")
            o(f"ds_write_b64 v3, v[{h}:{h+1}] offset:{ct*512}")
            for r in range(4): o(f"v_sub_f32 v{PT+r}, {ng}v{u(r)}, v{PT+r}")
            for pr in range(2): o(f"v_cvt_pk_bf16_f32 v{l+pr}, v{PT+2*pr}, v{PT+2*pr+1}")
            o(f"ds_write_b64 v3, v[{l}:{l+1}] offset:{1024 + ct*512}")
        return o.l
    HO = [PC, PC + 4, U, U + 4]
    def psf_tr(ri):
        o = []
        for hl in range(2):
            d = HO[ri * 2 + hl]
            o.append(f"ds_read_b64_tr_b16 v[{d}:{d+1}], v12 offset:{hl*1024}")
            o.append(f"ds_read_b64_tr_b16 v[{d+2}:{d+3}], v13 offset:{hl*1024}")
        return o
    def psf_addr():
        o = L()
        o(f"""
        v_lshlrev_b32 v4, 4, v14
        v_add_u32 v4, {L_HIN}, v4
        ds_read_b128 v[{PT}:{PT+3}], v4
        s_lshl_b32 s48, s34, 11
        s_add_u32 s48, s48, {L_TAB}
        v_lshrrev_b32 v3, 2, v14
        v_xor_b32 v3, v3, v15
        v_lshlrev_b32 v3, 3, v3
        v_lshl_add_u32 v3, v14, 5, v3
        v_add_u32 v3, s48, v3
        v_bfe_u32 v12, v2, 2, 2
        v_lshl_add_u32 v12, v15, 3, v12
        v_lshlrev_b32 v13, 1, v15
        v_and_b32 v13, 3, v13
        v_and_b32 v4, 3, v2
        v_xor_b32 v13, v13, v4
        v_lshlrev_b32 v13, 3, v13
        v_lshl_add_u32 v12, v12, 5, v13
        v_add_u32 v12, s48, v12
        v_add_u32 v13, 128, v12
        v_xor_b32 v13, 8, v13
        """)
        return o.l
    EL, R7, L128, L512, HG = 192, 208, 4, 8, 216
    def w7_eload(first):
        o = ""
        for j in range(4):
            o += f"buffer_load_dwordx4 v[{EL+4*j}:{EL+4*j+3}], v{244+j}, s[16:19], s50 offen sc1\n"
        if not first: return o
        a(f"""
        s_cmp_lg_u32 s34, 7
        s_cbranch_scc1 KF_nel
        s_sub_u32 s48, s32, 1
        v_sub_u32 v8, s48, v15                  ; rt - 1 - g
        """)
        for j in range(4):
            a(f"""
            v_subrev_u32 v9, {4*j}, v8
            v_cmp_gt_i32 vcc, 0, v9
            v_lshlrev_b32 v9, 8, v9
            v_lshl_add_u32 v9, v14, 4, v9
            v_mov_b32 v10, {WS_SIZE}
            v_cndmask_b32 v{244+j}, v9, v10, vcc
            """)
        a(f"""
        s_lshl_b32 s50, s33, 12
        s_add_u32 s50, s50, {WS_E}
        {o}
        s_and_b32 s48, s33, 7
        s_lshl_b32 s48, s48, 8
        s_add_u32 s48, s48, {L_TAB + 9 * 2048}
        v_lshl_add_u32 v8, v14, 4, s48
        ds_read_b128 v[{L128}:{L128+3}], v8
        s_waitcnt lgkmcnt(0)
        """)
        for ct in range(2): cplx_sq(a, R7 + 2 * ct, L128 + 2 * ct, 3)
        for ct in range(2): cplx_sq(a, L512 + 2 * ct, R7 + 2 * ct, 3)
        a("v_and_b32 v3, 1, v15\nv_cmp_eq_u32 vcc, 1, v3")
        for e in range(4): a(f"v_cndmask_b32 v{L128+e}, {'1.0' if e % 2 == 0 else '0'}, v{L128+e}, vcc")
        a("v_cmp_lt_u32 vcc, 1, v15")
        for e in range(4): a(f"v_cndmask_b32 v{R7+e}, {'1.0' if e % 2 == 0 else '0'}, v{R7+e}, vcc")
        for ct in range(2): cmul_acc(a, HG + 2 * ct, L128 + 2 * ct, R7 + 2 * ct, None)
        a("KF_nel:")
        vm.tags["e"] = vm.n
    def w7_horner():
        a(f"""
        s_cmp_lg_u32 s34, 7
        s_cbranch_scc1 KF_nho
        s_movk_i32 s61, {SPIN}
        s_waitcnt vmcnt({vm.after('e')})
        KF_hol:
        """)
        a(f"v_cmp_eq_u32 vcc, -1, v{EL}")
        for i in range(1, 16):
            a(f"v_cmp_eq_u32 s[48:49], -1, v{EL+i}\ns_or_b64 vcc, vcc, s[48:49]")
        a(f"""
        s_cmp_eq_u64 vcc, 0
        s_cbranch_scc1 KF_hod
        s_sub_u32 s61, s61, 1
        s_cbranch_scc1 KF_hod
        s_sleep 1
        {w7_eload(False)}
        s_waitcnt vmcnt(0)
        s_branch KF_hol
        KF_hod:
        """)
        for j in (2, 1, 0):
            for ct in range(2): cmul_acc(a, EL + 4 * j + 2 * ct, EL + 4 * (j + 1) + 2 * ct, L512 + 2 * ct, EL + 4 * j + 2 * ct)
        R = R7
        for ct in range(2): cmul_acc(a, R + 2 * ct, EL + 2 * ct, HG + 2 * ct, None)
        for op in ("v_permlane16_swap_b32", "v_permlane32_swap_b32"):
            for i in range(4): a(f"v_mov_b32 v{R+4+i}, v{R+i}")
            for i in range(4): a(f"{op} v{R+i}, v{R+4+i}")
            for i in range(4): a(f"v_add_f32 v{R+i}, v{R+i}, v{R+4+i}")
        a(f"""
        v_add_u32 v8, {L_HIN}, v1
        s_mov_b64 exec, 0xffff
        ds_write_b128 v8, v[{R}:{R+3}]
        s_mov_b64 exec, -1
        s_waitcnt lgkmcnt(0)
        KF_nho:
        """)
    def signal(reg, sreg, label):
        a(f"""
        v_readfirstlane_b32 s48, v{reg}
        s_cmp_lg_u32 s48, 7
        s_cbranch_scc1 {label}
        v_mov_b32 v9, 1
        v_mov_b32 v8, 0
        s_mov_b64 exec, 1
        """)
        dual([f"buffer_store_dword v9, v8, s[16:19], {sreg} offen"])
        a(f"s_mov_b64 exec, -1\n{label}:")
    def poll(reg, addr, sreg, label, tag):
        a(f"""
        s_movk_i32 s61, {SPIN}
        s_waitcnt vmcnt({vm.after(tag)})
        {label}l:
        v_cmp_ne_u32 vcc, 1, v{reg}
        s_cbranch_vccz {label}d
        s_sub_u32 s61, s61, 1
        s_cbranch_scc1 {label}d
        s_sleep 1
        buffer_load_dword v{reg}, v{addr}, s[16:19], {sreg} offen sc1
        s_waitcnt vmcnt(0)
        s_branch {label}l
        {label}d:
        """)
    EI, HI, PSN = env("EI", 28), env("HB", 63), env("PSN", 24)
    ev = {}
    def add(i, f): ev.setdefault(i, []).append(f)
    W01 = [80, 84, 88, 92, 96, 100, 248, 244]
    for q in range(4): add(8 + 3 * q, (lambda q=q: wload(0, q, W01[q])))
    for q in range(3): add(22 + 3 * q, (lambda q=q: wload(1, q, W01[4 + q])))
    for b in range(7):
        for ri in range(2): add((2 * b + 2) * 7 + 1 + 3 * ri, (lambda b=b, ri=ri: cload(b, ri)))
    add(EI, lambda: w7_eload(True))
    add(HI, w7_horner)
    items = psf_addr() + ["@w"] + psf_valu() + psf_split(0) + psf_tr(0) + ["#t0"] + psf_split(1) + psf_tr(1) + ["#t1", "@s"]
    for k, l in enumerate(items): add(HI + 1 + (k * PSN) // len(items), l)
    add(HI + 1, (lambda: wload(1, 3, W01[7])))
    AR4 = min(110, HI + PSN + env("A4", 8))
    def h_arrive():
        a(f"s_waitcnt vmcnt({vm.after('hst')})"); arrive(12, 10); lg.issue("ar4")
    add(AR4, h_arrive)
    def h_signal():
        a(f"s_waitcnt lgkmcnt({min(15, lg.after('ar4'))})\ns_add_u32 s49, s37, 4096"); signal(10, "s49", "KF_nf4")
    add(min(111, AR4 + 4), h_signal)
    bars = {48: ("dma", 5), 76: ("dma", 7)}
    for i in range(112):
        k, p = divmod(i, 7)
        if p == 0 and k % 2 == 0: stamp(a, 8 + k // 2)
        b = BF + (i % 8) * 4
        ac = ACC + p * 4
        a(f"s_waitcnt lgkmcnt({min(15, lg.after(('f', i)))})")
        c = "0" if k == 0 else f"v[{ac}:{ac+3}]"
        a(f"v_mfma_f32_16x16x32_bf16 v[{ac}:{ac+3}], v[{b}:{b+3}], v[{X+4*k}:{X+4*k+3}], {c}")
        pre = [f for f in ev.get(i, []) if f is w7_horner]
        for f in pre: f()
        if i in bars: a(f"s_waitcnt vmcnt({vm.after(bars[i])})\ns_barrier")
        elif i == HI: a("s_barrier")
        if i + 7 < 112: fread(i + 7)
        for f in ev.get(i, []):
            if f is w7_horner: continue
            if callable(f): f()
            elif f == "@w": a(f"s_waitcnt lgkmcnt({min(15, lg.after('hin'))})")
            elif f[0] == "#": lg.tags[f[1:]] = lg.n
            elif f == "@s":
                a(f"s_waitcnt lgkmcnt({min(15, lg.after('t1'))})")
                dual([f"buffer_store_dwordx4 v[{HO[kk]}:{HO[kk]+3}], v1, s[16:19], s57 offen offset:{kk*1024}" for kk in range(4)])
                vm.issue("hst", 4)
            else:
                a(f)
                if f.startswith("ds_"):
                    lg.issue("hin" if f"v[{PT}:{PT+3}]" in f else None)
    stamp(a, 17)
    YA, OA, HB = 220, 16, BF
    VH, VP = 12, 6
    a("s_waitcnt lgkmcnt(0)")
    cload(7, 0); cload(7, 1)
    a(f"""
    v_and_b32 v5, 7, v2
    v_lshlrev_b32 v5, 2, v5
    s_add_u32 s55, s39, 4096
    buffer_load_dword v11, v5, s[16:19], s55 offen sc1
    s_barrier
    s_lshl_b32 s48, s32, 3
    s_add_u32 s48, s48, s34
    s_mul_i32 s48, s48, {FT}
    s_add_u32 s48, s48, {WS_H1F}
    s_mul_i32 s49, s33, 7
    s_add_u32 s58, s49, s54
    s_lshl_b32 s58, s58, 9
    s_add_u32 s58, s58, s48
    s_add_u32 s59, s49, s56
    s_lshr_b32 s61, s59, 1
    s_lshl_b32 s61, s61, 10
    s_and_b32 s59, s59, 1
    s_lshl_b32 s59, s59, 3
    s_add_u32 s59, s59, s61
    s_add_u32 s59, s59, s48
    s_mov_b32 s53, {f2u(-1.4426950408889634):#x}
    s_bfe_u32 s48, s33, 0x10002             ; rh
    s_lshl_b32 s48, s48, 2
    s_lshl_b32 s49, s32, 3
    s_add_u32 s48, s48, s49
    s_lshr_b32 s49, s34, 1
    s_add_u32 s48, s48, s49
    s_and_b32 s49, s34, 1
    s_lshl_b32 s49, s49, 11
    s_lshl_b32 s50, s48, 16
    s_add_u32 s50, s50, s49
    v_add_u32 v{VH}, s50, v1
    s_mul_i32 s48, s48, {FT}
    s_add_u32 s48, s48, s49
    s_add_u32 s48, s48, s60
    s_add_u32 s48, s48, {WS_H1F}
    v_add_u32 v{VH+1}, s48, v1
    s_lshl_b32 s48, s63, 16
    v_add_u32 v{VP+1}, s48, v1
    v_xor_b32 v{VP}, 65536, v{VP+1}
    """)
    vm.issue("p4")
    def silu_tile(p, dst):
        ac = ACC + p * 4
        tt = 164 + (p & 1) * 12
        a(f"""
        v_cvt_pk_bf16_f32 v{tt}, v{ac}, v{ac+1}
        v_cvt_pk_bf16_f32 v{tt+1}, v{ac+2}, v{ac+3}
        v_lshlrev_b32 v{tt+4}, 16, v{tt}
        v_and_b32 v{tt+5}, 0xffff0000, v{tt}
        v_lshlrev_b32 v{tt+6}, 16, v{tt+1}
        v_and_b32 v{tt+7}, 0xffff0000, v{tt+1}
        """)
        for r in range(4): a(f"v_mul_f32 v{tt+8+r}, s53, v{tt+4+r}")
        for r in range(4): a(f"v_exp_f32 v{tt+8+r}, v{tt+8+r}")
        for r in range(4): a(f"v_add_f32 v{tt+8+r}, 1.0, v{tt+8+r}")
        for r in range(4): a(f"v_rcp_f32 v{tt+8+r}, v{tt+8+r}")
        for r in range(4): a(f"v_mul_f32 v{tt+4+r}, v{tt+4+r}, v{tt+8+r}")
        a(f"""
        v_cvt_pk_bf16_f32 v{dst}, v{tt+4}, v{tt+5}
        v_cvt_pk_bf16_f32 v{dst+1}, v{tt+6}, v{tt+7}
        """)
    def hdma(i, j):
        if j == 0: a(f"s_add_u32 m0, s52, {sto(i)}\ns_nop 0")
        a(f"buffer_load_dwordx4 v{VH}, s[16:19], s{SHB+i} offen offset:{j*1024} lds")
        vm.issue(("hd", i))
    def h1dma(i, j):
        if j == 0: a(f"s_add_u32 m0, s52, {sto(i)}\ns_nop 0")
        a(f"buffer_load_dwordx4 v{VH+1}, s[16:19], s{RO+i} offen offset:{j*1024} lds")
        vm.issue(("h1d", i))
    P4P = env("P4P", 2)
    H1O = 188
    for pr in range(4):
        if pr == P4P:
            stamp(a, 18)
            poll(11, 5, "s55", "KF_p4", "p4")
            for i in range(8): hdma(i, 0); hdma(i, 1)
            stamp(a, 19)
        o = H1O + 4 * pr
        silu_tile(2 * pr, o)
        if pr < 3: silu_tile(2 * pr + 1, o + 2)
    dual([f"buffer_store_dwordx4 v[{H1O+4*pr}:{H1O+4*pr+3}], v1, s[16:19], s58 offen offset:{pr*1024}" for pr in range(3)]
         + [f"buffer_store_dwordx2 v[{H1O+12}:{H1O+13}], v1, s[16:19], s59 offen"])
    vm.issue("h1s", 4)
    if P4P == 4:
        stamp(a, 18)
        poll(11, 5, "s55", "KF_p4", "p4")
        for i in range(8): hdma(i, 0); hdma(i, 1)
        stamp(a, 19)
    WR = [104 + 4 * i for i in range(7)] + [164 + 4 * i for i in range(6)] + [204 + 4 * i for i in range(4)] + [24, 28, 32]
    seq = []
    for i in range(8):
        for ri in range(2):
            for tp in range(2):
                for tq in range(2):
                    for hl in range(2): seq.append(("y", i, tp, tq, ri, hl))
    for tp in range(2):
        for i in range(7):
            for q in range(4):
                for tq in range(2): seq.append(("o", i, tp, tq, q >> 1, q & 1))
    N = len(seq)
    lg = Cnt()
    def bread(n):
        kind, i, tp, tq, hi, lo = seq[n]
        b = HB + (n % 8) * 4
        a(f"ds_read_b128 v[{b}:{b+3}], v{VP+tp} offset:{(2*tq+hi)*16384 + sto(i) + lo*1024}")
        lg.issue(("f", n))
    A1, P1I, P1C = env("A1", 6), env("P1I", 30), env("P1C", 48)
    ev = {}
    def h1_arrive():
        a(f"s_waitcnt vmcnt({vm.after('h1s')})"); arrive(16, 10); lg.issue("ar1")
    add(A1, h1_arrive)
    def h1_signal():
        a(f"s_waitcnt lgkmcnt({min(15, lg.after('ar1'))})"); signal(10, "s37", "KF_nf1")
    add(A1 + 6, h1_signal)
    def p1_issue():
        a("buffer_load_dword v11, v5, s[16:19], s39 offen sc1"); vm.issue("p1")
    add(P1I, p1_issue)
    add(P1C, lambda: poll(11, 5, "s39", "KF_p1", "p1"))
    nxt = P1C + 1
    for i in range(7):
        nxt = max(nxt, 16 * (i + 1) + 1)
        add(nxt, (lambda i=i: (h1dma(i, 0), h1dma(i, 1)))); nxt += 3
    WS0, WSP = env("WS0", 2), env("WSP", 5)
    wl = [(i, q) for i in range(2, 7) for q in range(4)]
    for k, (i, q) in enumerate(wl):
        pos = WS0 + k * WSP
        if WR[k] < 104: pos = max(pos, 16 * ((WR[k] - X) // 8 + 1) + 1)
        add(pos, (lambda i=i, q=q, k=k: wload(i, q, WR[k])))
    XR, DR, PR, ST = 80, 84, 40, 88
    def y_send():
        a(f"""
        s_lshl_b32 s48, s38, 15
        s_lshl_b32 s49, s34, 12
        s_add_u32 s48, s48, s49
        s_add_u32 s58, s48, {WS_OP}
        s_xor_b32 s57, s58, {8 << 15}
        s_lshl_b32 s48, s38, 7
        s_lshl_b32 s49, s34, 2
        s_add_u32 s48, s48, s49
        s_add_u32 s54, s48, {WS_FL + 8192}
        s_xor_b32 s55, s54, {8 << 7}
        buffer_store_dwordx4 v[{YA}:{YA+3}], v1, s[16:19], s57 offen sc1
        buffer_store_dwordx4 v[{YA+4}:{YA+7}], v1, s[16:19], s57 offen offset:1024 sc1
        """)
        vm.issue("ys", 2)
    add(128 + 3, y_send)
    def o_send():
        a(f"""
        buffer_store_dwordx4 v[{OA}:{OA+3}], v1, s[16:19], s57 offen offset:2048 sc1
        buffer_store_dwordx4 v[{OA+4}:{OA+7}], v1, s[16:19], s57 offen offset:3072 sc1
        """)
        vm.issue("os", 2)
    add(184 + 4, o_send)
    def fin_addr():
        a(f"""
        s_lshl_b32 s48, s32, 7
        s_lshl_b32 s49, s62, 5
        s_add_u32 s48, s48, s49
        v_add_u32 v12, s48, v14
        v_lshlrev_b32 v12, 10, v12
        s_and_b32 s48, s33, 3
        s_lshl_b32 s48, s48, 8
        s_lshl_b32 s49, s34, 5
        s_add_u32 s48, s48, s49
        v_lshl_add_u32 v13, v15, 3, s48
        v_add_u32 v12, v12, v13
        s_movk_i32 s48, 16384
        buffer_load_dwordx2 v[{XR}:{XR+1}], v12, s[4:7], 0 offen
        buffer_load_dwordx2 v[{XR+2}:{XR+3}], v12, s[4:7], s48 offen
        v_lshlrev_b32 v12, 1, v12
        s_lshl_b32 s48, s62, 8
        v_lshl_add_u32 v4, v14, 3, s48
        v_add_u32 v4, {L_ST}, v4
        """)
        vm.issue("x", 2)
        srd(a, 12, 88, 1024)
        srd(a, 8, 90, 2048 * 2048)
        a(f"""
        buffer_load_dwordx2 v[{DR}:{DR+1}], v13, s[12:15], 0 offen
        ds_read_b64 v[{ST}:{ST+1}], v4
        ds_read_b64 v[{ST+2}:{ST+3}], v4 offset:128
        """)
        vm.issue("x"); lg.issue(None, 2)
    add(184 + 12, fin_addr)
    def pr_loads():
        return "\n".join(f"buffer_load_dwordx4 v[{PR+4*k}:{PR+4*k+3}], v1, s[16:19], s58 offen offset:{k*1024} sc1" for k in (2, 3, 0, 1))
    F3, PRI = env("F3", 28), env("PRI", 50)
    def f3_send():
        a(f"""
        v_mov_b32 v9, 1
        v_mov_b32 v8, 0
        s_waitcnt vmcnt({vm.after('os')})
        s_mov_b64 exec, 1
        buffer_store_dword v9, v8, s[16:19], s55 offen sc1
        s_mov_b64 exec, -1
        """)
        vm.issue("f3")
    add(184 + F3, f3_send)
    def pr_issue():
        a("buffer_load_dword v11, v8, s[16:19], s54 offen sc1"); vm.issue("p3")
    add(184 + PRI, pr_issue)
    a(f"s_waitcnt vmcnt({vm.after(('hd', 0))})\ns_barrier")
    stamp(a, 32)
    for n in range(7): bread(n)
    for n in range(N):
        kind, i, tp, tq, hi, lo = seq[n]
        if n < 128 and n % 16 == 0:
            if n: stamp(a, 32 + n // 16)
            tg = ("hd", n // 16 + 1) if n < 112 else None
            w_ = [vm.after(("c", n // 16))]
            if tg: w_.append(vm.after(tg))
            a(f"s_waitcnt vmcnt({min(w_)})\ns_barrier")
        if n + 7 >= 128 and n + 7 < 184 and (n + 7 - 128) % 8 == 0:
            s_ = (n + 7 - 128) // 8
            a(f"s_waitcnt vmcnt({vm.after(('h1d', s_))})\ns_barrier")
        if n >= 128 and n < 184 and (n - 128) % 8 == 0:
            s_ = (n - 128) // 8
            stamp(a, 40 + s_)
            a(f"s_waitcnt vmcnt({vm.after(('w', s_))})")
        if n == 184: stamp(a, 47)
        b = HB + (n % 8) * 4
        a(f"s_waitcnt lgkmcnt({min(15, lg.after(('f', n)))})")
        if kind == "y":
            ac = YA + (tp * 2 + tq) * 4; af = X + 8 * i + 4 * hi
            first = (i == 0 and hi == 0 and lo == 0)
        else:
            ac = OA + (tp * 2 + tq) * 4 if tp == 0 else 56 + tq * 4
            af = WF[(i, 2 * hi + lo)]
            first = (i == 0 and hi == 0 and lo == 0)
        c = "0" if first else f"v[{ac}:{ac+3}]"
        a(f"v_mfma_f32_16x16x32_bf16 v[{ac}:{ac+3}], v[{af}:{af+3}], v[{b}:{b+3}], {c}")
        if n + 7 < N: bread(n + 7)
        for f in ev.get(n, []): f()
    stamp(a, 50)
    OP = 56
    M, XF, XN, DU, TMP, T2 = 104, 112, 120, 128, 132, 136
    def rnd(base, n, tmp):
        for e in range(n // 2): a(f"v_cvt_pk_bf16_f32 v{tmp+e}, v{base+2*e}, v{base+1+2*e}")
        for e in range(n // 2): a(f"v_lshlrev_b32 v{base+2*e}, 16, v{tmp+e}\nv_and_b32 v{base+1+2*e}, 0xffff0000, v{tmp+e}")
    poll(11, 8, "s54", "KF_p3", "p3")
    stamp(a, 52)
    a(pr_loads()); vm.issue("pr", 4)
    a(f"s_waitcnt vmcnt({vm.after('x')}) lgkmcnt(0)")
    for e in range(4):
        a(f"v_lshlrev_b32 v{XF+2*e}, 16, v{XR+e}\nv_and_b32 v{XF+1+2*e}, 0xffff0000, v{XR+e}")
    for e in range(2):
        a(f"v_lshlrev_b32 v{DU+2*e}, 16, v{DR+e}\nv_and_b32 v{DU+1+2*e}, 0xffff0000, v{DR+e}")
    for e in range(8): a(f"v_sub_f32 v{XN+e}, v{XF+e}, v{ST+2*(e>>2)}")
    rnd(XN, 8, TMP)
    for e in range(8): a(f"v_mul_f32 v{XN+e}, v{XN+e}, v{ST+1+2*(e>>2)}")
    rnd(XN, 8, TMP)
    for e in range(8): a(f"v_mul_f32 v{XN+e}, v{XN+e}, v{DU+(e&3)}")
    rnd(XN, 8, TMP)
    a("s_waitcnt vmcnt(0)")
    stamp(a, 51)
    for e in range(8): a(f"v_add_f32 v{OP+e}, v{OP+e}, v{PR+8+e}")
    rnd(OP, 8, TMP)
    for e in range(8): a(f"v_mul_f32 v{T2+e}, s53, v{OP+e}")
    for e in range(8): a(f"v_exp_f32 v{T2+e}, v{T2+e}")
    for e in range(8): a(f"v_add_f32 v{M+e}, v{YA+8+e}, v{PR+e}")
    for e in range(8): a(f"v_add_f32 v{T2+e}, 1.0, v{T2+e}")
    for e in range(8): a(f"v_rcp_f32 v{T2+e}, v{T2+e}")
    for e in range(8): a(f"v_fma_f32 v{M+e}, v{M+e}, 2.0, v{XN+e}")
    for e in range(8): a(f"v_mul_f32 v{OP+e}, v{OP+e}, v{T2+e}")
    rnd(OP, 8, TMP)
    for e in range(8): a(f"v_mul_f32 v{M+e}, v{M+e}, v{OP+e}")
    for e in range(8): a(f"v_add_f32 v{M+e}, v{M+e}, v{XF+e}")
    a(f"""
    s_mov_b32 s48, 32768
    buffer_store_dwordx4 v[{M}:{M+3}], v12, s[8:11], 0 offen
    buffer_store_dwordx4 v[{M+4}:{M+7}], v12, s[8:11], s48 offen
    """)
    if STAMP: a("s_waitcnt vmcnt(0)")
    stamp(a, 53)
    stamp_store(a, 16, 0)
    a("""
    KF_done:
    s_endpgm
    KF_restart:
    s_mov_b32 s101, 1
    s_waitcnt vmcnt(0) lgkmcnt(0)
    s_barrier
    s_branch KF_top
    """)
    for t_ in tail: a.raw(t_)

HEADER = open("recurrent_scan__ssm_conv_s5__dense_activation_silu__prompt.s.ref").read().split("; Override launch")[0]

def build():
    a = Asm()
    a.raw(HEADER.rstrip("\n"))
    a.raw(f"; @launch grid=(256,1,1) block=(512,1,1) lds={KF_LDS}")
    a.raw('.amdgcn_target "amdgcn-amd-amdhsa--gfx950"\n.text')
    gen_kf(a)
    a.raw('.section .rodata,"a"\n.p2align 6')
    a.raw(kd(KNAME, 256))
    return a.text()

if __name__ == "__main__":
    STAMP = len(sys.argv) > 2 and "stamp" in sys.argv[2]
    open(sys.argv[1], "w").write(build())
```

```python
import sys, struct
sys.path.insert(0, "dev")
from asmlib import Asm, kd

import os
PAD = int(os.environ.get("PAD", "0"))
ROT = int(os.environ.get("ROT", "1"))
MAP = int(os.environ.get("MAP", "1"))
BU_JS = 8192 + 512 * PAD
BU_SS = 4 * BU_JS + 256 * PAD
FT = 56 * 1024 + 256 * PAD
WS_BU  = 0
WS_H1F = 10 << 20
WS_W2F = 18 << 20
WS_S8X = 20 << 20
WS_E   = 21 << 20
WS_TP  = (21 << 20) + (64 << 10)
WS_TL  = (21 << 20) + (128 << 10)
WS_ST  = (21 << 20) + (192 << 10)
WS_CF  = 22 << 20
WS_FL  = 23 << 20
WS_G   = 26 << 20
WS_DBG = 24 << 20
WS_SIZE = 28 << 20
STAMP = False

def stamp(a, i):
    if not STAMP: return
    a(f"""
    s_memtime s[96:97]
    s_waitcnt lgkmcnt(0)
    v_writelane_b32 v255, s96, {i}
    """)

def rstamp(a, i):
    if not STAMP: return
    a(f"""
    s_memrealtime s[96:97]
    s_waitcnt lgkmcnt(0)
    v_writelane_b32 v255, s96, {i}
    """)

def stamp_store(a, srd, k):
    if not STAMP: return
    rstamp(a, 63)
    a(f"""
    s_mov_b64 exec, -1
    v_and_b32 v254, 63, v0
    v_lshlrev_b32 v254, 2, v254
    s_lshl_b32 s96, s2, 3
    s_add_u32 s96, s96, s34
    s_lshl_b32 s96, s96, 8
    s_add_u32 s96, s96, {WS_DBG + k * (1 << 20)}
    buffer_store_dword v255, v254, s[{srd}:{srd+3}], s96 offen
    """)

def srd(a, d, base, nbytes):
    a(f"""
    s_mov_b32 s{d}, s{base}
    s_and_b32 s{d+1}, s{base+1}, 0xffff
    s_mov_b32 s{d+2}, {nbytes}
    s_mov_b32 s{d+3}, 0x00020000
    """)

def f2u(x):
    return struct.unpack("<I", struct.pack("<f", x))[0]

def cplx_sq(a, d, s, t):
    a(f"""
    v_mul_f32 v{t}, v{s+1}, v{s+1}
    v_mul_f32 v{d+1}, v{s}, v{s+1}
    v_fma_f32 v{d}, v{s}, v{s}, -v{t}
    v_add_f32 v{d+1}, v{d+1}, v{d+1}
    """)

def cmul_acc(a, d, x, m, add):
    if add is None:
        a(f"v_pk_mul_f32 v[{d}:{d+1}], v[{x}:{x+1}], v[{m}:{m+1}] op_sel_hi:[1,0]")
    else:
        a(f"v_pk_fma_f32 v[{d}:{d+1}], v[{x}:{x+1}], v[{m}:{m+1}], v[{add}:{add+1}] op_sel_hi:[1,0,1]")
    a(f"v_pk_fma_f32 v[{d}:{d+1}], v[{x}:{x+1}], v[{m}:{m+1}], v[{d}:{d+1}] op_sel:[1,1,0] op_sel_hi:[0,1,1] neg_lo:[0,1,0]")

class Cnt:
    def __init__(self): self.n = 0; self.tags = {}
    def issue(self, tag=None, k=1):
        self.n += k
        if tag is not None: self.tags[tag] = self.n
    def after(self, tag): return self.n - self.tags[tag]
    def copy(self):
        c = Cnt(); c.n = self.n; c.tags = dict(self.tags); return c

def interleave(a, main, fill, lead=0):
    k = 0
    for l in fill[:lead]: a(l)
    k = lead
    n = len(main)
    rest = len(fill) - k
    for i, m in enumerate(main):
        a(m)
        tgt = lead + (rest * (i + 1)) // n
        while k < tgt:
            a(fill[k]); k += 1

L_M = 131072
L_TAB, L_ST, L_CNT, L_Z, L_E16, L_HIN, L_SCR = (L_M, L_M + 20480, L_M + 21504, L_M + 22528, L_M + 24576, L_M + 26624, L_M + 24576)
KF_LDS = 163840
WS_HF = 0
WS_OP = 26 << 20
WS_SIZE = 40 << 20
SPIN = 0x4000
KNAME = "recurrent_scan__ssm_conv_s5__dense_activation_silu__prompt_kernel"
def env(n, d): return int(os.environ.get(n, str(d)))
FORCE = env("FORCE", 0)

def gen_kf(a):
    X, MR, NM, TM = 16, 80, 84, 88
    ACC, BF = 104, 132
    ACCB, BB = 132, 148
    U, Q, MM, LAM, COEF, L4, L16, G1, GG = 164, 180, 184, 188, 192, 196, 200, 204, 208
    WA, WB = 212, 216
    VF, VW, VC, VHB, VW2 = 220, 234, 235, 237, 238
    SELR, VA, W2R, VXS, VXR, VB, VT = 104, 110, 116, 124, 126, 128, 129
    VSC, CRR = 130, 180
    WS_FC, WS_FS = WS_FL + 49152, WS_FL + 57344
    RO, SCB, SHB = 40, 72, 80
    vm = Cnt()
    _af = vm.after
    vm.after = lambda tg: min(63, _af(tg))
    tail = []
    ndual = [0]
    def dual(lines):
        k = ndual[0]; ndual[0] += 1
        a(f"s_cmp_eq_u32 s101, 1\ns_cbranch_scc1 KF_alt{k}")
        for l in lines: a(l)
        a.raw(f"KF_j{k}:")
        tail.append(f"KF_alt{k}:\n    s_nop 7\n    s_nop 7\n" + "".join(f"    {l} sc1\n" for l in lines) + f"    s_nop 7\n    s_branch KF_j{k}")
    a.raw(f".globl {KNAME}\n.p2align 8\n.type {KNAME},@function\n{KNAME}:")
    a("""
    s_cmp_ge_u32 s2, 256
    s_cbranch_scc1 KF_done
    """)
    rstamp(a, 62)
    stamp(a, 30)
    a(f"""
    s_getreg_b32 s3, hwreg(HW_REG_XCC_ID, 0, 3)
    s_mov_b32 s101, 0                       ; mode
    s_lshr_b32 s48, s2, 3
    s_lshl_b32 s100, s3, 5
    s_add_u32 s100, s100, s48
    KF_top:
    s_setprio 3
    s_load_dwordx16 s[72:87], s[0:1], 0
    s_load_dwordx4 s[88:91], s[0:1], 80     ; w1 w2
    s_load_dwordx4 s[92:95], s[0:1], 104
    v_lshrrev_b32 v1, 6, v0
    v_and_b32 v2, 63, v0                    ; lane
    v_readfirstlane_b32 s34, v1             ; wave
    v_and_b32 v14, 15, v2                   ; n
    v_lshrrev_b32 v15, 4, v2                ; g
    v_lshlrev_b32 v1, 4, v2                 ; lane*16
    s_bfe_u32 s32, s100, 0x20006
    s_lshl_b32 s32, s32, 2
    s_and_b32 s48, s100, 3
    s_add_u32 s32, s32, s48
    s_bfe_u32 s63, s100, 0x10005
    s_lshl_b32 s33, s63, 3
    s_bfe_u32 s48, s100, 0x30002
    s_add_u32 s33, s33, s48
    s_and_b32 s35, s34, 3
    s_lshr_b32 s36, s34, 2
    s_lshl_b32 s51, s34, 10                 ; wave*1024
    s_lshl_b32 s52, s34, 14                 ; region
    s_and_b32 s48, s32, 3
    s_lshl_b32 s48, s48, 1
    s_add_u32 s50, s33, s48
    """)
    for pos in range(8):
        a(f"s_add_u32 s48, s50, {pos}\ns_and_b32 s48, s48, 7\ns_lshl_b32 s{64+pos}, s48, 7")
    a(f"""
    s_lshl_b32 s48, s63, 9
    v_lshl_add_u32 v5, v0, 1, s48
    ; x source
    s_lshl_b32 s48, s32, 17
    s_add_u32 s48, s48, s52
    v_lshrrev_b32 v9, 3, v2                 ; r8
    v_and_b32 v10, 7, v2                    ; slot
    v_lshrrev_b32 v12, 1, v9
    v_xor_b32 v13, v12, v10
    v_lshl_add_u32 v4, v9, 10, s48
    v_lshl_add_u32 v{VXS}, v13, 4, v4
    v_xor_b32 v13, 4, v13
    v_lshl_add_u32 v{VXS+1}, v13, 4, v4
    v_add_u32 v{VXS+1}, 8192, v{VXS+1}
    s_and_b32 s60, s33, 3                   ; cq
    s_and_b32 s48, s34, 1
    s_lshl_b32 s48, s48, 2
    v_or_b32 v12, s48, v12
    v_xor_b32 v12, v12, v10
    s_lshl_b32 s48, s35, 3
    s_lshl_b32 s49, s33, 5
    s_add_u32 s48, s48, s49
    v_add_u32 v13, s48, v9                  ; channel
    v_lshlrev_b32 v13, 10, v13
    v_lshl_add_u32 v{VB}, v12, 4, v13
    s_lshl_b32 s57, s2, 3
    s_add_u32 s57, s57, s34                 ; b
    s_sub_u32 s48, s57, 256
    s_cmp_ge_u32 s57, 1792
    s_cselect_b32 s57, s48, s57
    s_lshr_b32 s58, s57, 5                  ; kstep
    s_and_b32 s59, s57, 31                  ; dtile
    v_lshrrev_b32 v12, 1, v2
    v_lshlrev_b32 v12, 10, v12
    v_and_b32 v13, 1, v2
    v_lshl_add_u32 v12, v13, 4, v12
    v_and_b32 v13, 7, v14
    v_lshlrev_b32 v13, 10, v13
    v_lshl_add_u32 v13, v15, 4, v13
    v_lshrrev_b32 v4, 3, v14
    v_lshl_add_u32 v13, v4, 6, v13
    s_bfe_u32 s48, s100, 0x20003
    s_lshl_b32 s48, s48, 17
    s_add_u32 s48, s48, s52                 ; + d tile
    s_lshl_b32 s49, s63, 9
    s_add_u32 s48, s48, s49
    s_bfe_u32 s49, s100, 0x20001
    s_lshl_b32 s49, s49, 7
    s_add_u32 s53, s48, s49
    s_lshl_b32 s61, s58, 15
    s_lshl_b32 s49, s59, 5
    s_add_u32 s61, s61, s49
    s_mul_i32 s48, s59, {FT}
    s_lshl_b32 s49, s58, 10
    s_add_u32 s48, s48, s49
    s_add_u32 s55, s48, {WS_W2F}
    s_add_u32 s48, s3, 1
    {'s_cmp_eq_u32 s2, 0' if FORCE else ''}
    {'s_cselect_b32 s49, 1, 0' if FORCE else ''}
    {'s_xor_b32 s48, s3, s49' if FORCE else ''}
    {'s_add_u32 s48, s48, 1' if FORCE else ''}
    s_mov_b32 s59, s48
    """)
    if STAMP: a("s_memtime s[98:99]")
    a("s_waitcnt lgkmcnt(0)")
    if STAMP: a("v_writelane_b32 v255, s98, 31")
    srd(a, 4, 72, 2048 * 1024)
    srd(a, 20, 92, 256)
    srd(a, 8, 74, 1024)
    srd(a, 12, 76, 1024)
    srd(a, 24, 86, 1024)
    a(f"""
    s_cmp_lg_u32 s36, 0
    s_cbranch_scc1 KF_np
    buffer_load_ushort v6, v5, s[8:11], 0 offen
    buffer_load_ushort v7, v5, s[12:15], 0 offen
    buffer_load_ushort v11, v5, s[24:27], 0 offen
    KF_np:
    """)
    vm.tags["par"] = vm.n
    for pos in range(8):
        for hh in range(2):
            a(f"""
            s_add_u32 m0, s52, {pos * 2048 + hh * 1024}
            s_nop 0
            buffer_load_dwordx4 v{VXS+hh}, s[4:7], s{64+pos} offen lds
            """)
            vm.issue(("x", pos))
    stamp(a, 0)
    srd(a, 28, 90, 1792 * 1024)
    a("""
    s_bitcmp0_b32 s100, 0
    s_cselect_b32 s48, s82, s84
    s_cselect_b32 s49, s83, s85
    """)
    srd(a, 24, 48, 512 * 1024)
    a(f"""
    s_add_u32 s48, s53, 8192
    buffer_load_dwordx4 v[{CRR}:{CRR+3}], v13, s[24:27], s53 offen
    buffer_load_dwordx4 v[{CRR+4}:{CRR+7}], v13, s[24:27], s48 offen
    buffer_load_dwordx4 v[{W2R}:{W2R+3}], v12, s[28:31], s61 offen
    s_cmp_lt_u32 s34, 4
    s_cselect_b32 s48, s78, s80
    s_cselect_b32 s49, s79, s81
    """)
    vm.issue("w2r", 3)
    srd(a, 8, 48, 512 * 1024)
    a("s_setprio 0")
    stamp(a, 16)
    srd(a, 16, 94, WS_SIZE)
    srd(a, 12, 88, 512 * 3584)
    a(f"""
    s_load_dwordx2 s[88:89], s[0:1], 64     ; Dskip
    s_load_dwordx2 s[90:91], s[0:1], 96     ; out
    v_mov_b32 v244, 0
    v_mov_b32 v245, 0
    v_mov_b32 v246, 0
    v_mov_b32 v247, 0
    s_cmp_lg_u32 s34, 4
    s_cbranch_scc1 KF_nz0
    v_add_u32 v9, {L_Z}, v1
    ds_write_b128 v9, v[244:247]
    ds_write_b128 v9, v[244:247] offset:1024
    v_mov_b32 v9, {L_CNT}
    ds_write_b128 v9, v[244:247] offset:16
    KF_nz0:
    v_bfe_u32 v12, v14, 1, 3                ; key = (n>>1)&7
    v_xor_b32 v12, v12, v15                 ; g ^ key
    v_lshlrev_b32 v13, 7, v14
    v_add_u32 v13, s52, v13
    v_lshl_add_u32 v{VXR}, v12, 4, v13
    v_xor_b32 v{VXR+1}, 64, v{VXR}
    v_and_b32 v13, 7, v14
    v_lshlrev_b32 v13, 7, v13
    v_lshrrev_b32 v9, 3, v14
    v_lshl_add_u32 v13, v9, 14, v13
    v_lshl_add_u32 v{VA}, v12, 4, v13
    v_xor_b32 v{VA+1}, 64, v{VA}
    v_add_u32 v{VA+2}, 65536, v{VA}
    v_add_u32 v{VA+3}, 65536, v{VA+1}
    ; w1 source
    s_and_b32 s48, s34, 1
    s_lshl_b32 s48, s48, 2
    v_or_b32 v13, s48, v15                  ; s(k)
    v_bfe_u32 v9, v2, 1, 3                  ; pair'
    v_xor_b32 v13, v13, v9                  ; pair
    v_lshlrev_b32 v13, 5, v13
    v_and_b32 v9, 1, v2
    v_lshl_add_u32 v13, v9, 4, v13
    s_lshl_b32 s48, s34, 3
    v_add_u32 v12, s48, v15                 ; k local (j=0)
    s_movk_i32 s49, 3584
    v_mul_lo_u32 v12, v12, s49
    s_mul_i32 s48, s33, 224
    v_add3_u32 v{VW}, v12, v13, s48
    v_lshlrev_b32 v242, 2, v2
    """)
    fillers = []
    def F(t): fillers.append(t)
    F(f"""
    v_lshrrev_b32 v9, 2, v14                ; m>>2
    v_cmp_eq_u32 vcc, v9, v15
    v_and_b32 v9, 1, v14
    v_lshlrev_b32 v9, 4, v9
    v_mov_b32 v10, 0x3f80
    v_lshlrev_b32 v9, v9, v10
    v_cndmask_b32 v9, 0, v9, vcc
    v_and_b32 v10, 2, v14
    v_cmp_eq_u32 vcc, 0, v10
    v_cndmask_b32 v{SELR+2}, 0, v9, vcc
    v_cndmask_b32 v{SELR+3}, v9, 0, vcc
    v_mov_b32 v{SELR}, 0
    v_mov_b32 v{SELR+1}, 0
    v_mov_b32 v{SELR+4}, 0
    v_mov_b32 v{SELR+5}, 0
    s_lshl_b32 s37, s32, 8
    s_lshl_b32 s48, s63, 7
    s_add_u32 s37, s37, s48
    s_add_u32 s39, s37, {WS_FL}
    s_and_b32 s48, s33, 7
    s_lshl_b32 s48, s48, 2
    s_add_u32 s37, s39, s48
    s_lshl_b32 s38, s32, 4
    s_add_u32 s38, s38, s33
    s_lshl_b32 s47, s33, 12
    s_lshl_b32 s48, s32, 8
    s_add_u32 s47, s47, s48
    s_add_u32 s47, s47, {WS_E}
    s_and_b32 s48, s33, 7
    s_lshl_b32 s48, s48, 8
    s_add_u32 s48, s48, {L_TAB}
    v_lshl_add_u32 v{VT}, v14, 4, s48
    s_add_u32 s48, s51, {L_SCR}
    v_add_u32 v{VSC}, s48, v1
    v_bfe_u32 v9, v2, 2, 2
    v_lshl_add_u32 v9, v15, 2, v9           ; 4g + r
    v_lshlrev_b32 v9, 5, v9
    v_and_b32 v10, 3, v2
    v_lshl_add_u32 v9, v10, 3, v9
    v_add_u32 v{VSC+1}, s48, v9
    """)
    t_ = f"""
    v_bfe_u32 v12, v2, 2, 2                 ; r
    v_and_b32 v13, 1, v15
    v_lshl_or_b32 v13, v13, 2, v12          ; sw
    v_lshlrev_b32 v12, 8, v12
    v_lshl_add_u32 v12, v15, 14, v12        ; g*16384 + r*256
    v_and_b32 v4, 3, v2
    v_lshl_add_u32 v12, v4, 3, v12          ; + c*8
    s_and_b32 s54, s33, 1                   ; par
    s_cmp_lg_u32 s54, 0
    s_cselect_b32 s56, 0, 6
    """
    for p in range(7):
        if p < 6: t_ += f"s_add_u32 s48, s54, {p}\n"
        sreg = "s48" if p < 6 else "s56"
        t_ += f"v_xor_b32 v4, {sreg}, v13\nv_lshl_add_u32 v{VF+p}, v4, 5, v12\nv_add_u32 v{VF+7+p}, 65536, v{VF+p}\n"
    F(t_)
    t_ = f"""
    s_add_u32 s48, s33, s32
    s_lshl_b32 s49, s32, 1
    s_add_u32 s48, s48, s49
    s_and_b32 s62, s48, 7                   ; rot8
    s_cmp_eq_u32 s62, 7
    s_cselect_b32 s61, 3, s62               ; rot7
    """
    for p in range(7):
        t_ += f"""
        s_add_u32 s48, s61, {p}
        s_sub_u32 s49, s48, 7
        s_cmp_ge_u32 s48, 7
        s_cselect_b32 s48, s49, s48
        s_lshl_b32 s{RO+p}, s48, 12
        """
    F(t_)
    t_ = f"""
    s_lshl_b32 s50, s63, 15
    s_lshl_b32 s61, s60, 18
    s_lshl_b32 s48, s63, 17
    s_add_u32 s61, s61, s48
    s_add_u32 s61, s61, {WS_CF}
    """
    for p in range(8):
        t_ += f"""
        s_add_u32 s48, s62, {p}
        s_and_b32 s48, s48, 7
        s_lshl_b32 s49, s48, 14
        s_add_u32 s{SCB+p}, s49, s61
        s_lshl_b32 s49, s48, 12
        s_add_u32 s{SHB+p}, s49, s50
        """
    F(t_)
    F(f"""
    s_lshl_b32 s48, s60, 3
    s_add_u32 s48, s48, s34                 ; cq*8 + w
    s_mul_i32 s48, s48, {FT}
    s_mul_i32 s60, s63, {28 * 1024}         ; kh * 28K
    s_add_u32 s48, s48, s60
    s_add_u32 s48, s48, {WS_W2F}
    v_add_u32 v{VW2}, s48, v1
    v_add_u32 v{VC}, s51, v1
    v_add_u32 v{VC+1}, 8192, v{VC}
    s_bfe_u32 s48, s33, 0x10002             ; rh
    s_lshl_b32 s48, s48, 1
    s_add_u32 s62, s48, s63
    s_lshl_b32 s48, s32, 3
    s_add_u32 s48, s48, s34
    s_lshl_b32 s48, s48, 16
    s_lshl_b32 s49, s33, 12
    s_add_u32 s57, s48, s49
    """)
    a(fillers.pop(0))
    a(f"""
    s_lshr_b32 s48, s100, 3
    s_lshl_b32 s48, s48, 7
    s_and_b32 s49, s100, 7
    s_lshl_b32 s49, s49, 2
    s_add_u32 s48, s48, s49
    s_add_u32 s58, s48, {WS_FC}
    s_cmp_lg_u32 s34, 5
    s_cbranch_scc1 KF_nz
    v_mov_b32 v8, -1
    v_mov_b32 v9, -1
    v_mov_b32 v10, -1
    v_mov_b32 v11, -1
    v_mov_b32 v3, 0
    s_add_u32 s50, s37, 4096
    s_lshl_b32 s48, s38, 7
    s_add_u32 s48, s48, {WS_FL + 8192}
    s_xor_b32 s48, s48, {8 << 7}
    s_lshl_b32 s49, s2, 2
    s_add_u32 s49, s49, {WS_FS}
    s_mov_b64 exec, 0xffff
    buffer_store_dwordx4 v[8:11], v1, s[16:19], s47 offen sc1
    s_mov_b64 exec, 1
    buffer_store_dword v3, v3, s[16:19], s37 offen sc1
    buffer_store_dword v3, v3, s[16:19], s50 offen sc1
    buffer_store_dword v3, v3, s[16:19], s58 offen sc1
    buffer_store_dword v3, v3, s[16:19], s49 offen sc1
    s_mov_b64 exec, 0xff
    buffer_store_dword v3, v242, s[16:19], s48 offen sc1
    s_mov_b64 exec, -1
    KF_nz:
    """)
    vm.tags["clr"] = vm.n
    stamp(a, 1)
    T0 = 136
    def t(i): return T0 + i
    a(f"""
    s_cmp_lg_u32 s36, 0
    s_cbranch_scc1 KF_ntab
    s_waitcnt vmcnt({vm.after('par')})
    v_lshlrev_b32 v{t(1)}, 16, v7               ; Lim
    v_lshlrev_b32 v{t(0)}, 16, v6               ; Lre
    v_lshlrev_b32 v{t(2)}, 16, v11              ; log_dt
    v_mul_f32 v{t(2)}, {f2u(1.4426950408889634):#x}, v{t(2)}
    v_exp_f32 v{t(2)}, v{t(2)}
    v_cvt_pk_bf16_f32 v{t(2)}, v{t(2)}, v{t(2)}
    v_lshlrev_b32 v{t(2)}, 16, v{t(2)}
    v_mul_f32 v{t(3)}, v{t(2)}, v{t(0)}                 ; a
    v_mul_f32 v{t(4)}, v{t(2)}, v{t(1)}                 ; b
    v_mul_f32 v{t(3)}, {f2u(1.4426950408889634):#x}, v{t(3)}
    v_exp_f32 v{t(3)}, v{t(3)}                      ; e^a
    v_mul_f32 v{t(5)}, {f2u(0.6366197723675814):#x}, v{t(4)}
    v_rndne_f32 v{t(5)}, v{t(5)}                    ; n
    v_mov_b32 v{t(6)}, {f2u(1.5703125):#x}
    v_fma_f32 v{t(4)}, -v{t(5)}, v{t(6)}, v{t(4)}
    v_mov_b32 v{t(6)}, {f2u(4.837512969970703125e-4):#x}
    v_fma_f32 v{t(4)}, -v{t(5)}, v{t(6)}, v{t(4)}
    v_mov_b32 v{t(6)}, {f2u(7.54978995489188216e-8):#x}
    v_fma_f32 v{t(4)}, -v{t(5)}, v{t(6)}, v{t(4)}           ; r
    v_cvt_i32_f32 v{t(5)}, v{t(5)}                  ; q
    v_mul_f32 v{t(6)}, v{t(4)}, v{t(4)}                 ; z
    v_mov_b32 v{t(7)}, {f2u(-1.9515295891e-4):#x}
    v_mov_b32 v{t(8)}, {f2u(8.3321608736e-3):#x}
    v_fma_f32 v{t(7)}, v{t(7)}, v{t(6)}, v{t(8)}
    v_mov_b32 v{t(8)}, {f2u(-1.6666654611e-1):#x}
    v_fma_f32 v{t(7)}, v{t(7)}, v{t(6)}, v{t(8)}
    v_mul_f32 v{t(7)}, v{t(7)}, v{t(6)}
    v_fma_f32 v{t(7)}, v{t(7)}, v{t(4)}, v{t(4)}            ; sin r
    v_mov_b32 v{t(8)}, {f2u(2.443315711809948e-5):#x}
    v_mov_b32 v{t(9)}, {f2u(-1.388731625493765e-3):#x}
    v_fma_f32 v{t(8)}, v{t(8)}, v{t(6)}, v{t(9)}
    v_mov_b32 v{t(9)}, {f2u(4.166664568298827e-2):#x}
    v_fma_f32 v{t(8)}, v{t(8)}, v{t(6)}, v{t(9)}
    v_mul_f32 v{t(8)}, v{t(8)}, v{t(6)}
    v_fma_f32 v{t(8)}, v{t(8)}, v{t(6)}, 1.0
    v_fma_f32 v{t(8)}, v{t(6)}, -0.5, v{t(8)}           ; cos r
    v_and_b32 v{t(9)}, 1, v{t(5)}
    v_cmp_eq_u32 vcc, 1, v{t(9)}
    v_cndmask_b32 v{t(10)}, v{t(7)}, v{t(8)}, vcc
    v_cndmask_b32 v{t(11)}, v{t(8)}, v{t(7)}, vcc
    v_lshlrev_b32 v{t(9)}, 30, v{t(5)}
    v_and_b32 v{t(9)}, 0x80000000, v{t(9)}
    v_xor_b32 v{t(10)}, v{t(10)}, v{t(9)}                 ; sin b
    v_add_u32 v{t(9)}, 1, v{t(5)}
    v_lshlrev_b32 v{t(9)}, 30, v{t(9)}
    v_and_b32 v{t(9)}, 0x80000000, v{t(9)}
    v_xor_b32 v{t(11)}, v{t(11)}, v{t(9)}                 ; cos b
    v_mul_f32 v{t(12)}, v{t(3)}, v{t(11)}
    v_mul_f32 v{t(13)}, v{t(3)}, v{t(10)}
    v_lshrrev_b32 v4, 5, v0
    v_lshlrev_b32 v4, 8, v4
    v_lshl_add_u32 v4, v14, 4, v4
    v_and_b32 v8, 1, v15
    v_lshl_add_u32 v4, v8, 3, v4
    v_add_u32 v4, {L_TAB}, v4
    ds_write_b64 v4, v[{t(12)}:{t(13)}]
    """)
    P = {1: t(12)}
    for k in range(1, 8):
        P[1 << k] = t(14 + 2 * k)
        cplx_sq(a, P[1 << k], P[1 << (k - 1)], t(30))
        ent = {2: 2, 3: 3, 4: 5, 5: 6, 6: 8, 7: 9}.get(k)
        if ent is not None: a(f"ds_write_b64 v4, v[{P[1<<k]}:{P[1<<k]+1}] offset:{ent*2048}")
    cmul_acc(a, t(32), P[4], P[8], None); a(f"ds_write_b64 v4, v[{t(32)}:{t(33)}] offset:{4*2048}")
    cmul_acc(a, t(34), P[16], P[32], None); a(f"ds_write_b64 v4, v[{t(34)}:{t(35)}] offset:{7*2048}")
    a(f"""
    v_add_f32 v{t(4)}, -1.0, v{t(12)}                ; Lr-1
    v_mul_f32 v{t(5)}, v{t(13)}, v{t(1)}
    v_fma_f32 v{t(5)}, v{t(4)}, v{t(0)}, v{t(5)}
    v_mul_f32 v{t(6)}, v{t(4)}, v{t(1)}
    v_fma_f32 v{t(6)}, v{t(13)}, v{t(0)}, -v{t(6)}
    v_mul_f32 v{t(7)}, v{t(1)}, v{t(1)}
    v_fma_f32 v{t(7)}, v{t(0)}, v{t(0)}, v{t(7)}            ; den
    v_rcp_f32 v{t(8)}, v{t(7)}
    v_fma_f32 v{t(9)}, -v{t(7)}, v{t(8)}, 2.0
    v_mul_f32 v{t(8)}, v{t(8)}, v{t(9)}
    v_mul_f32 v{t(14)}, v{t(5)}, v{t(8)}
    v_mul_f32 v{t(15)}, v{t(6)}, v{t(8)}
    ds_write_b64 v4, v[{t(14)}:{t(15)}] offset:2048
    KF_ntab:
    """)
    stamp(a, 28)
    def sto(st): return 8192 + st * 2048 if st < 4 else (st - 4) * 2048
    def dma_piece(st, i):
        base = sto(st)
        if i == 0:
            a(f"""
            s_add_u32 m0, s52, {base}
            s_mul_i32 s49, s{64+st}, 1792
            buffer_load_dwordx4 v{VW}, s[12:15], s49 offen lds
            """)
        else:
            a(f"""
            s_mul_i32 s49, s{64+st}, 1792
            s_add_u32 m0, s52, {base + 1024}
            s_add_u32 s49, s49, {4 * 3584}
            buffer_load_dwordx4 v{VW}, s[12:15], s49 offen lds
            """)
        vm.issue(("dma", st), 1)
    def arrive(word, reg):
        a(f"""
        v_mov_b32 v8, {L_CNT + word}
        v_mov_b32 v9, 1
        s_mov_b64 exec, 1
        ds_add_rtn_u32 v{reg}, v8, v9
        s_mov_b64 exec, -1
        """)
    def setflag(w, sreg, label, local):
        a(f"""
        s_cmp_lg_u32 s34, {w}
        s_cbranch_scc1 {label}
        v_mov_b32 v9, 1
        v_mov_b32 v8, 0
        s_mov_b64 exec, 1
        """)
        if local: dual([f"buffer_store_dword v9, v8, s[16:19], {sreg} offen"])
        else: a(f"buffer_store_dword v9, v8, s[16:19], {sreg} offen sc1")
        a(f"s_mov_b64 exec, -1\n{label}:")
    S1, S2 = TM, TM + 2
    a("s_mov_b32 s53, 0x3f803f80")
    def bdma(s):
        a(f"""
        s_add_u32 m0, s52, {s * 1024}
        s_nop 0
        buffer_load_dwordx4 v{VB}, s[8:11], s{64+s} offen lds
        """)
        vm.issue("bdma", 1)
    def xread(c):
        a(f"s_waitcnt vmcnt({vm.after(('x', c))})")
        for h in range(2):
            r = X + (c * 2 + h) * 4
            a(f"ds_read_b128 v[{r}:{r+3}], v{VXR+h} offset:{c*2048}")
    xread(0)
    for c in range(8):
        if c < 7: xread(c + 1)
        stamp(a, 20 + c)
        a(f"s_waitcnt lgkmcnt({2 if c < 7 else 0})")
        if c < 4:
            bdma(2 * c); bdma(2 * c + 1)
        else:
            dma_piece(c - 4, 0); dma_piece(c - 4, 1)
        if c < len(fillers): a(fillers[c])
        if c == env("ARC", 5):
            a(f"""
            s_cmp_lg_u32 s34, 5
            s_cbranch_scc1 KF_narr
            s_cmp_lg_u32 s101, 0
            s_cselect_b32 s48, 0x30, 0x20
            s_or_b32 s48, s48, s59
            v_mov_b32 v9, s48
            v_mov_b32 v8, s2
            s_waitcnt vmcnt({vm.after('clr')})
            s_mov_b64 exec, 1
            buffer_store_byte v9, v8, s[20:23], 0 offen sc1
            s_mov_b64 exec, -1
            KF_narr:
            """)
        for d in range(8):
            x = X + c * 8 + d
            s1 = S1 + (d & 1); s2 = S2 + (d & 1)
            first = (c == 0 and d < 2)
            a(f"v_dot2_f32_bf16 v{s1}, v{x}, s53, {'0' if first else 'v%d' % s1}")
            a(f"v_dot2_f32_bf16 v{s2}, v{x}, v{x}, {'0' if first else 'v%d' % s2}")
    stamp(a, 2)
    a(f"""
    s_waitcnt vmcnt({vm.after('w2r')})
    ds_write_b128 v{VSC}, v[{W2R}:{W2R+3}]
    ds_read_b64_tr_b16 v[{W2R}:{W2R+1}], v{VSC+1}
    ds_read_b64_tr_b16 v[{W2R+2}:{W2R+3}], v{VSC+1} offset:512
    s_bfe_u32 s48, s100, 0x20003
    s_lshl_b32 s48, s48, 18
    s_lshl_b32 s49, s63, 17
    s_add_u32 s48, s48, s49
    s_bfe_u32 s49, s100, 0x20001
    s_lshl_b32 s49, s49, 15
    s_add_u32 s48, s48, s49
    s_and_b32 s49, s100, 1
    s_lshl_b32 s49, s49, 13
    s_add_u32 s48, s48, s49
    s_add_u32 s48, s48, s51
    s_add_u32 s48, s48, {WS_CF}
    s_add_u32 s49, s48, 16384
    """)
    for e in range(4): a(f"v_mov_b32 v{CRR+8+e}, v{CRR+e}")
    for e in range(4): a(f"v_mov_b32_dpp v{CRR+e}, v{CRR+4+e} row_ror:8 row_mask:0xf bank_mask:0xc")
    for e in range(4): a(f"v_mov_b32_dpp v{CRR+4+e}, v{CRR+8+e} row_ror:8 row_mask:0xf bank_mask:0x3")
    dual([f"buffer_store_dwordx4 v[{CRR}:{CRR+3}], v1, s[16:19], s48 offen", f"buffer_store_dwordx4 v[{CRR+4}:{CRR+7}], v1, s[16:19], s49 offen"])
    vm.issue("cst", 2)
    a(f"""
    s_waitcnt lgkmcnt(0)
    buffer_store_dwordx4 v[{W2R}:{W2R+3}], v1, s[16:19], s55 offen sc1
    """)
    vm.issue("sts", 1)
    stamp(a, 29)
    Qs = TM + 8
    a(f"""
    v_add_f32 v{Qs}, v{S1}, v{S1+1}
    v_add_f32 v{Qs+1}, v{S2}, v{S2+1}
    """)
    for op in ("v_permlane16_swap_b32", "v_permlane32_swap_b32"):
        a(f"""
        v_mov_b32 v{Qs+2}, v{Qs}
        v_mov_b32 v{Qs+3}, v{Qs+1}
        {op} v{Qs}, v{Qs+2}
        {op} v{Qs+1}, v{Qs+3}
        v_add_f32 v{Qs}, v{Qs}, v{Qs+2}
        v_add_f32 v{Qs+1}, v{Qs+1}, v{Qs+3}
        """)
    a(f"""
    v_mul_f32 v{Qs}, {f2u(1/512):#x}, v{Qs}
    v_mul_f32 v{Qs+1}, {f2u(1/512):#x}, v{Qs+1}
    v_fma_f32 v{Qs+1}, -v{Qs}, v{Qs}, v{Qs+1}
    v_max_f32 v{Qs+1}, 0, v{Qs+1}
    v_cvt_pk_bf16_f32 v{Qs+2}, v{Qs}, v{Qs+1}
    v_lshlrev_b32 v{MR}, 16, v{Qs+2}
    v_and_b32 v{Qs+1}, 0xffff0000, v{Qs+2}
    v_xor_b32 v{NM}, 0x80000000, v{MR}
    v_add_f32 v{Qs+1}, {f2u(1e-5):#x}, v{Qs+1}
    v_mov_b32 v{NM+1}, v{NM}
    v_cvt_pk_bf16_f32 v{Qs+1}, v{Qs+1}, v{Qs+1}
    v_mov_b32 v{NM+2}, v{NM}
    v_lshlrev_b32 v{Qs+1}, 16, v{Qs+1}
    v_mov_b32 v{NM+3}, v{NM}
    v_sqrt_f32 v{Qs+1}, v{Qs+1}
    v_cvt_pk_bf16_f32 v{Qs+1}, v{Qs+1}, v{Qs+1}
    v_lshlrev_b32 v{Qs+1}, 16, v{Qs+1}
    v_rcp_f32 v{Qs+2}, v{Qs+1}
    v_fma_f32 v{Qs+3}, -v{Qs+1}, v{Qs+2}, 2.0
    v_mul_f32 v{MR+1}, v{Qs+2}, v{Qs+3}
    """)
    def unpack(f):
        x0 = X + f * 4
        T = TM + 8 * (f & 1)
        return [f"v_mfma_f32_16x16x32_bf16 v[{T}:{T+3}], v[{SELR+2}:{SELR+5}], v[{x0}:{x0+3}], v[{NM}:{NM+3}]",
                f"v_mfma_f32_16x16x32_bf16 v[{T+4}:{T+7}], v[{SELR}:{SELR+3}], v[{x0}:{x0+3}], v[{NM}:{NM+3}]"]
    def norm_valu(f):
        x0 = X + f * 4
        T = TM + 8 * (f & 1)
        o = []
        for e in range(8): o.append(f"v_cvt_pk_bf16_f32 v{T+e}, 0, v{T+e}")
        for e in range(8): o.append(f"v_mul_f32 v{T+e}, v{T+e}, v{MR+1}")
        for d in range(4): o.append(f"v_cvt_pk_bf16_f32 v{x0+d}, v{T+2*d}, v{T+2*d+1}")
        return o
    for l in unpack(0) + unpack(1): a(l)
    a(f"""
    s_lshl_b32 s48, s34, 7
    v_lshl_add_u32 v4, v14, 3, s48
    v_add_u32 v4, {L_ST}, v4
    ds_write_b64 v4, v[{MR}:{MR+1}]
    v_lshl_add_u32 v4, v15, 11, v{VT}       ; + g*2048
    s_lshl_b32 s48, s35, 11
    v_add_u32 v5, s48, v{VT}
    """)
    for l in norm_valu(0): a(l)
    for l in unpack(2): a(l)
    stamp(a, 3)
    a(f"""
    s_waitcnt vmcnt({vm.after('bdma')}) lgkmcnt(0)
    s_barrier
    """)
    def breads(j):
        pos, ks = j >> 1, j & 1
        b = BB + (j & 1) * 16
        return [f"ds_read_b128 v[{b+4*q}:{b+4*q+3}], v{VA + ks + 2 * (q >> 1)} offset:{pos * 1024 + (q & 1) * 32768}" for q in range(4)]
    for l in breads(0): a(l)
    lg = Cnt()
    lg.tags[("b", 0)] = 0
    a(f"""
    ds_read_b128 v[{LAM}:{LAM+3}], v{VT}
    ds_read_b128 v[{COEF}:{COEF+3}], v{VT} offset:2048
    ds_read_b128 v[{L4}:{L4+3}], v{VT} offset:4096
    ds_read_b128 v[{L16}:{L16+3}], v{VT} offset:{5*2048}
    ds_read_b128 v[{GG}:{GG+3}], v4 offset:2048
    ds_read_b128 v[{WA}:{WA+3}], v5 offset:{4*2048}
    ds_read_b128 v[{WB}:{WB+3}], v{VT} offset:{8*2048}
    """)
    lg.issue(None, 7)
    for l in norm_valu(1): a(l)
    stamp(a, 4)
    ARJ = env("ARJ", 2)
    for j in range(16):
        b = BB + (j & 1) * 16
        a(f"s_waitcnt lgkmcnt({lg.after(('b', j))})")
        main = []
        for q in range(4):
            ac = ACCB + 4 * q
            c = "0" if j == 0 else f"v[{ac}:{ac+3}]"
            main.append(f"v_mfma_f32_16x16x32_bf16 v[{ac}:{ac+3}], v[{X+4*j}:{X+4*j+3}], v[{b+4*q}:{b+4*q+3}], {c}")
        if j + 3 < 16:
            un = unpack(j + 3)
            main = [main[0], main[1], main[2], main[3], un[0], un[1]]
        nr = breads(j + 1) if j < 15 else []
        va = norm_valu(j + 2) if j + 2 < 16 else []
        interleave(a, main, nr + va, lead=0)
        lg.issue(("b", j + 1), len(nr))
        if j == 7:
            a(f"s_waitcnt vmcnt({vm.after('cst')})\ns_barrier")
            setflag(3, "s58", "KF_nfc", True)
            dma_piece(4, 0); dma_piece(4, 1)
        if j == 8:
            dma_piece(5, 0); dma_piece(5, 1)
        if j == 13:
            a(f"""
            s_cmp_lg_u32 s34, 7
            s_cbranch_scc1 KF_np0
            buffer_load_dword v243, v242, s[20:23], 0 offen sc1
            KF_np0:
            v_cmp_eq_u32 vcc, 0, v15
            """)
            for e in range(4): a(f"v_cndmask_b32 v{GG+e}, v{GG+e}, {'1.0' if e % 2 == 0 else '0'}, vcc")
            a("v_and_b32 v4, 1, v15\nv_cmp_eq_u32 vcc, 1, v4")
            for e in range(4): a(f"v_cndmask_b32 v{G1+e}, {'1.0' if e % 2 == 0 else '0'}, v{L4+e}, vcc")
            a("s_cmp_eq_u32 s35, 0\ns_cselect_b64 vcc, -1, 0")
            for e in range(4): a(f"v_cndmask_b32 v{WA+e}, v{WA+e}, {'1.0' if e % 2 == 0 else '0'}, vcc")
            a("s_cmp_eq_u32 s36, 0\ns_cselect_b64 vcc, -1, 0")
            for e in range(4): a(f"v_cndmask_b32 v{WB+e}, v{WB+e}, {'1.0' if e % 2 == 0 else '0'}, vcc")
        if j == 14:
            for ct in range(2): cmul_acc(a, Q + 2 * ct, WA + 2 * ct, WB + 2 * ct, None)
            for ct in range(2): cmul_acc(a, MM + 2 * ct, Q + 2 * ct, GG + 2 * ct, None)
    stamp(a, 5)
    for ct in range(2):
        cf = COEF + 2 * ct
        for r in range(4):
            u = U + ct * 8 + 2 * r
            re = ACCB + (0 * 2 + ct) * 4 + r
            im = ACCB + (1 * 2 + ct) * 4 + r
            a(f"""
            v_mul_f32 v{u}, v{cf+1}, v{im}
            v_mul_f32 v{u+1}, v{cf+1}, v{re}
            v_fma_f32 v{u}, v{cf}, v{re}, -v{u}
            v_fma_f32 v{u+1}, v{cf}, v{im}, v{u+1}
            """)
    for r in range(1, 4):
        for ct in range(2):
            c = U + ct * 8 + 2 * r
            cmul_acc(a, c, c - 2, LAM + 2 * ct, c)
    TT, CC, E8, X1, SS = 88, 92, 96, 100, 148
    def e4(i): return U + (i >> 1) * 8 + 6 + (i & 1)
    for i in range(4): a(f"v_mov_b32 v{TT+i}, 0\nv_mov_b32 v{CC+i}, v{e4(i)}")
    for i in range(4): a(f"v_permlane16_swap_b32 v{TT+i}, v{CC+i}")
    for ct in range(2): cmul_acc(a, E8 + 2 * ct, TT + 2 * ct, L4 + 2 * ct, e4(2 * ct))
    for i in range(4): a(f"v_mov_b32 v{X1+i}, v{E8+i}\nv_mov_b32 v{SS+i}, 0")
    for i in range(4): a(f"v_permlane16_swap_b32 v{X1+i}, v{E8+i}")
    for i in range(4): a(f"v_permlane32_swap_b32 v{SS+i}, v{E8+i}")
    for ct in range(2): cmul_acc(a, Q + 2 * ct, SS + 2 * ct, G1 + 2 * ct, TT + 2 * ct)
    for ct in range(2): cmul_acc(a, G1 + 2 * ct, Q + 2 * ct, L4 + 2 * ct, e4(2 * ct))
    E16 = G1
    a(f"""
    s_lshl_b32 s48, s34, 8
    s_add_u32 s48, s48, {L_E16}
    v_lshl_add_u32 v4, v14, 4, s48
    s_mov_b32 s48, 0
    s_mov_b32 s49, 0xffff0000
    s_mov_b64 exec, s[48:49]
    ds_write_b128 v4, v[{E16}:{E16+3}]
    s_mov_b64 exec, -1
    v_subrev_u32 v12, {7 * 256}, v4         ; e16[w-7]
    """)
    stamp(a, 6)
    a(f"""
    s_cmp_lg_u32 s34, 7
    s_cbranch_scc1 KF_nck
    s_mov_b32 s50, 1
    s_movk_i32 s61, {SPIN}
    s_mov_b32 s49, 0x20202020
    s_cmp_lg_u32 s101, 0
    s_cselect_b32 s49, 0x10101010, s49
    s_waitcnt vmcnt(0)
    KF_ckl:
    v_and_b32 v4, s49, v243
    v_cmp_ne_u32 vcc, s49, v4
    s_cbranch_vccz KF_cka
    s_sub_u32 s61, s61, 1
    s_cbranch_scc1 KF_ckd
    s_sleep 1
    buffer_load_dword v243, v242, s[20:23], 0 offen sc1
    s_waitcnt vmcnt(0)
    s_branch KF_ckl
    KF_cka:
    s_cmp_lg_u32 s101, 0
    s_cbranch_scc1 KF_ckd
    v_bfe_u32 v4, v243, 0, 4
    v_bfe_u32 v5, v243, 8, 4
    v_bfe_u32 v6, v243, 16, 4
    v_bfe_u32 v7, v243, 24, 4
    v_lshlrev_b32 v4, v4, 1
    v_lshlrev_b32 v5, v5, 1
    v_lshlrev_b32 v6, v6, 1
    v_lshlrev_b32 v7, v7, 1
    v_or3_b32 v4, v4, v5, v6
    v_or_b32 v4, v4, v7
    v_or_b32_dpp v4, v4, v4 quad_perm:[1,0,3,2] row_mask:0xf bank_mask:0xf
    v_cmp_ne_u32 vcc, 0x1fe, v4
    s_cbranch_vccz KF_ckd
    v_mov_b32 v4, 0
    v_mov_b32 v5, 0
    s_mov_b32 s61, 0
    """)
    for j in range(4):
        a(f"""
        v_bfe_u32 v8, v243, {8*j}, 4
        v_cmp_eq_u32 s[48:49], s59, v8
        v_add_u32 v9, {j}, v242
        v_cmp_gt_u32 vcc, s2, v9
        v_lshlrev_b32 v8, 3, v8
        v_subrev_u32 v8, 8, v8
        v_lshlrev_b64 v[6:7], v8, 1
        v_add_u32 v4, v4, v6
        v_add_u32 v5, v5, v7
        s_and_b64 s[48:49], s[48:49], vcc
        s_bcnt1_i32_b64 s48, s[48:49]
        s_add_u32 s61, s61, s48
        """)
    for r in (1, 2, 4, 8):
        a(f"v_add_u32_dpp v4, v4, v4 row_ror:{r} row_mask:0xf bank_mask:0xf\nv_add_u32_dpp v5, v5, v5 row_ror:{r} row_mask:0xf bank_mask:0xf")
    for op in ("v_permlane16_swap_b32", "v_permlane32_swap_b32"):
        a(f"""
        v_mov_b32 v6, v4
        v_mov_b32 v7, v5
        {op} v4, v6
        {op} v5, v7
        v_add_u32 v4, v4, v6
        v_add_u32 v5, v5, v7
        """)
    a(f"""
    v_readfirstlane_b32 s48, v4
    v_readfirstlane_b32 s49, v5
    s_xor_b32 s48, s48, 0x20202020
    s_xor_b32 s49, s49, 0x20202020
    s_or_b32 s48, s48, s49
    s_lshl_b32 s49, s3, 5
    s_add_u32 s49, s49, s61
    s_or_b32 s50, s49, 0x100
    s_cmp_lg_u32 s48, 0
    s_cselect_b32 s50, 2, s50
    KF_ckd:
    v_mov_b32 v8, s50
    v_mov_b32 v4, {L_CNT}
    ds_write_b32 v4, v8
    KF_nck:
    v_mov_b32 v3, {L_CNT}
    s_waitcnt vmcnt({vm.after(('dma', 3))}) lgkmcnt(0)
    s_barrier
    ds_read_b32 v3, v3
    """)
    stamp(a, 7)
    EBL = [88, 92, 96, 100, 84, 4, 8]
    for j in range(7): a(f"ds_read_b128 v[{EBL[j]}:{EBL[j]+3}], v12 offset:{j*256}")
    lg = Cnt()
    def fread(i):
        k, p = divmod(i, 7)
        st, ks = k >> 1, k & 1
        b = BF + (i % 8) * 4
        a(f"ds_read_b64_tr_b16 v[{b}:{b+1}], v{VF+7*ks+p} offset:{sto(st)}")
        a(f"ds_read_b64_tr_b16 v[{b+2}:{b+3}], v{VF+7*ks+p} offset:{sto(st)+1024}")
        lg.issue(("f", i), 2)
    a("s_waitcnt lgkmcnt(7)\nv_readfirstlane_b32 s48, v3\ns_cmp_lg_u32 s48, 1\ns_cbranch_scc1 KF_restart")
    lg.issue("p2b", 7)
    for i in range(4): fread(i)
    dma_piece(6, 0); dma_piece(6, 1)
    for i in range(4, 7): fread(i)
    dma_piece(7, 0); dma_piece(7, 1)
    WF = {}
    def wload(i, q, reg):
        a(f"buffer_load_dwordx4 v[{reg}:{reg+3}], v{VW2}, s[16:19], s{RO+i} offen offset:{q*1024}")
        vm.issue(("w", i)); WF[(i, q)] = reg
    def cload(b, ri):
        reg = X + 8 * b + 4 * ri
        a(f"buffer_load_dwordx4 v[{reg}:{reg+3}], v{VC+ri}, s[16:19], s{SCB+b} offen")
        vm.issue(("c", b))
    class L:
        def __init__(s): s.l = []
        def __call__(s, t_): s.l += [x.strip() for x in t_.strip().split("\n") if x.strip()]
    a(f"s_waitcnt lgkmcnt({min(15, lg.after('p2b'))})")
    for j in range(1, 7):
        for ct in range(2): cmul_acc(a, EBL[j] + 2 * ct, EBL[j - 1] + 2 * ct, L16 + 2 * ct, EBL[j] + 2 * ct)
    for ct in range(2): cmul_acc(a, E16 + 2 * ct, EBL[6] + 2 * ct, L16 + 2 * ct, E16 + 2 * ct)
    a(f"""
    s_cmp_lg_u32 s34, 7
    s_cbranch_scc1 KF_npub
    v_lshlrev_b32 v3, 4, v14
    s_mov_b32 s48, 0
    s_mov_b32 s49, 0xffff0000
    s_mov_b64 exec, s[48:49]
    buffer_store_dwordx4 v[{E16}:{E16+3}], v3, s[16:19], s47 offen sc1
    s_mov_b64 exec, -1
    KF_npub:
    """)
    vm.tags["dbg"] = vm.n
    for ct in range(2): cmul_acc(a, Q + 2 * ct, EBL[6] + 2 * ct, GG + 2 * ct, Q + 2 * ct)
    PC, PH, PL, PT = 192, 200, 208, 216
    def psf_valu():
        o = L()
        for ct in range(2): cmul_acc(o, PC + 2 * ct, PT + 2 * ct, MM + 2 * ct, Q + 2 * ct)
        for r in range(4):
            for ct in range(2):
                src = PC + (r & 1) * 4 + 2 * ct; dst = PC + ((r + 1) & 1) * 4 + 2 * ct
                cmul_acc(o, dst, src, LAM + 2 * ct, None)
                u = U + ct * 8 + 2 * r
                o(f"v_pk_add_f32 v[{u}:{u+1}], v[{u}:{u+1}], v[{dst}:{dst+1}]")
        return o.l
    def psf_split(ri):
        o = L(); ng = "-" if ri else ""
        for ct in range(2):
            h = PH + ri * 4 + ct * 2; l = PL + ri * 4 + ct * 2
            u = lambda r: U + ct * 8 + 2 * r + ri
            for pr in range(2):
                o(f"v_cvt_pk_bf16_f32 v{h+pr}, {ng}v{u(2*pr)}, {ng}v{u(2*pr+1)}")
            for pr in range(2):
                o(f"v_lshlrev_b32 v{PT+2*pr}, 16, v{h+pr}\nv_and_b32 v{PT+2*pr+1}, 0xffff0000, v{h+pr}")
            o(f"ds_write_b64 v3, v[{h}:{h+1}] offset:{ct*512}")
            for r in range(4): o(f"v_sub_f32 v{PT+r}, {ng}v{u(r)}, v{PT+r}")
            for pr in range(2): o(f"v_cvt_pk_bf16_f32 v{l+pr}, v{PT+2*pr}, v{PT+2*pr+1}")
            o(f"ds_write_b64 v3, v[{l}:{l+1}] offset:{1024 + ct*512}")
        return o.l
    HO = [PC, PC + 4, U, U + 4]
    def psf_tr(ri):
        o = []
        for hl in range(2):
            d = HO[ri * 2 + hl]
            o.append(f"ds_read_b64_tr_b16 v[{d}:{d+1}], v12 offset:{hl*1024}")
            o.append(f"ds_read_b64_tr_b16 v[{d+2}:{d+3}], v13 offset:{hl*1024}")
        return o
    def psf_addr():
        o = L()
        o(f"""
        v_lshlrev_b32 v4, 4, v14
        v_add_u32 v4, {L_HIN}, v4
        ds_read_b128 v[{PT}:{PT+3}], v4
        s_lshl_b32 s48, s34, 11
        s_add_u32 s48, s48, {L_TAB}
        v_lshrrev_b32 v3, 2, v14
        v_xor_b32 v3, v3, v15
        v_lshlrev_b32 v3, 3, v3
        v_lshl_add_u32 v3, v14, 5, v3
        v_add_u32 v3, s48, v3
        v_bfe_u32 v12, v2, 2, 2
        v_lshl_add_u32 v12, v15, 3, v12
        v_lshlrev_b32 v13, 1, v15
        v_and_b32 v13, 3, v13
        v_and_b32 v4, 3, v2
        v_xor_b32 v13, v13, v4
        v_lshlrev_b32 v13, 3, v13
        v_lshl_add_u32 v12, v12, 5, v13
        v_add_u32 v12, s48, v12
        v_add_u32 v13, 128, v12
        v_xor_b32 v13, 8, v13
        """)
        return o.l
    EL, R7, L128, L512, HG = 192, 208, 4, 8, 216
    def w7_eload(first):
        o = ""
        for j in range(4):
            o += f"buffer_load_dwordx4 v[{EL+4*j}:{EL+4*j+3}], v{244+j}, s[16:19], s50 offen sc1\n"
        if not first: return o
        a(f"""
        s_cmp_lg_u32 s34, 7
        s_cbranch_scc1 KF_nel
        s_sub_u32 s48, s32, 1
        v_sub_u32 v8, s48, v15                  ; rt - 1 - g
        """)
        for j in range(4):
            a(f"""
            v_subrev_u32 v9, {4*j}, v8
            v_cmp_gt_i32 vcc, 0, v9
            v_lshlrev_b32 v9, 8, v9
            v_lshl_add_u32 v9, v14, 4, v9
            v_mov_b32 v10, {WS_SIZE}
            v_cndmask_b32 v{244+j}, v9, v10, vcc
            """)
        a(f"""
        s_lshl_b32 s50, s33, 12
        s_add_u32 s50, s50, {WS_E}
        {o}
        s_and_b32 s48, s33, 7
        s_lshl_b32 s48, s48, 8
        s_add_u32 s48, s48, {L_TAB + 9 * 2048}
        v_lshl_add_u32 v8, v14, 4, s48
        ds_read_b128 v[{L128}:{L128+3}], v8
        s_waitcnt lgkmcnt(0)
        """)
        for ct in range(2): cplx_sq(a, R7 + 2 * ct, L128 + 2 * ct, 3)
        for ct in range(2): cplx_sq(a, L512 + 2 * ct, R7 + 2 * ct, 3)
        a("v_and_b32 v3, 1, v15\nv_cmp_eq_u32 vcc, 1, v3")
        for e in range(4): a(f"v_cndmask_b32 v{L128+e}, {'1.0' if e % 2 == 0 else '0'}, v{L128+e}, vcc")
        a("v_cmp_lt_u32 vcc, 1, v15")
        for e in range(4): a(f"v_cndmask_b32 v{R7+e}, {'1.0' if e % 2 == 0 else '0'}, v{R7+e}, vcc")
        for ct in range(2): cmul_acc(a, HG + 2 * ct, L128 + 2 * ct, R7 + 2 * ct, None)
        a("KF_nel:")
        vm.tags["e"] = vm.n
    def w7_horner():
        a(f"""
        s_cmp_lg_u32 s34, 7
        s_cbranch_scc1 KF_nho
        s_movk_i32 s61, {SPIN}
        s_waitcnt vmcnt({vm.after('e')})
        KF_hol:
        """)
        a(f"v_cmp_eq_u32 vcc, -1, v{EL}")
        for i in range(1, 16):
            a(f"v_cmp_eq_u32 s[48:49], -1, v{EL+i}\ns_or_b64 vcc, vcc, s[48:49]")
        a(f"""
        s_cmp_eq_u64 vcc, 0
        s_cbranch_scc1 KF_hod
        s_sub_u32 s61, s61, 1
        s_cbranch_scc1 KF_hod
        s_sleep 1
        {w7_eload(False)}
        s_waitcnt vmcnt(0)
        s_branch KF_hol
        KF_hod:
        """)
        for j in (2, 1, 0):
            for ct in range(2): cmul_acc(a, EL + 4 * j + 2 * ct, EL + 4 * (j + 1) + 2 * ct, L512 + 2 * ct, EL + 4 * j + 2 * ct)
        R = R7
        for ct in range(2): cmul_acc(a, R + 2 * ct, EL + 2 * ct, HG + 2 * ct, None)
        for op in ("v_permlane16_swap_b32", "v_permlane32_swap_b32"):
            for i in range(4): a(f"v_mov_b32 v{R+4+i}, v{R+i}")
            for i in range(4): a(f"{op} v{R+i}, v{R+4+i}")
            for i in range(4): a(f"v_add_f32 v{R+i}, v{R+i}, v{R+4+i}")
        a(f"""
        v_add_u32 v8, {L_HIN}, v1
        s_mov_b64 exec, 0xffff
        ds_write_b128 v8, v[{R}:{R+3}]
        s_mov_b64 exec, -1
        s_waitcnt lgkmcnt(0)
        KF_nho:
        """)
    def signal(reg, sreg, label):
        a(f"""
        v_readfirstlane_b32 s48, v{reg}
        s_cmp_lg_u32 s48, 7
        s_cbranch_scc1 {label}
        v_mov_b32 v9, 1
        v_mov_b32 v8, 0
        s_mov_b64 exec, 1
        """)
        dual([f"buffer_store_dword v9, v8, s[16:19], {sreg} offen"])
        a(f"s_mov_b64 exec, -1\n{label}:")
    def poll(reg, addr, sreg, label, tag):
        a(f"""
        s_movk_i32 s61, {SPIN}
        s_waitcnt vmcnt({vm.after(tag)})
        {label}l:
        v_cmp_ne_u32 vcc, 1, v{reg}
        s_cbranch_vccz {label}d
        s_sub_u32 s61, s61, 1
        s_cbranch_scc1 {label}d
        s_sleep 1
        buffer_load_dword v{reg}, v{addr}, s[16:19], {sreg} offen sc1
        s_waitcnt vmcnt(0)
        s_branch {label}l
        {label}d:
        """)
    EI, HI, PSN = env("EI", 28), env("HB", 63), env("PSN", 24)
    ev = {}
    def add(i, f): ev.setdefault(i, []).append(f)
    W01 = [80, 84, 88, 92, 96, 100, 248, 244]
    def fc_issue():
        a(f"""
        v_and_b32 v5, 7, v2
        v_lshlrev_b32 v5, 2, v5
        s_lshr_b32 s48, s100, 5
        s_lshl_b32 s48, s48, 2
        s_and_b32 s49, s33, 3
        s_add_u32 s48, s48, s49
        s_lshl_b32 s48, s48, 7
        s_add_u32 s55, s48, {WS_FC}
        buffer_load_dword v11, v5, s[16:19], s55 offen sc1
        """)
        vm.issue("pc")
    add(0, fc_issue)
    add(14, lambda: poll(11, 5, "s55", "KF_pc", "pc"))
    def fs_set():
        a(f"s_lshl_b32 s49, s2, 2\ns_add_u32 s49, s49, {WS_FS}")
        setflag(3, "s49", "KF_nfs", False)
    add(48, fs_set)
    for b in range(7):
        for ri in range(2): add((2 * b + 2) * 7 + 1 + 3 * ri, (lambda b=b, ri=ri: cload(b, ri)))
    add(EI, lambda: w7_eload(True))
    add(HI, w7_horner)
    items = psf_addr() + ["@w"] + psf_valu() + psf_split(0) + psf_tr(0) + ["#t0"] + psf_split(1) + psf_tr(1) + ["#t1", "@s"]
    for k, l in enumerate(items): add(HI + 1 + (k * PSN) // len(items), l)
    AR4 = min(110, HI + PSN + env("A4", 8))
    def h_arrive():
        a(f"s_waitcnt vmcnt({vm.after('hst')})"); arrive(20, 10); lg.issue("ar4")
    add(AR4, h_arrive)
    def h_signal():
        a(f"s_waitcnt lgkmcnt({min(15, lg.after('ar4'))})\ns_add_u32 s49, s37, 4096"); signal(10, "s49", "KF_nf4")
    add(min(111, AR4 + 4), h_signal)
    bars = {48: ("dma", 5), 76: ("dma", 7)}
    for i in range(112):
        k, p = divmod(i, 7)
        if p == 0 and k % 2 == 0: stamp(a, 8 + k // 2)
        b = BF + (i % 8) * 4
        ac = ACC + p * 4
        a(f"s_waitcnt lgkmcnt({min(15, lg.after(('f', i)))})")
        c = "0" if k == 0 else f"v[{ac}:{ac+3}]"
        a(f"v_mfma_f32_16x16x32_bf16 v[{ac}:{ac+3}], v[{b}:{b+3}], v[{X+4*k}:{X+4*k+3}], {c}")
        pre = [f for f in ev.get(i, []) if f is w7_horner]
        for f in pre: f()
        if i in bars: a(f"s_waitcnt vmcnt({vm.after(bars[i])})\ns_barrier")
        elif i == HI: a("s_barrier")
        if i + 7 < 112: fread(i + 7)
        for f in ev.get(i, []):
            if f is w7_horner: continue
            if callable(f): f()
            elif f == "@w": a(f"s_waitcnt lgkmcnt({min(15, lg.after('hin'))})")
            elif f[0] == "#": lg.tags[f[1:]] = lg.n
            elif f == "@s":
                a(f"s_waitcnt lgkmcnt({min(15, lg.after('t1'))})")
                dual([f"buffer_store_dwordx4 v[{HO[kk]}:{HO[kk]+3}], v1, s[16:19], s57 offen offset:{kk*1024}" for kk in range(4)])
                vm.issue("hst", 4)
            else:
                a(f)
                if f.startswith("ds_"):
                    lg.issue("hin" if f"v[{PT}:{PT+3}]" in f else None)
    stamp(a, 17)
    YA, OA, HB = 220, 16, BF
    VH, VP = 12, 6
    a("s_waitcnt lgkmcnt(0)")
    cload(7, 0); cload(7, 1)
    a(f"""
    v_and_b32 v5, 7, v2
    v_lshlrev_b32 v5, 2, v5
    s_add_u32 s55, s39, 4096
    buffer_load_dword v11, v5, s[16:19], s55 offen sc1
    v_min_u32 v242, 27, v2
    s_mul_i32 s48, s63, 28
    v_add_u32 v242, s48, v242
    v_lshlrev_b32 v242, 4, v242
    s_and_b32 s48, s33, 3
    s_lshl_b32 s48, s48, 2
    s_add_u32 s47, s48, {WS_FS}
    buffer_load_dword v243, v242, s[16:19], s47 offen sc1
    s_barrier
    s_lshl_b32 s48, s32, 3
    s_add_u32 s48, s48, s34
    s_mul_i32 s48, s48, {FT}
    s_add_u32 s48, s48, {WS_H1F}
    s_mul_i32 s49, s33, 7
    s_add_u32 s58, s49, s54
    s_lshl_b32 s58, s58, 9
    s_add_u32 s58, s58, s48
    s_add_u32 s59, s49, s56
    s_lshr_b32 s61, s59, 1
    s_lshl_b32 s61, s61, 10
    s_and_b32 s59, s59, 1
    s_lshl_b32 s59, s59, 3
    s_add_u32 s59, s59, s61
    s_add_u32 s59, s59, s48
    s_mov_b32 s53, {f2u(-1.4426950408889634):#x}
    s_bfe_u32 s48, s33, 0x10002             ; rh
    s_lshl_b32 s48, s48, 2
    s_lshl_b32 s49, s32, 3
    s_add_u32 s48, s48, s49
    s_lshr_b32 s49, s34, 1
    s_add_u32 s48, s48, s49
    s_and_b32 s49, s34, 1
    s_lshl_b32 s49, s49, 11
    s_lshl_b32 s50, s48, 16
    s_add_u32 s50, s50, s49
    v_add_u32 v{VH}, s50, v1
    s_mul_i32 s48, s48, {FT}
    s_add_u32 s48, s48, s49
    s_add_u32 s48, s48, s60
    s_add_u32 s48, s48, {WS_H1F}
    v_add_u32 v{VH+1}, s48, v1
    s_lshl_b32 s48, s63, 16
    v_add_u32 v{VP+1}, s48, v1
    v_xor_b32 v{VP}, 65536, v{VP+1}
    """)
    vm.issue("p4"); vm.issue("ps")
    def silu_tile(p, dst):
        ac = ACC + p * 4
        tt = 164 + (p & 1) * 12
        a(f"""
        v_cvt_pk_bf16_f32 v{tt}, v{ac}, v{ac+1}
        v_cvt_pk_bf16_f32 v{tt+1}, v{ac+2}, v{ac+3}
        v_lshlrev_b32 v{tt+4}, 16, v{tt}
        v_and_b32 v{tt+5}, 0xffff0000, v{tt}
        v_lshlrev_b32 v{tt+6}, 16, v{tt+1}
        v_and_b32 v{tt+7}, 0xffff0000, v{tt+1}
        """)
        for r in range(4): a(f"v_mul_f32 v{tt+8+r}, s53, v{tt+4+r}")
        for r in range(4): a(f"v_exp_f32 v{tt+8+r}, v{tt+8+r}")
        for r in range(4): a(f"v_add_f32 v{tt+8+r}, 1.0, v{tt+8+r}")
        for r in range(4): a(f"v_rcp_f32 v{tt+8+r}, v{tt+8+r}")
        for r in range(4): a(f"v_mul_f32 v{tt+4+r}, v{tt+4+r}, v{tt+8+r}")
        a(f"""
        v_cvt_pk_bf16_f32 v{dst}, v{tt+4}, v{tt+5}
        v_cvt_pk_bf16_f32 v{dst+1}, v{tt+6}, v{tt+7}
        """)
    def hdma(i, j):
        if j == 0: a(f"s_add_u32 m0, s52, {sto(i)}\ns_nop 0")
        a(f"buffer_load_dwordx4 v{VH}, s[16:19], s{SHB+i} offen offset:{j*1024} lds")
        vm.issue(("hd", i))
    def h1dma(i, j):
        if j == 0: a(f"s_add_u32 m0, s52, {sto(i)}\ns_nop 0")
        a(f"buffer_load_dwordx4 v{VH+1}, s[16:19], s{RO+i} offen offset:{j*1024} lds")
        vm.issue(("h1d", i))
    P4P = env("P4P", 2)
    H1O = 188
    for pr in range(4):
        if pr == P4P:
            stamp(a, 18)
            poll(11, 5, "s55", "KF_p4", "p4")
            for i in range(8): hdma(i, 0); hdma(i, 1)
            stamp(a, 19)
        o = H1O + 4 * pr
        silu_tile(2 * pr, o)
        if pr < 3: silu_tile(2 * pr + 1, o + 2)
    dual([f"buffer_store_dwordx4 v[{H1O+4*pr}:{H1O+4*pr+3}], v1, s[16:19], s58 offen offset:{pr*1024}" for pr in range(3)]
         + [f"buffer_store_dwordx2 v[{H1O+12}:{H1O+13}], v1, s[16:19], s59 offen"])
    vm.issue("h1s", 4)
    if P4P == 4:
        stamp(a, 18)
        poll(11, 5, "s55", "KF_p4", "p4")
        for i in range(8): hdma(i, 0); hdma(i, 1)
        stamp(a, 19)
    WR = [104 + 4 * i for i in range(7)] + [164 + 4 * i for i in range(6)] + [204 + 4 * i for i in range(4)] + [24, 28, 32]
    seq = []
    for i in range(8):
        for ri in range(2):
            for tp in range(2):
                for tq in range(2):
                    for hl in range(2): seq.append(("y", i, tp, tq, ri, hl))
    for tp in range(2):
        for i in range(7):
            for q in range(4):
                for tq in range(2): seq.append(("o", i, tp, tq, q >> 1, q & 1))
    N = len(seq)
    lg = Cnt()
    def bread(n):
        kind, i, tp, tq, hi, lo = seq[n]
        b = HB + (n % 8) * 4
        a(f"ds_read_b128 v[{b}:{b+3}], v{VP+tp} offset:{(2*tq+hi)*16384 + sto(i) + lo*1024}")
        lg.issue(("f", n))
    A1, P1I, P1C = env("A1", 6), env("P1I", 30), env("P1C", 48)
    ev = {}
    def h1_arrive():
        a(f"s_waitcnt vmcnt({vm.after('h1s')})"); arrive(24, 10); lg.issue("ar1")
    add(A1, h1_arrive)
    def h1_signal():
        a(f"s_waitcnt lgkmcnt({min(15, lg.after('ar1'))})"); signal(10, "s37", "KF_nf1")
    add(A1 + 6, h1_signal)
    def p1_issue():
        a("buffer_load_dword v11, v5, s[16:19], s39 offen sc1"); vm.issue("p1")
    add(P1I, p1_issue)
    add(P1C, lambda: poll(11, 5, "s39", "KF_p1", "p1"))
    nxt = P1C + 1
    for i in range(7):
        nxt = max(nxt, 16 * (i + 1) + 1)
        add(nxt, (lambda i=i: (h1dma(i, 0), h1dma(i, 1)))); nxt += 3
    WS0, WSP = env("WS0", 3), env("WSP", 4)
    add(WS0 - 1, lambda: poll(243, 242, "s47", "KF_ps", "ps"))
    WR = W01 + WR
    wl = [(i, q) for i in range(0, 7) for q in range(4)]
    for k, (i, q) in enumerate(wl):
        pos = WS0 + k * WSP
        if WR[k] < 80: pos = max(pos, 16 * ((WR[k] - X) // 8 + 1) + 1)
        add(pos, (lambda i=i, q=q, k=k: wload(i, q, WR[k])))
    XR, DR, PR, ST = 80, 84, 40, 88
    def y_send():
        a(f"""
        s_lshl_b32 s48, s38, 15
        s_lshl_b32 s49, s34, 12
        s_add_u32 s48, s48, s49
        s_add_u32 s58, s48, {WS_OP}
        s_xor_b32 s57, s58, {8 << 15}
        s_lshl_b32 s48, s38, 7
        s_lshl_b32 s49, s34, 2
        s_add_u32 s48, s48, s49
        s_add_u32 s54, s48, {WS_FL + 8192}
        s_xor_b32 s55, s54, {8 << 7}
        buffer_store_dwordx4 v[{YA}:{YA+3}], v1, s[16:19], s57 offen sc1
        buffer_store_dwordx4 v[{YA+4}:{YA+7}], v1, s[16:19], s57 offen offset:1024 sc1
        """)
        vm.issue("ys", 2)
    add(128 + 3, y_send)
    def o_send():
        a(f"""
        buffer_store_dwordx4 v[{OA}:{OA+3}], v1, s[16:19], s57 offen offset:2048 sc1
        buffer_store_dwordx4 v[{OA+4}:{OA+7}], v1, s[16:19], s57 offen offset:3072 sc1
        """)
        vm.issue("os", 2)
    add(184 + 4, o_send)
    def fin_addr():
        a(f"""
        s_lshl_b32 s48, s32, 7
        s_lshl_b32 s49, s62, 5
        s_add_u32 s48, s48, s49
        v_add_u32 v12, s48, v14
        v_lshlrev_b32 v12, 10, v12
        s_and_b32 s48, s33, 3
        s_lshl_b32 s48, s48, 8
        s_lshl_b32 s49, s34, 5
        s_add_u32 s48, s48, s49
        v_lshl_add_u32 v13, v15, 3, s48
        v_add_u32 v12, v12, v13
        s_movk_i32 s48, 16384
        buffer_load_dwordx2 v[{XR}:{XR+1}], v12, s[4:7], 0 offen
        buffer_load_dwordx2 v[{XR+2}:{XR+3}], v12, s[4:7], s48 offen
        v_lshlrev_b32 v12, 1, v12
        s_lshl_b32 s48, s62, 8
        v_lshl_add_u32 v4, v14, 3, s48
        v_add_u32 v4, {L_ST}, v4
        """)
        vm.issue("x", 2)
        srd(a, 12, 88, 1024)
        srd(a, 8, 90, 2048 * 2048)
        a(f"""
        buffer_load_dwordx2 v[{DR}:{DR+1}], v13, s[12:15], 0 offen
        ds_read_b64 v[{ST}:{ST+1}], v4
        ds_read_b64 v[{ST+2}:{ST+3}], v4 offset:128
        """)
        vm.issue("x"); lg.issue(None, 2)
    add(184 + 12, fin_addr)
    def pr_loads():
        return "\n".join(f"buffer_load_dwordx4 v[{PR+4*k}:{PR+4*k+3}], v1, s[16:19], s58 offen offset:{k*1024} sc1" for k in (2, 3, 0, 1))
    F3, PRI = env("F3", 28), env("PRI", 50)
    def f3_send():
        a(f"""
        v_mov_b32 v9, 1
        v_mov_b32 v8, 0
        s_waitcnt vmcnt({vm.after('os')})
        s_mov_b64 exec, 1
        buffer_store_dword v9, v8, s[16:19], s55 offen sc1
        s_mov_b64 exec, -1
        """)
        vm.issue("f3")
    add(184 + F3, f3_send)
    def pr_issue():
        a("buffer_load_dword v11, v8, s[16:19], s54 offen sc1"); vm.issue("p3")
    add(184 + PRI, pr_issue)
    a(f"s_waitcnt vmcnt({vm.after(('hd', 0))})\ns_barrier")
    stamp(a, 32)
    for n in range(7): bread(n)
    for n in range(N):
        kind, i, tp, tq, hi, lo = seq[n]
        if n < 128 and n % 16 == 0:
            if n: stamp(a, 32 + n // 16)
            tg = ("hd", n // 16 + 1) if n < 112 else None
            w_ = [vm.after(("c", n // 16))]
            if tg: w_.append(vm.after(tg))
            a(f"s_waitcnt vmcnt({min(w_)})\ns_barrier")
        if n + 7 >= 128 and n + 7 < 184 and (n + 7 - 128) % 8 == 0:
            s_ = (n + 7 - 128) // 8
            a(f"s_waitcnt vmcnt({vm.after(('h1d', s_))})\ns_barrier")
        if n >= 128 and n < 184 and (n - 128) % 8 == 0:
            s_ = (n - 128) // 8
            stamp(a, 40 + s_)
            a(f"s_waitcnt vmcnt({vm.after(('w', s_))})")
        if n == 184: stamp(a, 47)
        b = HB + (n % 8) * 4
        a(f"s_waitcnt lgkmcnt({min(15, lg.after(('f', n)))})")
        if kind == "y":
            ac = YA + (tp * 2 + tq) * 4; af = X + 8 * i + 4 * hi
            first = (i == 0 and hi == 0 and lo == 0)
        else:
            ac = OA + (tp * 2 + tq) * 4 if tp == 0 else 56 + tq * 4
            af = WF[(i, 2 * hi + lo)]
            first = (i == 0 and hi == 0 and lo == 0)
        c = "0" if first else f"v[{ac}:{ac+3}]"
        a(f"v_mfma_f32_16x16x32_bf16 v[{ac}:{ac+3}], v[{af}:{af+3}], v[{b}:{b+3}], {c}")
        if n + 7 < N: bread(n + 7)
        for f in ev.get(n, []): f()
    stamp(a, 50)
    OP = 56
    M, XF, XN, DU, TMP, T2 = 104, 112, 120, 128, 132, 136
    def rnd(base, n, tmp):
        for e in range(n // 2): a(f"v_cvt_pk_bf16_f32 v{tmp+e}, v{base+2*e}, v{base+1+2*e}")
        for e in range(n // 2): a(f"v_lshlrev_b32 v{base+2*e}, 16, v{tmp+e}\nv_and_b32 v{base+1+2*e}, 0xffff0000, v{tmp+e}")
    poll(11, 8, "s54", "KF_p3", "p3")
    stamp(a, 52)
    a(pr_loads()); vm.issue("pr", 4)
    a(f"s_waitcnt vmcnt({vm.after('x')}) lgkmcnt(0)")
    for e in range(4):
        a(f"v_lshlrev_b32 v{XF+2*e}, 16, v{XR+e}\nv_and_b32 v{XF+1+2*e}, 0xffff0000, v{XR+e}")
    for e in range(2):
        a(f"v_lshlrev_b32 v{DU+2*e}, 16, v{DR+e}\nv_and_b32 v{DU+1+2*e}, 0xffff0000, v{DR+e}")
    for e in range(8): a(f"v_sub_f32 v{XN+e}, v{XF+e}, v{ST+2*(e>>2)}")
    rnd(XN, 8, TMP)
    for e in range(8): a(f"v_mul_f32 v{XN+e}, v{XN+e}, v{ST+1+2*(e>>2)}")
    rnd(XN, 8, TMP)
    for e in range(8): a(f"v_mul_f32 v{XN+e}, v{XN+e}, v{DU+(e&3)}")
    rnd(XN, 8, TMP)
    a("s_waitcnt vmcnt(0)")
    stamp(a, 51)
    for e in range(8): a(f"v_add_f32 v{OP+e}, v{OP+e}, v{PR+8+e}")
    rnd(OP, 8, TMP)
    for e in range(8): a(f"v_mul_f32 v{T2+e}, s53, v{OP+e}")
    for e in range(8): a(f"v_exp_f32 v{T2+e}, v{T2+e}")
    for e in range(8): a(f"v_add_f32 v{M+e}, v{YA+8+e}, v{PR+e}")
    for e in range(8): a(f"v_add_f32 v{T2+e}, 1.0, v{T2+e}")
    for e in range(8): a(f"v_rcp_f32 v{T2+e}, v{T2+e}")
    for e in range(8): a(f"v_fma_f32 v{M+e}, v{M+e}, 2.0, v{XN+e}")
    for e in range(8): a(f"v_mul_f32 v{OP+e}, v{OP+e}, v{T2+e}")
    rnd(OP, 8, TMP)
    for e in range(8): a(f"v_mul_f32 v{M+e}, v{M+e}, v{OP+e}")
    for e in range(8): a(f"v_add_f32 v{M+e}, v{M+e}, v{XF+e}")
    a(f"""
    s_mov_b32 s48, 32768
    buffer_store_dwordx4 v[{M}:{M+3}], v12, s[8:11], 0 offen
    buffer_store_dwordx4 v[{M+4}:{M+7}], v12, s[8:11], s48 offen
    """)
    if STAMP: a("s_waitcnt vmcnt(0)")
    stamp(a, 53)
    stamp_store(a, 16, 0)
    a("""
    KF_done:
    s_endpgm
    KF_restart:
    s_and_b32 s100, s48, 255
    s_mov_b32 s101, 2
    s_cmp_eq_u32 s48, 2
    s_cselect_b32 s100, s2, s100
    s_cselect_b32 s101, 1, s101
    s_waitcnt vmcnt(0) lgkmcnt(0)
    s_barrier
    s_branch KF_top
    """)
    for t_ in tail: a.raw(t_)

HEADER = open("recurrent_scan__ssm_conv_s5__dense_activation_silu__prompt.s.ref").read().split("; Override launch")[0]

def build():
    a = Asm()
    a.raw(HEADER.rstrip("\n"))
    a.raw(f"; @launch grid=(256,1,1) block=(512,1,1) lds={KF_LDS}")
    a.raw('.amdgcn_target "amdgcn-amd-amdhsa--gfx950"\n.text')
    gen_kf(a)
    a.raw('.section .rodata,"a"\n.p2align 6')
    a.raw(kd(KNAME, 256))
    return a.text()

if __name__ == "__main__":
    STAMP = len(sys.argv) > 2 and "stamp" in sys.argv[2]
    open(sys.argv[1], "w").write(build())
```

```python
import sys, struct
sys.path.insert(0, "dev")
from asmlib import Asm, kd

import os
PAD = int(os.environ.get("PAD", "0"))
ROT = int(os.environ.get("ROT", "1"))
MAP = int(os.environ.get("MAP", "1"))
BU_JS = 8192 + 512 * PAD
BU_SS = 4 * BU_JS + 256 * PAD
FT = 56 * 1024 + 256 * PAD
WS_BU  = 0
WS_H1F = 10 << 20
WS_W2F = 18 << 20
WS_S8X = 20 << 20
WS_E   = 21 << 20
WS_TP  = (21 << 20) + (64 << 10)
WS_TL  = (21 << 20) + (128 << 10)
WS_ST  = (21 << 20) + (192 << 10)
WS_CF  = 22 << 20
WS_FL  = 23 << 20
WS_G   = 26 << 20
WS_DBG = 24 << 20
WS_SIZE = 28 << 20
STAMP = False

PCLK = "s_memrealtime" if os.environ.get("PRT") else "s_memtime"
PROBE = os.environ.get("PROBE")
def probe_end(a):
    if not PROBE: return
    pa, pb, K, w, wg = [int(x) for x in PROBE.split(",")]
    a(f"""
    s_waitcnt vmcnt(0)
    s_cmp_lg_u32 s34, {w}
    s_cbranch_scc1 KF_done
    """)
    if wg >= 0: a(f"s_cmp_lg_u32 s2, {wg}\ns_cbranch_scc1 KF_done")
    if pa < 0: a(f"s_mov_b32 s98, {pb}")
    else: a(f"s_sub_u32 s98, s98, s96\ns_mul_i32 s98, s98, {K}")
    a(f"""
    s_min_u32 s98, s98, {20000 if os.environ.get("PRT") else 400000}
    {PCLK} s[96:97]
    s_waitcnt lgkmcnt(0)
    KF_prl:
    s_sleep 1
    {PCLK} s[48:49]
    s_waitcnt lgkmcnt(0)
    s_sub_u32 s48, s48, s96
    s_cmp_lt_u32 s48, s98
    s_cbranch_scc1 KF_prl
    """)
def stamp(a, i):
    if PROBE:
        pa, pb = [int(x) for x in PROBE.split(",")[:2]]
        if pa >= 0 and i == pa: a(PCLK + " s[96:97]\ns_waitcnt lgkmcnt(0)")
        if pa >= 0 and i == pb:
            if i == 53: a("s_waitcnt vmcnt(0)")
            a(PCLK + " s[98:99]\ns_waitcnt lgkmcnt(0)")
        return
    if not STAMP: return
    a(f"""
    s_memtime s[96:97]
    s_waitcnt lgkmcnt(0)
    v_writelane_b32 v255, s96, {i}
    """)

def rstamp(a, i):
    if not STAMP: return
    a(f"""
    s_memrealtime s[96:97]
    s_waitcnt lgkmcnt(0)
    v_writelane_b32 v255, s96, {i}
    """)

def stamp_store(a, srd, k):
    if not STAMP: return
    rstamp(a, 63)
    a(f"""
    s_mov_b64 exec, -1
    v_and_b32 v254, 63, v0
    v_lshlrev_b32 v254, 2, v254
    s_lshl_b32 s96, s2, 3
    s_add_u32 s96, s96, s34
    s_lshl_b32 s96, s96, 8
    s_add_u32 s96, s96, {WS_DBG + k * (1 << 20)}
    buffer_store_dword v255, v254, s[{srd}:{srd+3}], s96 offen
    """)

def srd(a, d, base, nbytes):
    a(f"""
    s_mov_b32 s{d}, s{base}
    s_and_b32 s{d+1}, s{base+1}, 0xffff
    s_mov_b32 s{d+2}, {nbytes}
    s_mov_b32 s{d+3}, 0x00020000
    """)

def f2u(x):
    return struct.unpack("<I", struct.pack("<f", x))[0]

def cplx_sq(a, d, s, t):
    a(f"""
    v_mul_f32 v{t}, v{s+1}, v{s+1}
    v_mul_f32 v{d+1}, v{s}, v{s+1}
    v_fma_f32 v{d}, v{s}, v{s}, -v{t}
    v_add_f32 v{d+1}, v{d+1}, v{d+1}
    """)

def cmul_acc(a, d, x, m, add):
    if add is None:
        a(f"v_pk_mul_f32 v[{d}:{d+1}], v[{x}:{x+1}], v[{m}:{m+1}] op_sel_hi:[1,0]")
    else:
        a(f"v_pk_fma_f32 v[{d}:{d+1}], v[{x}:{x+1}], v[{m}:{m+1}], v[{add}:{add+1}] op_sel_hi:[1,0,1]")
    a(f"v_pk_fma_f32 v[{d}:{d+1}], v[{x}:{x+1}], v[{m}:{m+1}], v[{d}:{d+1}] op_sel:[1,1,0] op_sel_hi:[0,1,1] neg_lo:[0,1,0]")

class Cnt:
    def __init__(self): self.n = 0; self.tags = {}
    def issue(self, tag=None, k=1):
        self.n += k
        if tag is not None: self.tags[tag] = self.n
    def after(self, tag): return self.n - self.tags[tag]
    def copy(self):
        c = Cnt(); c.n = self.n; c.tags = dict(self.tags); return c

def interleave(a, main, fill, lead=0):
    k = 0
    for l in fill[:lead]: a(l)
    k = lead
    n = len(main)
    rest = len(fill) - k
    for i, m in enumerate(main):
        a(m)
        tgt = lead + (rest * (i + 1)) // n
        while k < tgt:
            a(fill[k]); k += 1

L_M = 131072
L_TAB, L_ST, L_CNT, L_Z, L_E16, L_HIN, L_SCR = (L_M, L_M + 20480, L_M + 21504, L_M + 22528, L_M + 24576, L_M + 26624, L_M + 24576)
KF_LDS = 163840
WS_HF = 0
WS_OP = 26 << 20
WS_SIZE = 40 << 20
SPIN = 0x4000
KNAME = "recurrent_scan__ssm_conv_s5__dense_activation_silu__prompt_kernel"
def env(n, d): return int(os.environ.get(n, str(d)))
FORCE = env("FORCE", 0)

def gen_kf(a):
    X, MR, NM, TM = 16, 80, 84, 88
    ACC, BF = 104, 132
    ACCB, BB = 132, 148
    U, Q, MM, LAM, COEF, L4, L16, G1, GG = 164, 180, 184, 188, 192, 196, 200, 204, 208
    WA, WB = 212, 216
    VF, VW, VC, VHB, VW2 = 220, 234, 235, 237, 238
    SELR, VA, W2R, VXS, VXR, VB, VT = 104, 110, 116, 124, 126, 128, 129
    VSC, CRR = 130, 180
    WS_FC, WS_FS = WS_FL + 49152, WS_FL + 57344
    RO, SCB, SHB = 40, 72, 80
    vm = Cnt()
    _af = vm.after
    vm.after = lambda tg: min(63, _af(tg))
    tail = []
    ndual = [0]
    def dual(lines):
        k = ndual[0]; ndual[0] += 1
        a(f"s_cmp_eq_u32 s101, 1\ns_cbranch_scc1 KF_alt{k}")
        for l in lines: a(l)
        a.raw(f"KF_j{k}:")
        tail.append(f"KF_alt{k}:\n    s_nop 7\n    s_nop 7\n" + "".join(f"    {l} sc1\n" for l in lines) + f"    s_nop 7\n    s_branch KF_j{k}")
    a.raw(f".globl {KNAME}\n.p2align 8\n.type {KNAME},@function\n{KNAME}:")
    a("""
    s_cmp_ge_u32 s2, 256
    s_cbranch_scc1 KF_done
    """)
    rstamp(a, 62)
    stamp(a, 30)
    a(f"""
    s_getreg_b32 s3, hwreg(HW_REG_XCC_ID, 0, 3)
    s_mov_b32 s101, 0                       ; mode
    s_lshr_b32 s48, s2, 3
    s_lshl_b32 s100, s3, 5
    s_add_u32 s100, s100, s48
    KF_top:
    s_setprio 3
    s_load_dwordx16 s[72:87], s[0:1], 0
    s_load_dwordx4 s[88:91], s[0:1], 80     ; w1 w2
    s_load_dwordx4 s[92:95], s[0:1], 104
    v_lshrrev_b32 v1, 6, v0
    v_and_b32 v2, 63, v0                    ; lane
    v_readfirstlane_b32 s34, v1             ; wave
    v_and_b32 v14, 15, v2                   ; n
    v_lshrrev_b32 v15, 4, v2                ; g
    v_lshlrev_b32 v1, 4, v2                 ; lane*16
    s_bfe_u32 s32, s100, 0x20006
    s_lshl_b32 s32, s32, 2
    s_and_b32 s48, s100, 3
    s_add_u32 s32, s32, s48
    s_bfe_u32 s63, s100, 0x10005
    s_lshl_b32 s33, s63, 3
    s_bfe_u32 s48, s100, 0x30002
    s_add_u32 s33, s33, s48
    s_and_b32 s35, s34, 3
    s_lshr_b32 s36, s34, 2
    s_lshl_b32 s51, s34, 10                 ; wave*1024
    s_lshl_b32 s52, s34, 14                 ; region
    s_and_b32 s48, s32, 3
    s_lshl_b32 s48, s48, 1
    s_add_u32 s50, s33, s48
    """)
    for pos in range(8):
        a(f"s_add_u32 s48, s50, {pos}\ns_and_b32 s48, s48, 7\ns_lshl_b32 s{64+pos}, s48, 7")
    a(f"""
    s_lshl_b32 s48, s63, 9
    v_lshl_add_u32 v5, v0, 1, s48
    ; x source
    s_lshl_b32 s48, s32, 17
    s_add_u32 s48, s48, s52
    v_lshrrev_b32 v9, 3, v2                 ; r8
    v_and_b32 v10, 7, v2                    ; slot
    v_lshrrev_b32 v12, 1, v9
    v_xor_b32 v13, v12, v10
    v_lshl_add_u32 v4, v9, 10, s48
    v_lshl_add_u32 v{VXS}, v13, 4, v4
    v_xor_b32 v13, 4, v13
    v_lshl_add_u32 v{VXS+1}, v13, 4, v4
    v_add_u32 v{VXS+1}, 8192, v{VXS+1}
    s_and_b32 s60, s33, 3                   ; cq
    s_and_b32 s48, s34, 1
    s_lshl_b32 s48, s48, 2
    v_or_b32 v12, s48, v12
    v_xor_b32 v12, v12, v10
    s_lshl_b32 s48, s35, 3
    s_lshl_b32 s49, s33, 5
    s_add_u32 s48, s48, s49
    v_add_u32 v13, s48, v9                  ; channel
    v_lshlrev_b32 v13, 10, v13
    v_lshl_add_u32 v{VB}, v12, 4, v13
    s_lshl_b32 s57, s2, 3
    s_add_u32 s57, s57, s34                 ; b
    s_sub_u32 s48, s57, 256
    s_cmp_ge_u32 s57, 1792
    s_cselect_b32 s57, s48, s57
    s_lshr_b32 s58, s57, 5                  ; kstep
    s_and_b32 s59, s57, 31                  ; dtile
    v_lshrrev_b32 v12, 1, v2
    v_lshlrev_b32 v12, 10, v12
    v_and_b32 v13, 1, v2
    v_lshl_add_u32 v12, v13, 4, v12
    v_and_b32 v13, 7, v14
    v_lshlrev_b32 v13, 10, v13
    v_lshl_add_u32 v13, v15, 4, v13
    v_lshrrev_b32 v4, 3, v14
    v_lshl_add_u32 v13, v4, 6, v13
    s_bfe_u32 s48, s100, 0x20003
    s_lshl_b32 s48, s48, 17
    s_add_u32 s48, s48, s52                 ; + d tile
    s_lshl_b32 s49, s63, 9
    s_add_u32 s48, s48, s49
    s_bfe_u32 s49, s100, 0x20001
    s_lshl_b32 s49, s49, 7
    s_add_u32 s53, s48, s49
    s_lshl_b32 s61, s58, 15
    s_lshl_b32 s49, s59, 5
    s_add_u32 s61, s61, s49
    s_mul_i32 s48, s59, {FT}
    s_lshl_b32 s49, s58, 10
    s_add_u32 s48, s48, s49
    s_add_u32 s55, s48, {WS_W2F}
    s_add_u32 s48, s3, 1
    {'s_cmp_eq_u32 s2, 0' if FORCE else ''}
    {'s_cselect_b32 s49, 1, 0' if FORCE else ''}
    {'s_xor_b32 s48, s3, s49' if FORCE else ''}
    {'s_add_u32 s48, s48, 1' if FORCE else ''}
    s_mov_b32 s59, s48
    """)
    if STAMP: a("s_memtime s[98:99]")
    a("s_waitcnt lgkmcnt(0)")
    if STAMP: a("v_writelane_b32 v255, s98, 31")
    srd(a, 4, 72, 2048 * 1024)
    srd(a, 20, 92, 256)
    srd(a, 8, 74, 1024)
    srd(a, 12, 76, 1024)
    srd(a, 24, 86, 1024)
    a(f"""
    s_cmp_lg_u32 s36, 0
    s_cbranch_scc1 KF_np
    buffer_load_ushort v6, v5, s[8:11], 0 offen
    buffer_load_ushort v7, v5, s[12:15], 0 offen
    buffer_load_ushort v11, v5, s[24:27], 0 offen
    KF_np:
    """)
    vm.tags["par"] = vm.n
    for pos in range(8):
        for hh in range(2):
            a(f"""
            s_add_u32 m0, s52, {pos * 2048 + hh * 1024}
            s_nop 0
            buffer_load_dwordx4 v{VXS+hh}, s[4:7], s{64+pos} offen lds
            """)
            vm.issue(("x", pos))
    stamp(a, 0)
    srd(a, 28, 90, 1792 * 1024)
    a("""
    s_bitcmp0_b32 s100, 0
    s_cselect_b32 s48, s82, s84
    s_cselect_b32 s49, s83, s85
    """)
    srd(a, 24, 48, 512 * 1024)
    a(f"""
    s_add_u32 s48, s53, 8192
    buffer_load_dwordx4 v[{CRR}:{CRR+3}], v13, s[24:27], s53 offen
    buffer_load_dwordx4 v[{CRR+4}:{CRR+7}], v13, s[24:27], s48 offen
    buffer_load_dwordx4 v[{W2R}:{W2R+3}], v12, s[28:31], s61 offen
    s_cmp_lt_u32 s34, 4
    s_cselect_b32 s48, s78, s80
    s_cselect_b32 s49, s79, s81
    """)
    vm.issue("w2r", 3)
    srd(a, 8, 48, 512 * 1024)
    a("s_setprio 0")
    stamp(a, 16)
    srd(a, 16, 94, WS_SIZE)
    srd(a, 12, 88, 512 * 3584)
    a(f"""
    s_load_dwordx2 s[88:89], s[0:1], 64     ; Dskip
    s_load_dwordx2 s[90:91], s[0:1], 96     ; out
    v_mov_b32 v244, 0
    v_mov_b32 v245, 0
    v_mov_b32 v246, 0
    v_mov_b32 v247, 0
    s_cmp_lg_u32 s34, 4
    s_cbranch_scc1 KF_nz0
    v_add_u32 v9, {L_Z}, v1
    ds_write_b128 v9, v[244:247]
    ds_write_b128 v9, v[244:247] offset:1024
    v_mov_b32 v9, {L_CNT}
    ds_write_b128 v9, v[244:247] offset:16
    KF_nz0:
    v_bfe_u32 v12, v14, 1, 3                ; key = (n>>1)&7
    v_xor_b32 v12, v12, v15                 ; g ^ key
    v_lshlrev_b32 v13, 7, v14
    v_add_u32 v13, s52, v13
    v_lshl_add_u32 v{VXR}, v12, 4, v13
    v_xor_b32 v{VXR+1}, 64, v{VXR}
    v_and_b32 v13, 7, v14
    v_lshlrev_b32 v13, 7, v13
    v_lshrrev_b32 v9, 3, v14
    v_lshl_add_u32 v13, v9, 14, v13
    v_lshl_add_u32 v{VA}, v12, 4, v13
    v_xor_b32 v{VA+1}, 64, v{VA}
    v_add_u32 v{VA+2}, 65536, v{VA}
    v_add_u32 v{VA+3}, 65536, v{VA+1}
    ; w1 source
    s_and_b32 s48, s34, 1
    s_lshl_b32 s48, s48, 2
    v_or_b32 v13, s48, v15                  ; s(k)
    v_bfe_u32 v9, v2, 1, 3                  ; pair'
    v_xor_b32 v13, v13, v9                  ; pair
    v_lshlrev_b32 v13, 5, v13
    v_and_b32 v9, 1, v2
    v_lshl_add_u32 v13, v9, 4, v13
    s_lshl_b32 s48, s34, 3
    v_add_u32 v12, s48, v15                 ; k local (j=0)
    s_movk_i32 s49, 3584
    v_mul_lo_u32 v12, v12, s49
    s_mul_i32 s48, s33, 224
    v_add3_u32 v{VW}, v12, v13, s48
    v_lshlrev_b32 v242, 2, v2
    """)
    fillers = []
    def F(t): fillers.append(t)
    F(f"""
    v_lshrrev_b32 v9, 2, v14                ; m>>2
    v_cmp_eq_u32 vcc, v9, v15
    v_and_b32 v9, 1, v14
    v_lshlrev_b32 v9, 4, v9
    v_mov_b32 v10, 0x3f80
    v_lshlrev_b32 v9, v9, v10
    v_cndmask_b32 v9, 0, v9, vcc
    v_and_b32 v10, 2, v14
    v_cmp_eq_u32 vcc, 0, v10
    v_cndmask_b32 v{SELR+2}, 0, v9, vcc
    v_cndmask_b32 v{SELR+3}, v9, 0, vcc
    v_mov_b32 v{SELR}, 0
    v_mov_b32 v{SELR+1}, 0
    v_mov_b32 v{SELR+4}, 0
    v_mov_b32 v{SELR+5}, 0
    s_lshl_b32 s37, s32, 8
    s_lshl_b32 s48, s63, 7
    s_add_u32 s37, s37, s48
    s_add_u32 s39, s37, {WS_FL}
    s_and_b32 s48, s33, 7
    s_lshl_b32 s48, s48, 2
    s_add_u32 s37, s39, s48
    s_lshl_b32 s38, s32, 4
    s_add_u32 s38, s38, s33
    s_lshl_b32 s47, s33, 12
    s_lshl_b32 s48, s32, 8
    s_add_u32 s47, s47, s48
    s_add_u32 s47, s47, {WS_E}
    s_and_b32 s48, s33, 7
    s_lshl_b32 s48, s48, 8
    s_add_u32 s48, s48, {L_TAB}
    v_lshl_add_u32 v{VT}, v14, 4, s48
    s_add_u32 s48, s51, {L_SCR}
    v_add_u32 v{VSC}, s48, v1
    v_bfe_u32 v9, v2, 2, 2
    v_lshl_add_u32 v9, v15, 2, v9           ; 4g + r
    v_lshlrev_b32 v9, 5, v9
    v_and_b32 v10, 3, v2
    v_lshl_add_u32 v9, v10, 3, v9
    v_add_u32 v{VSC+1}, s48, v9
    """)
    t_ = f"""
    v_bfe_u32 v12, v2, 2, 2                 ; r
    v_and_b32 v13, 1, v15
    v_lshl_or_b32 v13, v13, 2, v12          ; sw
    v_lshlrev_b32 v12, 8, v12
    v_lshl_add_u32 v12, v15, 14, v12        ; g*16384 + r*256
    v_and_b32 v4, 3, v2
    v_lshl_add_u32 v12, v4, 3, v12          ; + c*8
    s_and_b32 s54, s33, 1                   ; par
    s_cmp_lg_u32 s54, 0
    s_cselect_b32 s56, 0, 6
    """
    for p in range(7):
        if p < 6: t_ += f"s_add_u32 s48, s54, {p}\n"
        sreg = "s48" if p < 6 else "s56"
        t_ += f"v_xor_b32 v4, {sreg}, v13\nv_lshl_add_u32 v{VF+p}, v4, 5, v12\nv_add_u32 v{VF+7+p}, 65536, v{VF+p}\n"
    F(t_)
    t_ = f"""
    s_add_u32 s48, s33, s32
    s_lshl_b32 s49, s32, 1
    s_add_u32 s48, s48, s49
    s_and_b32 s62, s48, 7                   ; rot8
    s_cmp_eq_u32 s62, 7
    s_cselect_b32 s61, 3, s62               ; rot7
    """
    for p in range(7):
        t_ += f"""
        s_add_u32 s48, s61, {p}
        s_sub_u32 s49, s48, 7
        s_cmp_ge_u32 s48, 7
        s_cselect_b32 s48, s49, s48
        s_lshl_b32 s{RO+p}, s48, 12
        """
    F(t_)
    t_ = f"""
    s_lshl_b32 s50, s63, 15
    s_lshl_b32 s61, s60, 18
    s_lshl_b32 s48, s63, 17
    s_add_u32 s61, s61, s48
    s_add_u32 s61, s61, {WS_CF}
    """
    for p in range(8):
        t_ += f"""
        s_add_u32 s48, s62, {p}
        s_and_b32 s48, s48, 7
        s_lshl_b32 s49, s48, 14
        s_add_u32 s{SCB+p}, s49, s61
        s_lshl_b32 s49, s48, 12
        s_add_u32 s{SHB+p}, s49, s50
        """
    F(t_)
    F(f"""
    s_lshl_b32 s48, s60, 3
    s_add_u32 s48, s48, s34                 ; cq*8 + w
    s_mul_i32 s48, s48, {FT}
    s_mul_i32 s60, s63, {28 * 1024}         ; kh * 28K
    s_add_u32 s48, s48, s60
    s_add_u32 s48, s48, {WS_W2F}
    v_add_u32 v{VW2}, s48, v1
    v_add_u32 v{VC}, s51, v1
    v_add_u32 v{VC+1}, 8192, v{VC}
    s_bfe_u32 s48, s33, 0x10002             ; rh
    s_lshl_b32 s48, s48, 1
    s_add_u32 s62, s48, s63
    s_lshl_b32 s48, s32, 3
    s_add_u32 s48, s48, s34
    s_lshl_b32 s48, s48, 16
    s_lshl_b32 s49, s33, 12
    s_add_u32 s57, s48, s49
    """)
    a(fillers.pop(0))
    a(f"""
    s_lshr_b32 s48, s100, 3
    s_lshl_b32 s48, s48, 7
    s_and_b32 s49, s100, 7
    s_lshl_b32 s49, s49, 2
    s_add_u32 s48, s48, s49
    s_add_u32 s58, s48, {WS_FC}
    s_cmp_lg_u32 s34, 5
    s_cbranch_scc1 KF_nz
    v_mov_b32 v8, -1
    v_mov_b32 v9, -1
    v_mov_b32 v10, -1
    v_mov_b32 v11, -1
    v_mov_b32 v3, 0
    s_add_u32 s50, s37, 4096
    s_lshl_b32 s48, s38, 7
    s_add_u32 s48, s48, {WS_FL + 8192}
    s_xor_b32 s48, s48, {8 << 7}
    s_lshl_b32 s49, s2, 2
    s_add_u32 s49, s49, {WS_FS}
    s_mov_b64 exec, 0xffff
    buffer_store_dwordx4 v[8:11], v1, s[16:19], s47 offen sc1
    s_mov_b64 exec, 1
    buffer_store_dword v3, v3, s[16:19], s37 offen sc1
    buffer_store_dword v3, v3, s[16:19], s50 offen sc1
    buffer_store_dword v3, v3, s[16:19], s58 offen sc1
    buffer_store_dword v3, v3, s[16:19], s49 offen sc1
    s_mov_b64 exec, 0xff
    buffer_store_dword v3, v242, s[16:19], s48 offen sc1
    s_mov_b64 exec, -1
    KF_nz:
    """)
    vm.tags["clr"] = vm.n
    stamp(a, 1)
    T0 = 136
    def t(i): return T0 + i
    a(f"""
    s_cmp_lg_u32 s36, 0
    s_cbranch_scc1 KF_ntab
    s_waitcnt vmcnt({vm.after('par')})
    v_lshlrev_b32 v{t(1)}, 16, v7               ; Lim
    v_lshlrev_b32 v{t(0)}, 16, v6               ; Lre
    v_lshlrev_b32 v{t(2)}, 16, v11              ; log_dt
    v_mul_f32 v{t(2)}, {f2u(1.4426950408889634):#x}, v{t(2)}
    v_exp_f32 v{t(2)}, v{t(2)}
    v_cvt_pk_bf16_f32 v{t(2)}, v{t(2)}, v{t(2)}
    v_lshlrev_b32 v{t(2)}, 16, v{t(2)}
    v_mul_f32 v{t(3)}, v{t(2)}, v{t(0)}                 ; a
    v_mul_f32 v{t(4)}, v{t(2)}, v{t(1)}                 ; b
    v_mul_f32 v{t(3)}, {f2u(1.4426950408889634):#x}, v{t(3)}
    v_exp_f32 v{t(3)}, v{t(3)}                      ; e^a
    v_mul_f32 v{t(5)}, {f2u(0.6366197723675814):#x}, v{t(4)}
    v_rndne_f32 v{t(5)}, v{t(5)}                    ; n
    v_mov_b32 v{t(6)}, {f2u(1.5703125):#x}
    v_fma_f32 v{t(4)}, -v{t(5)}, v{t(6)}, v{t(4)}
    v_mov_b32 v{t(6)}, {f2u(4.837512969970703125e-4):#x}
    v_fma_f32 v{t(4)}, -v{t(5)}, v{t(6)}, v{t(4)}
    v_mov_b32 v{t(6)}, {f2u(7.54978995489188216e-8):#x}
    v_fma_f32 v{t(4)}, -v{t(5)}, v{t(6)}, v{t(4)}           ; r
    v_cvt_i32_f32 v{t(5)}, v{t(5)}                  ; q
    v_mul_f32 v{t(6)}, v{t(4)}, v{t(4)}                 ; z
    v_mov_b32 v{t(7)}, {f2u(-1.9515295891e-4):#x}
    v_mov_b32 v{t(8)}, {f2u(8.3321608736e-3):#x}
    v_fma_f32 v{t(7)}, v{t(7)}, v{t(6)}, v{t(8)}
    v_mov_b32 v{t(8)}, {f2u(-1.6666654611e-1):#x}
    v_fma_f32 v{t(7)}, v{t(7)}, v{t(6)}, v{t(8)}
    v_mul_f32 v{t(7)}, v{t(7)}, v{t(6)}
    v_fma_f32 v{t(7)}, v{t(7)}, v{t(4)}, v{t(4)}            ; sin r
    v_mov_b32 v{t(8)}, {f2u(2.443315711809948e-5):#x}
    v_mov_b32 v{t(9)}, {f2u(-1.388731625493765e-3):#x}
    v_fma_f32 v{t(8)}, v{t(8)}, v{t(6)}, v{t(9)}
    v_mov_b32 v{t(9)}, {f2u(4.166664568298827e-2):#x}
    v_fma_f32 v{t(8)}, v{t(8)}, v{t(6)}, v{t(9)}
    v_mul_f32 v{t(8)}, v{t(8)}, v{t(6)}
    v_fma_f32 v{t(8)}, v{t(8)}, v{t(6)}, 1.0
    v_fma_f32 v{t(8)}, v{t(6)}, -0.5, v{t(8)}           ; cos r
    v_and_b32 v{t(9)}, 1, v{t(5)}
    v_cmp_eq_u32 vcc, 1, v{t(9)}
    v_cndmask_b32 v{t(10)}, v{t(7)}, v{t(8)}, vcc
    v_cndmask_b32 v{t(11)}, v{t(8)}, v{t(7)}, vcc
    v_lshlrev_b32 v{t(9)}, 30, v{t(5)}
    v_and_b32 v{t(9)}, 0x80000000, v{t(9)}
    v_xor_b32 v{t(10)}, v{t(10)}, v{t(9)}                 ; sin b
    v_add_u32 v{t(9)}, 1, v{t(5)}
    v_lshlrev_b32 v{t(9)}, 30, v{t(9)}
    v_and_b32 v{t(9)}, 0x80000000, v{t(9)}
    v_xor_b32 v{t(11)}, v{t(11)}, v{t(9)}                 ; cos b
    v_mul_f32 v{t(12)}, v{t(3)}, v{t(11)}
    v_mul_f32 v{t(13)}, v{t(3)}, v{t(10)}
    v_lshrrev_b32 v4, 5, v0
    v_lshlrev_b32 v4, 8, v4
    v_lshl_add_u32 v4, v14, 4, v4
    v_and_b32 v8, 1, v15
    v_lshl_add_u32 v4, v8, 3, v4
    v_add_u32 v4, {L_TAB}, v4
    ds_write_b64 v4, v[{t(12)}:{t(13)}]
    """)
    P = {1: t(12)}
    for k in range(1, 8):
        P[1 << k] = t(14 + 2 * k)
        cplx_sq(a, P[1 << k], P[1 << (k - 1)], t(30))
        ent = {2: 2, 3: 3, 4: 5, 5: 6, 6: 8, 7: 9}.get(k)
        if ent is not None: a(f"ds_write_b64 v4, v[{P[1<<k]}:{P[1<<k]+1}] offset:{ent*2048}")
    cmul_acc(a, t(32), P[4], P[8], None); a(f"ds_write_b64 v4, v[{t(32)}:{t(33)}] offset:{4*2048}")
    cmul_acc(a, t(34), P[16], P[32], None); a(f"ds_write_b64 v4, v[{t(34)}:{t(35)}] offset:{7*2048}")
    a(f"""
    v_add_f32 v{t(4)}, -1.0, v{t(12)}                ; Lr-1
    v_mul_f32 v{t(5)}, v{t(13)}, v{t(1)}
    v_fma_f32 v{t(5)}, v{t(4)}, v{t(0)}, v{t(5)}
    v_mul_f32 v{t(6)}, v{t(4)}, v{t(1)}
    v_fma_f32 v{t(6)}, v{t(13)}, v{t(0)}, -v{t(6)}
    v_mul_f32 v{t(7)}, v{t(1)}, v{t(1)}
    v_fma_f32 v{t(7)}, v{t(0)}, v{t(0)}, v{t(7)}            ; den
    v_rcp_f32 v{t(8)}, v{t(7)}
    v_fma_f32 v{t(9)}, -v{t(7)}, v{t(8)}, 2.0
    v_mul_f32 v{t(8)}, v{t(8)}, v{t(9)}
    v_mul_f32 v{t(14)}, v{t(5)}, v{t(8)}
    v_mul_f32 v{t(15)}, v{t(6)}, v{t(8)}
    ds_write_b64 v4, v[{t(14)}:{t(15)}] offset:2048
    KF_ntab:
    """)
    stamp(a, 28)
    def sto(st): return 8192 + st * 2048 if st < 4 else (st - 4) * 2048
    def dma_piece(st, i):
        base = sto(st)
        if i == 0:
            a(f"""
            s_add_u32 m0, s52, {base}
            s_mul_i32 s49, s{64+st}, 1792
            buffer_load_dwordx4 v{VW}, s[12:15], s49 offen lds
            """)
        else:
            a(f"""
            s_mul_i32 s49, s{64+st}, 1792
            s_add_u32 m0, s52, {base + 1024}
            s_add_u32 s49, s49, {4 * 3584}
            buffer_load_dwordx4 v{VW}, s[12:15], s49 offen lds
            """)
        vm.issue(("dma", st), 1)
    def arrive(word, reg):
        a(f"""
        v_mov_b32 v8, {L_CNT + word}
        v_mov_b32 v9, 1
        s_mov_b64 exec, 1
        ds_add_rtn_u32 v{reg}, v8, v9
        s_mov_b64 exec, -1
        """)
    def setflag(w, sreg, label, local):
        a(f"""
        s_cmp_lg_u32 s34, {w}
        s_cbranch_scc1 {label}
        v_mov_b32 v9, 1
        v_mov_b32 v8, 0
        s_mov_b64 exec, 1
        """)
        if local: dual([f"buffer_store_dword v9, v8, s[16:19], {sreg} offen"])
        else: a(f"buffer_store_dword v9, v8, s[16:19], {sreg} offen sc1")
        a(f"s_mov_b64 exec, -1\n{label}:")
    S1, S2 = TM, TM + 2
    a("s_mov_b32 s53, 0x3f803f80")
    def bdma(s):
        a(f"""
        s_add_u32 m0, s52, {s * 1024}
        s_nop 0
        buffer_load_dwordx4 v{VB}, s[8:11], s{64+s} offen lds
        """)
        vm.issue("bdma", 1)
    def xread(c):
        a(f"s_waitcnt vmcnt({vm.after(('x', c))})")
        for h in range(2):
            r = X + (c * 2 + h) * 4
            a(f"ds_read_b128 v[{r}:{r+3}], v{VXR+h} offset:{c*2048}")
    xread(0)
    for c in range(8):
        if c < 7: xread(c + 1)
        stamp(a, 20 + c)
        a(f"s_waitcnt lgkmcnt({2 if c < 7 else 0})")
        if c < 4:
            bdma(2 * c); bdma(2 * c + 1)
        else:
            dma_piece(c - 4, 0); dma_piece(c - 4, 1)
        if c < len(fillers): a(fillers[c])
        if c == env("ARC", 5):
            a(f"""
            s_cmp_lg_u32 s34, 5
            s_cbranch_scc1 KF_narr
            s_cmp_lg_u32 s101, 0
            s_cselect_b32 s48, 0x30, 0x20
            s_or_b32 s48, s48, s59
            v_mov_b32 v9, s48
            v_mov_b32 v8, s2
            s_waitcnt vmcnt({vm.after('clr')})
            s_mov_b64 exec, 1
            buffer_store_byte v9, v8, s[20:23], 0 offen sc1
            s_mov_b64 exec, -1
            KF_narr:
            """)
        for d in range(8):
            x = X + c * 8 + d
            s1 = S1 + (d & 1); s2 = S2 + (d & 1)
            first = (c == 0 and d < 2)
            a(f"v_dot2_f32_bf16 v{s1}, v{x}, s53, {'0' if first else 'v%d' % s1}")
            a(f"v_dot2_f32_bf16 v{s2}, v{x}, v{x}, {'0' if first else 'v%d' % s2}")
    stamp(a, 2)
    a(f"""
    s_waitcnt vmcnt({vm.after('w2r')})
    ds_write_b128 v{VSC}, v[{W2R}:{W2R+3}]
    ds_read_b64_tr_b16 v[{W2R}:{W2R+1}], v{VSC+1}
    ds_read_b64_tr_b16 v[{W2R+2}:{W2R+3}], v{VSC+1} offset:512
    s_bfe_u32 s48, s100, 0x20003
    s_lshl_b32 s48, s48, 18
    s_lshl_b32 s49, s63, 17
    s_add_u32 s48, s48, s49
    s_bfe_u32 s49, s100, 0x20001
    s_lshl_b32 s49, s49, 15
    s_add_u32 s48, s48, s49
    s_and_b32 s49, s100, 1
    s_lshl_b32 s49, s49, 13
    s_add_u32 s48, s48, s49
    s_add_u32 s48, s48, s51
    s_add_u32 s48, s48, {WS_CF}
    s_add_u32 s49, s48, 16384
    """)
    for e in range(4): a(f"v_mov_b32 v{CRR+8+e}, v{CRR+e}")
    for e in range(4): a(f"v_mov_b32_dpp v{CRR+e}, v{CRR+4+e} row_ror:8 row_mask:0xf bank_mask:0xc")
    for e in range(4): a(f"v_mov_b32_dpp v{CRR+4+e}, v{CRR+8+e} row_ror:8 row_mask:0xf bank_mask:0x3")
    dual([f"buffer_store_dwordx4 v[{CRR}:{CRR+3}], v1, s[16:19], s48 offen", f"buffer_store_dwordx4 v[{CRR+4}:{CRR+7}], v1, s[16:19], s49 offen"])
    vm.issue("cst", 2)
    a(f"""
    s_waitcnt lgkmcnt(0)
    buffer_store_dwordx4 v[{W2R}:{W2R+3}], v1, s[16:19], s55 offen sc1
    """)
    vm.issue("sts", 1)
    stamp(a, 29)
    Qs = TM + 8
    a(f"""
    v_add_f32 v{Qs}, v{S1}, v{S1+1}
    v_add_f32 v{Qs+1}, v{S2}, v{S2+1}
    """)
    for op in ("v_permlane16_swap_b32", "v_permlane32_swap_b32"):
        a(f"""
        v_mov_b32 v{Qs+2}, v{Qs}
        v_mov_b32 v{Qs+3}, v{Qs+1}
        {op} v{Qs}, v{Qs+2}
        {op} v{Qs+1}, v{Qs+3}
        v_add_f32 v{Qs}, v{Qs}, v{Qs+2}
        v_add_f32 v{Qs+1}, v{Qs+1}, v{Qs+3}
        """)
    a(f"""
    v_mul_f32 v{Qs}, {f2u(1/512):#x}, v{Qs}
    v_mul_f32 v{Qs+1}, {f2u(1/512):#x}, v{Qs+1}
    v_fma_f32 v{Qs+1}, -v{Qs}, v{Qs}, v{Qs+1}
    v_max_f32 v{Qs+1}, 0, v{Qs+1}
    v_cvt_pk_bf16_f32 v{Qs+2}, v{Qs}, v{Qs+1}
    v_lshlrev_b32 v{MR}, 16, v{Qs+2}
    v_and_b32 v{Qs+1}, 0xffff0000, v{Qs+2}
    v_xor_b32 v{NM}, 0x80000000, v{MR}
    v_add_f32 v{Qs+1}, {f2u(1e-5):#x}, v{Qs+1}
    v_mov_b32 v{NM+1}, v{NM}
    v_cvt_pk_bf16_f32 v{Qs+1}, v{Qs+1}, v{Qs+1}
    v_mov_b32 v{NM+2}, v{NM}
    v_lshlrev_b32 v{Qs+1}, 16, v{Qs+1}
    v_mov_b32 v{NM+3}, v{NM}
    v_sqrt_f32 v{Qs+1}, v{Qs+1}
    v_cvt_pk_bf16_f32 v{Qs+1}, v{Qs+1}, v{Qs+1}
    v_lshlrev_b32 v{Qs+1}, 16, v{Qs+1}
    v_rcp_f32 v{Qs+2}, v{Qs+1}
    v_fma_f32 v{Qs+3}, -v{Qs+1}, v{Qs+2}, 2.0
    v_mul_f32 v{MR+1}, v{Qs+2}, v{Qs+3}
    """)
    def unpack(f):
        x0 = X + f * 4
        T = TM + 8 * (f & 1)
        return [f"v_mfma_f32_16x16x32_bf16 v[{T}:{T+3}], v[{SELR+2}:{SELR+5}], v[{x0}:{x0+3}], v[{NM}:{NM+3}]",
                f"v_mfma_f32_16x16x32_bf16 v[{T+4}:{T+7}], v[{SELR}:{SELR+3}], v[{x0}:{x0+3}], v[{NM}:{NM+3}]"]
    def norm_valu(f):
        x0 = X + f * 4
        T = TM + 8 * (f & 1)
        o = []
        for e in range(8): o.append(f"v_cvt_pk_bf16_f32 v{T+e}, 0, v{T+e}")
        for e in range(8): o.append(f"v_mul_f32 v{T+e}, v{T+e}, v{MR+1}")
        for d in range(4): o.append(f"v_cvt_pk_bf16_f32 v{x0+d}, v{T+2*d}, v{T+2*d+1}")
        return o
    for l in unpack(0) + unpack(1): a(l)
    a(f"""
    s_lshl_b32 s48, s34, 7
    v_lshl_add_u32 v4, v14, 3, s48
    v_add_u32 v4, {L_ST}, v4
    ds_write_b64 v4, v[{MR}:{MR+1}]
    v_lshl_add_u32 v4, v15, 11, v{VT}       ; + g*2048
    s_lshl_b32 s48, s35, 11
    v_add_u32 v5, s48, v{VT}
    """)
    for l in norm_valu(0): a(l)
    for l in unpack(2): a(l)
    stamp(a, 3)
    a(f"""
    s_waitcnt vmcnt({vm.after('bdma')}) lgkmcnt(0)
    s_barrier
    """)
    def breads(j):
        pos, ks = j >> 1, j & 1
        b = BB + (j & 1) * 16
        return [f"ds_read_b128 v[{b+4*q}:{b+4*q+3}], v{VA + ks + 2 * (q >> 1)} offset:{pos * 1024 + (q & 1) * 32768}" for q in range(4)]
    for l in breads(0): a(l)
    lg = Cnt()
    lg.tags[("b", 0)] = 0
    a(f"""
    ds_read_b128 v[{LAM}:{LAM+3}], v{VT}
    ds_read_b128 v[{COEF}:{COEF+3}], v{VT} offset:2048
    ds_read_b128 v[{L4}:{L4+3}], v{VT} offset:4096
    ds_read_b128 v[{L16}:{L16+3}], v{VT} offset:{5*2048}
    ds_read_b128 v[{GG}:{GG+3}], v4 offset:2048
    ds_read_b128 v[{WA}:{WA+3}], v5 offset:{4*2048}
    ds_read_b128 v[{WB}:{WB+3}], v{VT} offset:{8*2048}
    """)
    lg.issue(None, 7)
    for l in norm_valu(1): a(l)
    stamp(a, 4)
    ARJ = env("ARJ", 2)
    for j in range(16):
        b = BB + (j & 1) * 16
        a(f"s_waitcnt lgkmcnt({lg.after(('b', j))})")
        main = []
        for q in range(4):
            ac = ACCB + 4 * q
            c = "0" if j == 0 else f"v[{ac}:{ac+3}]"
            main.append(f"v_mfma_f32_16x16x32_bf16 v[{ac}:{ac+3}], v[{X+4*j}:{X+4*j+3}], v[{b+4*q}:{b+4*q+3}], {c}")
        if j + 3 < 16:
            un = unpack(j + 3)
            main = [main[0], main[1], main[2], main[3], un[0], un[1]]
        nr = breads(j + 1) if j < 15 else []
        va = norm_valu(j + 2) if j + 2 < 16 else []
        interleave(a, main, nr + va, lead=0)
        lg.issue(("b", j + 1), len(nr))
        if j == 7:
            a(f"s_waitcnt vmcnt({vm.after('cst')})\ns_barrier")
            setflag(3, "s58", "KF_nfc", True)
            dma_piece(4, 0); dma_piece(4, 1)
        if j == 8:
            dma_piece(5, 0); dma_piece(5, 1)
        if j == 13:
            a(f"""
            s_cmp_lg_u32 s34, 7
            s_cbranch_scc1 KF_np0
            buffer_load_dword v243, v242, s[20:23], 0 offen sc1
            KF_np0:
            v_cmp_eq_u32 vcc, 0, v15
            """)
            for e in range(4): a(f"v_cndmask_b32 v{GG+e}, v{GG+e}, {'1.0' if e % 2 == 0 else '0'}, vcc")
            a("v_and_b32 v4, 1, v15\nv_cmp_eq_u32 vcc, 1, v4")
            for e in range(4): a(f"v_cndmask_b32 v{G1+e}, {'1.0' if e % 2 == 0 else '0'}, v{L4+e}, vcc")
            a("s_cmp_eq_u32 s35, 0\ns_cselect_b64 vcc, -1, 0")
            for e in range(4): a(f"v_cndmask_b32 v{WA+e}, v{WA+e}, {'1.0' if e % 2 == 0 else '0'}, vcc")
            a("s_cmp_eq_u32 s36, 0\ns_cselect_b64 vcc, -1, 0")
            for e in range(4): a(f"v_cndmask_b32 v{WB+e}, v{WB+e}, {'1.0' if e % 2 == 0 else '0'}, vcc")
        if j == 14:
            for ct in range(2): cmul_acc(a, Q + 2 * ct, WA + 2 * ct, WB + 2 * ct, None)
            for ct in range(2): cmul_acc(a, MM + 2 * ct, Q + 2 * ct, GG + 2 * ct, None)
    stamp(a, 5)
    for ct in range(2):
        cf = COEF + 2 * ct
        for r in range(4):
            u = U + ct * 8 + 2 * r
            re = ACCB + (0 * 2 + ct) * 4 + r
            im = ACCB + (1 * 2 + ct) * 4 + r
            a(f"""
            v_mul_f32 v{u}, v{cf+1}, v{im}
            v_mul_f32 v{u+1}, v{cf+1}, v{re}
            v_fma_f32 v{u}, v{cf}, v{re}, -v{u}
            v_fma_f32 v{u+1}, v{cf}, v{im}, v{u+1}
            """)
    for r in range(1, 4):
        for ct in range(2):
            c = U + ct * 8 + 2 * r
            cmul_acc(a, c, c - 2, LAM + 2 * ct, c)
    TT, CC, E8, X1, SS = 88, 92, 96, 100, 148
    def e4(i): return U + (i >> 1) * 8 + 6 + (i & 1)
    for i in range(4): a(f"v_mov_b32 v{TT+i}, 0\nv_mov_b32 v{CC+i}, v{e4(i)}")
    for i in range(4): a(f"v_permlane16_swap_b32 v{TT+i}, v{CC+i}")
    for ct in range(2): cmul_acc(a, E8 + 2 * ct, TT + 2 * ct, L4 + 2 * ct, e4(2 * ct))
    for i in range(4): a(f"v_mov_b32 v{X1+i}, v{E8+i}\nv_mov_b32 v{SS+i}, 0")
    for i in range(4): a(f"v_permlane16_swap_b32 v{X1+i}, v{E8+i}")
    for i in range(4): a(f"v_permlane32_swap_b32 v{SS+i}, v{E8+i}")
    for ct in range(2): cmul_acc(a, Q + 2 * ct, SS + 2 * ct, G1 + 2 * ct, TT + 2 * ct)
    for ct in range(2): cmul_acc(a, G1 + 2 * ct, Q + 2 * ct, L4 + 2 * ct, e4(2 * ct))
    E16 = G1
    a(f"""
    s_lshl_b32 s48, s34, 8
    s_add_u32 s48, s48, {L_E16}
    v_lshl_add_u32 v4, v14, 4, s48
    s_mov_b32 s48, 0
    s_mov_b32 s49, 0xffff0000
    s_mov_b64 exec, s[48:49]
    ds_write_b128 v4, v[{E16}:{E16+3}]
    s_mov_b64 exec, -1
    v_subrev_u32 v12, {7 * 256}, v4         ; e16[w-7]
    """)
    stamp(a, 6)
    a(f"""
    s_cmp_lg_u32 s34, 7
    s_cbranch_scc1 KF_nck
    s_mov_b32 s50, 1
    s_movk_i32 s61, {SPIN}
    s_mov_b32 s49, 0x20202020
    s_cmp_lg_u32 s101, 0
    s_cselect_b32 s49, 0x10101010, s49
    s_waitcnt vmcnt(0)
    KF_ckl:
    v_and_b32 v4, s49, v243
    v_cmp_ne_u32 vcc, s49, v4
    s_cbranch_vccz KF_cka
    s_sub_u32 s61, s61, 1
    s_cbranch_scc1 KF_ckd
    s_sleep 1
    buffer_load_dword v243, v242, s[20:23], 0 offen sc1
    s_waitcnt vmcnt(0)
    s_branch KF_ckl
    KF_cka:
    s_cmp_lg_u32 s101, 0
    s_cbranch_scc1 KF_ckd
    v_bfe_u32 v4, v243, 0, 4
    v_bfe_u32 v5, v243, 8, 4
    v_bfe_u32 v6, v243, 16, 4
    v_bfe_u32 v7, v243, 24, 4
    v_lshlrev_b32 v4, v4, 1
    v_lshlrev_b32 v5, v5, 1
    v_lshlrev_b32 v6, v6, 1
    v_lshlrev_b32 v7, v7, 1
    v_or3_b32 v4, v4, v5, v6
    v_or_b32 v4, v4, v7
    v_or_b32_dpp v4, v4, v4 quad_perm:[1,0,3,2] row_mask:0xf bank_mask:0xf
    v_cmp_ne_u32 vcc, 0x1fe, v4
    s_cbranch_vccz KF_ckd
    v_mov_b32 v4, 0
    v_mov_b32 v5, 0
    s_mov_b32 s61, 0
    """)
    for j in range(4):
        a(f"""
        v_bfe_u32 v8, v243, {8*j}, 4
        v_cmp_eq_u32 s[48:49], s59, v8
        v_add_u32 v9, {j}, v242
        v_cmp_gt_u32 vcc, s2, v9
        v_lshlrev_b32 v8, 3, v8
        v_subrev_u32 v8, 8, v8
        v_lshlrev_b64 v[6:7], v8, 1
        v_add_u32 v4, v4, v6
        v_add_u32 v5, v5, v7
        s_and_b64 s[48:49], s[48:49], vcc
        s_bcnt1_i32_b64 s48, s[48:49]
        s_add_u32 s61, s61, s48
        """)
    for r in (1, 2, 4, 8):
        a(f"v_add_u32_dpp v4, v4, v4 row_ror:{r} row_mask:0xf bank_mask:0xf\nv_add_u32_dpp v5, v5, v5 row_ror:{r} row_mask:0xf bank_mask:0xf")
    for op in ("v_permlane16_swap_b32", "v_permlane32_swap_b32"):
        a(f"""
        v_mov_b32 v6, v4
        v_mov_b32 v7, v5
        {op} v4, v6
        {op} v5, v7
        v_add_u32 v4, v4, v6
        v_add_u32 v5, v5, v7
        """)
    a(f"""
    v_readfirstlane_b32 s48, v4
    v_readfirstlane_b32 s49, v5
    s_xor_b32 s48, s48, 0x20202020
    s_xor_b32 s49, s49, 0x20202020
    s_or_b32 s48, s48, s49
    s_lshl_b32 s49, s3, 5
    s_add_u32 s49, s49, s61
    s_or_b32 s50, s49, 0x100
    s_cmp_lg_u32 s48, 0
    s_cselect_b32 s50, 2, s50
    KF_ckd:
    v_mov_b32 v8, s50
    v_mov_b32 v4, {L_CNT}
    ds_write_b32 v4, v8
    KF_nck:
    v_mov_b32 v3, {L_CNT}
    s_waitcnt vmcnt({vm.after(('dma', 3))}) lgkmcnt(0)
    s_barrier
    ds_read_b32 v3, v3
    """)
    stamp(a, 7)
    EBL = [88, 92, 96, 100, 84, 4, 8]
    for j in range(7): a(f"ds_read_b128 v[{EBL[j]}:{EBL[j]+3}], v12 offset:{j*256}")
    lg = Cnt()
    def fread(i):
        k, p = divmod(i, 7)
        st, ks = k >> 1, k & 1
        b = BF + (i % 8) * 4
        a(f"ds_read_b64_tr_b16 v[{b}:{b+1}], v{VF+7*ks+p} offset:{sto(st)}")
        a(f"ds_read_b64_tr_b16 v[{b+2}:{b+3}], v{VF+7*ks+p} offset:{sto(st)+1024}")
        lg.issue(("f", i), 2)
    a("s_waitcnt lgkmcnt(7)\nv_readfirstlane_b32 s48, v3\ns_cmp_lg_u32 s48, 1\ns_cbranch_scc1 KF_restart")
    lg.issue("p2b", 7)
    for i in range(4): fread(i)
    dma_piece(6, 0); dma_piece(6, 1)
    for i in range(4, 7): fread(i)
    dma_piece(7, 0); dma_piece(7, 1)
    WF = {}
    def wload(i, q, reg):
        a(f"buffer_load_dwordx4 v[{reg}:{reg+3}], v{VW2}, s[16:19], s{RO+i} offen offset:{q*1024}")
        vm.issue(("w", i)); WF[(i, q)] = reg
    def cload(b, ri):
        reg = X + 8 * b + 4 * ri
        a(f"buffer_load_dwordx4 v[{reg}:{reg+3}], v{VC+ri}, s[16:19], s{SCB+b} offen")
        vm.issue(("c", b))
    class L:
        def __init__(s): s.l = []
        def __call__(s, t_): s.l += [x.strip() for x in t_.strip().split("\n") if x.strip()]
    a(f"s_waitcnt lgkmcnt({min(15, lg.after('p2b'))})")
    for j in range(1, 7):
        for ct in range(2): cmul_acc(a, EBL[j] + 2 * ct, EBL[j - 1] + 2 * ct, L16 + 2 * ct, EBL[j] + 2 * ct)
    for ct in range(2): cmul_acc(a, E16 + 2 * ct, EBL[6] + 2 * ct, L16 + 2 * ct, E16 + 2 * ct)
    a(f"""
    s_cmp_lg_u32 s34, 7
    s_cbranch_scc1 KF_npub
    v_lshlrev_b32 v3, 4, v14
    s_mov_b32 s48, 0
    s_mov_b32 s49, 0xffff0000
    s_mov_b64 exec, s[48:49]
    buffer_store_dwordx4 v[{E16}:{E16+3}], v3, s[16:19], s47 offen sc1
    s_mov_b64 exec, -1
    KF_npub:
    """)
    vm.tags["dbg"] = vm.n
    for ct in range(2): cmul_acc(a, Q + 2 * ct, EBL[6] + 2 * ct, GG + 2 * ct, Q + 2 * ct)
    PC, PH, PL, PT = 192, 200, 208, 216
    def psf_valu():
        o = L()
        for ct in range(2): cmul_acc(o, PC + 2 * ct, PT + 2 * ct, MM + 2 * ct, Q + 2 * ct)
        for r in range(4):
            for ct in range(2):
                src = PC + (r & 1) * 4 + 2 * ct; dst = PC + ((r + 1) & 1) * 4 + 2 * ct
                cmul_acc(o, dst, src, LAM + 2 * ct, None)
                u = U + ct * 8 + 2 * r
                o(f"v_pk_add_f32 v[{u}:{u+1}], v[{u}:{u+1}], v[{dst}:{dst+1}]")
        return o.l
    def psf_split(ri):
        o = L(); ng = "-" if ri else ""
        for ct in range(2):
            h = PH + ri * 4 + ct * 2; l = PL + ri * 4 + ct * 2
            u = lambda r: U + ct * 8 + 2 * r + ri
            for pr in range(2):
                o(f"v_cvt_pk_bf16_f32 v{h+pr}, {ng}v{u(2*pr)}, {ng}v{u(2*pr+1)}")
            for pr in range(2):
                o(f"v_lshlrev_b32 v{PT+2*pr}, 16, v{h+pr}\nv_and_b32 v{PT+2*pr+1}, 0xffff0000, v{h+pr}")
            o(f"ds_write_b64 v3, v[{h}:{h+1}] offset:{ct*512}")
            for r in range(4): o(f"v_sub_f32 v{PT+r}, {ng}v{u(r)}, v{PT+r}")
            for pr in range(2): o(f"v_cvt_pk_bf16_f32 v{l+pr}, v{PT+2*pr}, v{PT+2*pr+1}")
            o(f"ds_write_b64 v3, v[{l}:{l+1}] offset:{1024 + ct*512}")
        return o.l
    HO = [PC, PC + 4, U, U + 4]
    def psf_tr(ri):
        o = []
        for hl in range(2):
            d = HO[ri * 2 + hl]
            o.append(f"ds_read_b64_tr_b16 v[{d}:{d+1}], v12 offset:{hl*1024}")
            o.append(f"ds_read_b64_tr_b16 v[{d+2}:{d+3}], v13 offset:{hl*1024}")
        return o
    def psf_addr():
        o = L()
        o(f"""
        v_lshlrev_b32 v4, 4, v14
        v_add_u32 v4, {L_HIN}, v4
        ds_read_b128 v[{PT}:{PT+3}], v4
        s_lshl_b32 s48, s34, 11
        s_add_u32 s48, s48, {L_TAB}
        v_lshrrev_b32 v3, 2, v14
        v_xor_b32 v3, v3, v15
        v_lshlrev_b32 v3, 3, v3
        v_lshl_add_u32 v3, v14, 5, v3
        v_add_u32 v3, s48, v3
        v_bfe_u32 v12, v2, 2, 2
        v_lshl_add_u32 v12, v15, 3, v12
        v_lshlrev_b32 v13, 1, v15
        v_and_b32 v13, 3, v13
        v_and_b32 v4, 3, v2
        v_xor_b32 v13, v13, v4
        v_lshlrev_b32 v13, 3, v13
        v_lshl_add_u32 v12, v12, 5, v13
        v_add_u32 v12, s48, v12
        v_add_u32 v13, 128, v12
        v_xor_b32 v13, 8, v13
        """)
        return o.l
    EL, R7, L128, L512, HG = 192, 208, 4, 8, 216
    def w7_eload(first):
        o = ""
        for j in range(4):
            o += f"buffer_load_dwordx4 v[{EL+4*j}:{EL+4*j+3}], v{244+j}, s[16:19], s50 offen sc1\n"
        if not first: return o
        a(f"""
        s_cmp_lg_u32 s34, 7
        s_cbranch_scc1 KF_nel
        s_sub_u32 s48, s32, 1
        v_sub_u32 v8, s48, v15                  ; rt - 1 - g
        """)
        for j in range(4):
            a(f"""
            v_subrev_u32 v9, {4*j}, v8
            v_cmp_gt_i32 vcc, 0, v9
            v_lshlrev_b32 v9, 8, v9
            v_lshl_add_u32 v9, v14, 4, v9
            v_mov_b32 v10, {WS_SIZE}
            v_cndmask_b32 v{244+j}, v9, v10, vcc
            """)
        a(f"""
        s_lshl_b32 s50, s33, 12
        s_add_u32 s50, s50, {WS_E}
        {o}
        s_and_b32 s48, s33, 7
        s_lshl_b32 s48, s48, 8
        s_add_u32 s48, s48, {L_TAB + 9 * 2048}
        v_lshl_add_u32 v8, v14, 4, s48
        ds_read_b128 v[{L128}:{L128+3}], v8
        s_waitcnt lgkmcnt(0)
        """)
        for ct in range(2): cplx_sq(a, R7 + 2 * ct, L128 + 2 * ct, 3)
        for ct in range(2): cplx_sq(a, L512 + 2 * ct, R7 + 2 * ct, 3)
        a("v_and_b32 v3, 1, v15\nv_cmp_eq_u32 vcc, 1, v3")
        for e in range(4): a(f"v_cndmask_b32 v{L128+e}, {'1.0' if e % 2 == 0 else '0'}, v{L128+e}, vcc")
        a("v_cmp_lt_u32 vcc, 1, v15")
        for e in range(4): a(f"v_cndmask_b32 v{R7+e}, {'1.0' if e % 2 == 0 else '0'}, v{R7+e}, vcc")
        for ct in range(2): cmul_acc(a, HG + 2 * ct, L128 + 2 * ct, R7 + 2 * ct, None)
        a("KF_nel:")
        vm.tags["e"] = vm.n
    def w7_horner():
        a(f"""
        s_cmp_lg_u32 s34, 7
        s_cbranch_scc1 KF_nho
        s_movk_i32 s61, {SPIN}
        s_waitcnt vmcnt({vm.after('e')})
        KF_hol:
        """)
        a(f"v_cmp_eq_u32 vcc, -1, v{EL}")
        for i in range(1, 16):
            a(f"v_cmp_eq_u32 s[48:49], -1, v{EL+i}\ns_or_b64 vcc, vcc, s[48:49]")
        a(f"""
        s_cmp_eq_u64 vcc, 0
        s_cbranch_scc1 KF_hod
        s_sub_u32 s61, s61, 1
        s_cbranch_scc1 KF_hod
        s_sleep 1
        {w7_eload(False)}
        s_waitcnt vmcnt(0)
        s_branch KF_hol
        KF_hod:
        """)
        for j in (2, 1, 0):
            for ct in range(2): cmul_acc(a, EL + 4 * j + 2 * ct, EL + 4 * (j + 1) + 2 * ct, L512 + 2 * ct, EL + 4 * j + 2 * ct)
        R = R7
        for ct in range(2): cmul_acc(a, R + 2 * ct, EL + 2 * ct, HG + 2 * ct, None)
        for op in ("v_permlane16_swap_b32", "v_permlane32_swap_b32"):
            for i in range(4): a(f"v_mov_b32 v{R+4+i}, v{R+i}")
            for i in range(4): a(f"{op} v{R+i}, v{R+4+i}")
            for i in range(4): a(f"v_add_f32 v{R+i}, v{R+i}, v{R+4+i}")
        a(f"""
        v_add_u32 v8, {L_HIN}, v1
        s_mov_b64 exec, 0xffff
        ds_write_b128 v8, v[{R}:{R+3}]
        s_mov_b64 exec, -1
        s_waitcnt lgkmcnt(0)
        KF_nho:
        """)
    def signal(reg, sreg, label):
        a(f"""
        v_readfirstlane_b32 s48, v{reg}
        s_cmp_lg_u32 s48, 7
        s_cbranch_scc1 {label}
        v_mov_b32 v9, 1
        v_mov_b32 v8, 0
        s_mov_b64 exec, 1
        """)
        dual([f"buffer_store_dword v9, v8, s[16:19], {sreg} offen"])
        a(f"s_mov_b64 exec, -1\n{label}:")
    def poll(reg, addr, sreg, label, tag):
        a(f"""
        s_movk_i32 s61, {SPIN}
        s_waitcnt vmcnt({vm.after(tag)})
        {label}l:
        v_cmp_ne_u32 vcc, 1, v{reg}
        s_cbranch_vccz {label}d
        s_sub_u32 s61, s61, 1
        s_cbranch_scc1 {label}d
        s_sleep 1
        buffer_load_dword v{reg}, v{addr}, s[16:19], {sreg} offen sc1
        s_waitcnt vmcnt(0)
        s_branch {label}l
        {label}d:
        """)
    EI, HI, PSN = env("EI", 28), env("HB", 63), env("PSN", 24)
    ev = {}
    def add(i, f): ev.setdefault(i, []).append(f)
    W01 = [80, 84, 88, 92, 96, 100, 248, 244]
    def fc_issue():
        a(f"""
        v_and_b32 v5, 7, v2
        v_lshlrev_b32 v5, 2, v5
        s_lshr_b32 s48, s100, 5
        s_lshl_b32 s48, s48, 2
        s_and_b32 s49, s33, 3
        s_add_u32 s48, s48, s49
        s_lshl_b32 s48, s48, 7
        s_add_u32 s55, s48, {WS_FC}
        buffer_load_dword v11, v5, s[16:19], s55 offen sc1
        """)
        vm.issue("pc")
    add(0, fc_issue)
    add(14, lambda: poll(11, 5, "s55", "KF_pc", "pc"))
    def fs_set():
        a(f"s_lshl_b32 s49, s2, 2\ns_add_u32 s49, s49, {WS_FS}")
        setflag(3, "s49", "KF_nfs", False)
    add(48, fs_set)
    for b in range(7):
        for ri in range(2): add((2 * b + 2) * 7 + 1 + 3 * ri, (lambda b=b, ri=ri: cload(b, ri)))
    add(EI, lambda: w7_eload(True))
    add(HI, w7_horner)
    items = psf_addr() + ["@w"] + psf_valu() + psf_split(0) + psf_tr(0) + ["#t0"] + psf_split(1) + psf_tr(1) + ["#t1", "@s"]
    for k, l in enumerate(items): add(HI + 1 + (k * PSN) // len(items), l)
    AR4 = min(110, HI + PSN + env("A4", 8))
    def h_arrive():
        a(f"s_waitcnt vmcnt({vm.after('hst')})"); arrive(20, 10); lg.issue("ar4")
    add(AR4, h_arrive)
    def h_signal():
        a(f"s_waitcnt lgkmcnt({min(15, lg.after('ar4'))})\ns_add_u32 s49, s37, 4096"); signal(10, "s49", "KF_nf4")
    add(min(111, AR4 + 4), h_signal)
    bars = {48: ("dma", 5), 76: ("dma", 7)}
    for i in range(112):
        k, p = divmod(i, 7)
        if p == 0 and k % 2 == 0: stamp(a, 8 + k // 2)
        b = BF + (i % 8) * 4
        ac = ACC + p * 4
        a(f"s_waitcnt lgkmcnt({min(15, lg.after(('f', i)))})")
        c = "0" if k == 0 else f"v[{ac}:{ac+3}]"
        a(f"v_mfma_f32_16x16x32_bf16 v[{ac}:{ac+3}], v[{b}:{b+3}], v[{X+4*k}:{X+4*k+3}], {c}")
        pre = [f for f in ev.get(i, []) if f is w7_horner]
        for f in pre: f()
        if i in bars: a(f"s_waitcnt vmcnt({vm.after(bars[i])})\ns_barrier")
        elif i == HI: a("s_barrier")
        if i + 7 < 112: fread(i + 7)
        for f in ev.get(i, []):
            if f is w7_horner: continue
            if callable(f): f()
            elif f == "@w": a(f"s_waitcnt lgkmcnt({min(15, lg.after('hin'))})")
            elif f[0] == "#": lg.tags[f[1:]] = lg.n
            elif f == "@s":
                a(f"s_waitcnt lgkmcnt({min(15, lg.after('t1'))})")
                dual([f"buffer_store_dwordx4 v[{HO[kk]}:{HO[kk]+3}], v1, s[16:19], s57 offen offset:{kk*1024}" for kk in range(4)])
                vm.issue("hst", 4)
            else:
                a(f)
                if f.startswith("ds_"):
                    lg.issue("hin" if f"v[{PT}:{PT+3}]" in f else None)
    stamp(a, 17)
    YA, OA, HB = 220, 16, BF
    VH, VP = 12, 6
    a("s_waitcnt lgkmcnt(0)")
    cload(7, 0); cload(7, 1)
    a(f"""
    v_and_b32 v5, 7, v2
    v_lshlrev_b32 v5, 2, v5
    s_add_u32 s55, s39, 4096
    buffer_load_dword v11, v5, s[16:19], s55 offen sc1
    v_min_u32 v242, 27, v2
    s_mul_i32 s48, s63, 28
    v_add_u32 v242, s48, v242
    v_lshlrev_b32 v242, 4, v242
    s_and_b32 s48, s33, 3
    s_lshl_b32 s48, s48, 2
    s_add_u32 s47, s48, {WS_FS}
    buffer_load_dword v243, v242, s[16:19], s47 offen sc1
    s_barrier
    s_lshl_b32 s48, s32, 3
    s_add_u32 s48, s48, s34
    s_mul_i32 s48, s48, {FT}
    s_add_u32 s48, s48, {WS_H1F}
    s_mul_i32 s49, s33, 7
    s_add_u32 s58, s49, s54
    s_lshl_b32 s58, s58, 9
    s_add_u32 s58, s58, s48
    s_add_u32 s59, s49, s56
    s_lshr_b32 s61, s59, 1
    s_lshl_b32 s61, s61, 10
    s_and_b32 s59, s59, 1
    s_lshl_b32 s59, s59, 3
    s_add_u32 s59, s59, s61
    s_add_u32 s59, s59, s48
    s_mov_b32 s53, {f2u(-1.4426950408889634):#x}
    s_bfe_u32 s48, s33, 0x10002             ; rh
    s_lshl_b32 s48, s48, 2
    s_lshl_b32 s49, s32, 3
    s_add_u32 s48, s48, s49
    s_lshr_b32 s49, s34, 1
    s_add_u32 s48, s48, s49
    s_and_b32 s49, s34, 1
    s_lshl_b32 s49, s49, 11
    s_lshl_b32 s50, s48, 16
    s_add_u32 s50, s50, s49
    v_add_u32 v{VH}, s50, v1
    s_mul_i32 s48, s48, {FT}
    s_add_u32 s48, s48, s49
    s_add_u32 s48, s48, s60
    s_add_u32 s48, s48, {WS_H1F}
    v_add_u32 v{VH+1}, s48, v1
    s_lshl_b32 s48, s63, 16
    v_add_u32 v{VP+1}, s48, v1
    v_xor_b32 v{VP}, 65536, v{VP+1}
    """)
    vm.issue("p4"); vm.issue("ps")
    def silu_tile(p, dst):
        ac = ACC + p * 4
        tt = 164 + (p & 1) * 12
        a(f"""
        v_cvt_pk_bf16_f32 v{tt}, v{ac}, v{ac+1}
        v_cvt_pk_bf16_f32 v{tt+1}, v{ac+2}, v{ac+3}
        v_lshlrev_b32 v{tt+4}, 16, v{tt}
        v_and_b32 v{tt+5}, 0xffff0000, v{tt}
        v_lshlrev_b32 v{tt+6}, 16, v{tt+1}
        v_and_b32 v{tt+7}, 0xffff0000, v{tt+1}
        """)
        for r in range(4): a(f"v_mul_f32 v{tt+8+r}, s53, v{tt+4+r}")
        for r in range(4): a(f"v_exp_f32 v{tt+8+r}, v{tt+8+r}")
        for r in range(4): a(f"v_add_f32 v{tt+8+r}, 1.0, v{tt+8+r}")
        for r in range(4): a(f"v_rcp_f32 v{tt+8+r}, v{tt+8+r}")
        for r in range(4): a(f"v_mul_f32 v{tt+4+r}, v{tt+4+r}, v{tt+8+r}")
        a(f"""
        v_cvt_pk_bf16_f32 v{dst}, v{tt+4}, v{tt+5}
        v_cvt_pk_bf16_f32 v{dst+1}, v{tt+6}, v{tt+7}
        """)
    def hdma(i, j):
        if j == 0: a(f"s_add_u32 m0, s52, {sto(i)}\ns_nop 0")
        a(f"buffer_load_dwordx4 v{VH}, s[16:19], s{SHB+i} offen offset:{j*1024} lds")
        vm.issue(("hd", i))
    def h1dma(i, j):
        if j == 0: a(f"s_add_u32 m0, s52, {sto(i)}\ns_nop 0")
        a(f"buffer_load_dwordx4 v{VH+1}, s[16:19], s{RO+i} offen offset:{j*1024} lds")
        vm.issue(("h1d", i))
    P4P = env("P4P", 2)
    H1O = 188
    for pr in range(4):
        if pr == P4P:
            stamp(a, 18)
            poll(11, 5, "s55", "KF_p4", "p4")
            for i in range(8): hdma(i, 0); hdma(i, 1)
            stamp(a, 19)
        o = H1O + 4 * pr
        silu_tile(2 * pr, o)
        if pr < 3: silu_tile(2 * pr + 1, o + 2)
    dual([f"buffer_store_dwordx4 v[{H1O+4*pr}:{H1O+4*pr+3}], v1, s[16:19], s58 offen offset:{pr*1024}" for pr in range(3)]
         + [f"buffer_store_dwordx2 v[{H1O+12}:{H1O+13}], v1, s[16:19], s59 offen"])
    vm.issue("h1s", 4)
    if P4P == 4:
        stamp(a, 18)
        poll(11, 5, "s55", "KF_p4", "p4")
        for i in range(8): hdma(i, 0); hdma(i, 1)
        stamp(a, 19)
    WR = [104 + 4 * i for i in range(7)] + [164 + 4 * i for i in range(6)] + [204 + 4 * i for i in range(4)] + [24, 28, 32]
    seq = []
    for i in range(8):
        for ri in range(2):
            for tp in range(2):
                for tq in range(2):
                    for hl in range(2): seq.append(("y", i, tp, tq, ri, hl))
    for tp in range(2):
        for i in range(7):
            for q in range(4):
                for tq in range(2): seq.append(("o", i, tp, tq, q >> 1, q & 1))
    N = len(seq)
    lg = Cnt()
    def bread(n):
        kind, i, tp, tq, hi, lo = seq[n]
        b = HB + (n % 8) * 4
        a(f"ds_read_b128 v[{b}:{b+3}], v{VP+tp} offset:{(2*tq+hi)*16384 + sto(i) + lo*1024}")
        lg.issue(("f", n))
    A1, P1I, P1C = env("A1", 6), env("P1I", 30), env("P1C", 48)
    ev = {}
    def h1_arrive():
        a(f"s_waitcnt vmcnt({vm.after('h1s')})"); arrive(24, 10); lg.issue("ar1")
    add(A1, h1_arrive)
    def h1_signal():
        a(f"s_waitcnt lgkmcnt({min(15, lg.after('ar1'))})"); signal(10, "s37", "KF_nf1")
    add(A1 + 6, h1_signal)
    def p1_issue():
        a("buffer_load_dword v11, v5, s[16:19], s39 offen sc1"); vm.issue("p1")
    add(P1I, p1_issue)
    add(P1C, lambda: poll(11, 5, "s39", "KF_p1", "p1"))
    nxt = P1C + 1
    for i in range(7):
        nxt = max(nxt, 16 * (i + 1) + 1)
        add(nxt, (lambda i=i: (h1dma(i, 0), h1dma(i, 1)))); nxt += 3
    WS0, WSP = env("WS0", 3), env("WSP", 4)
    add(WS0 - 1, lambda: poll(243, 242, "s47", "KF_ps", "ps"))
    WR = W01 + WR
    wl = [(i, q) for i in range(0, 7) for q in range(4)]
    for k, (i, q) in enumerate(wl):
        pos = WS0 + k * WSP
        if WR[k] < 80: pos = max(pos, 16 * ((WR[k] - X) // 8 + 1) + 1)
        add(pos, (lambda i=i, q=q, k=k: wload(i, q, WR[k])))
    XR, DR, PR, ST = 80, 84, 40, 88
    def y_send():
        a(f"""
        s_lshl_b32 s48, s38, 15
        s_lshl_b32 s49, s34, 12
        s_add_u32 s48, s48, s49
        s_add_u32 s58, s48, {WS_OP}
        s_xor_b32 s57, s58, {8 << 15}
        s_lshl_b32 s48, s38, 7
        s_lshl_b32 s49, s34, 2
        s_add_u32 s48, s48, s49
        s_add_u32 s54, s48, {WS_FL + 8192}
        s_xor_b32 s55, s54, {8 << 7}
        buffer_store_dwordx4 v[{YA}:{YA+3}], v1, s[16:19], s57 offen sc1
        buffer_store_dwordx4 v[{YA+4}:{YA+7}], v1, s[16:19], s57 offen offset:1024 sc1
        """)
        vm.issue("ys", 2)
    add(128 + 3, y_send)
    def o_send():
        a(f"""
        buffer_store_dwordx4 v[{OA}:{OA+3}], v1, s[16:19], s57 offen offset:2048 sc1
        buffer_store_dwordx4 v[{OA+4}:{OA+7}], v1, s[16:19], s57 offen offset:3072 sc1
        """)
        vm.issue("os", 2)
    add(184 + 4, o_send)
    def fin_addr():
        a(f"""
        s_lshl_b32 s48, s32, 7
        s_lshl_b32 s49, s62, 5
        s_add_u32 s48, s48, s49
        v_add_u32 v12, s48, v14
        v_lshlrev_b32 v12, 10, v12
        s_and_b32 s48, s33, 3
        s_lshl_b32 s48, s48, 8
        s_lshl_b32 s49, s34, 5
        s_add_u32 s48, s48, s49
        v_lshl_add_u32 v13, v15, 3, s48
        v_add_u32 v12, v12, v13
        s_movk_i32 s48, 16384
        buffer_load_dwordx2 v[{XR}:{XR+1}], v12, s[4:7], 0 offen
        buffer_load_dwordx2 v[{XR+2}:{XR+3}], v12, s[4:7], s48 offen
        v_lshlrev_b32 v12, 1, v12
        s_lshl_b32 s48, s62, 8
        v_lshl_add_u32 v4, v14, 3, s48
        v_add_u32 v4, {L_ST}, v4
        """)
        vm.issue("x", 2)
        srd(a, 12, 88, 1024)
        srd(a, 8, 90, 2048 * 2048)
        a(f"""
        buffer_load_dwordx2 v[{DR}:{DR+1}], v13, s[12:15], 0 offen
        ds_read_b64 v[{ST}:{ST+1}], v4
        ds_read_b64 v[{ST+2}:{ST+3}], v4 offset:128
        """)
        vm.issue("x"); lg.issue(None, 2)
    add(184 + 12, fin_addr)
    def pr_loads():
        return "\n".join(f"buffer_load_dwordx4 v[{PR+4*k}:{PR+4*k+3}], v1, s[16:19], s58 offen offset:{k*1024} sc1" for k in (2, 3, 0, 1))
    F3, PRI = env("F3", 28), env("PRI", 50)
    def f3_send():
        a(f"""
        v_mov_b32 v9, 1
        v_mov_b32 v8, 0
        s_waitcnt vmcnt({vm.after('os')})
        s_mov_b64 exec, 1
        buffer_store_dword v9, v8, s[16:19], s55 offen sc1
        s_mov_b64 exec, -1
        """)
        vm.issue("f3")
    add(184 + F3, f3_send)
    def pr_issue():
        a("buffer_load_dword v11, v8, s[16:19], s54 offen sc1"); vm.issue("p3")
    add(184 + PRI, pr_issue)
    a(f"s_waitcnt vmcnt({vm.after(('hd', 0))})\ns_barrier")
    stamp(a, 32)
    for n in range(7): bread(n)
    for n in range(N):
        kind, i, tp, tq, hi, lo = seq[n]
        if n < 128 and n % 16 == 0:
            if n: stamp(a, 32 + n // 16)
            tg = ("hd", n // 16 + 1) if n < 112 else None
            w_ = [vm.after(("c", n // 16))]
            if tg: w_.append(vm.after(tg))
            a(f"s_waitcnt vmcnt({min(w_)})\ns_barrier")
        if n + 7 >= 128 and n + 7 < 184 and (n + 7 - 128) % 8 == 0:
            s_ = (n + 7 - 128) // 8
            a(f"s_waitcnt vmcnt({vm.after(('h1d', s_))})\ns_barrier")
        if n >= 128 and n < 184 and (n - 128) % 8 == 0:
            s_ = (n - 128) // 8
            stamp(a, 40 + s_)
            a(f"s_waitcnt vmcnt({vm.after(('w', s_))})")
        if n == 184: stamp(a, 47)
        b = HB + (n % 8) * 4
        a(f"s_waitcnt lgkmcnt({min(15, lg.after(('f', n)))})")
        if kind == "y":
            ac = YA + (tp * 2 + tq) * 4; af = X + 8 * i + 4 * hi
            first = (i == 0 and hi == 0 and lo == 0)
        else:
            ac = OA + (tp * 2 + tq) * 4 if tp == 0 else 56 + tq * 4
            af = WF[(i, 2 * hi + lo)]
            first = (i == 0 and hi == 0 and lo == 0)
        c = "0" if first else f"v[{ac}:{ac+3}]"
        a(f"v_mfma_f32_16x16x32_bf16 v[{ac}:{ac+3}], v[{af}:{af+3}], v[{b}:{b+3}], {c}")
        if n + 7 < N: bread(n + 7)
        for f in ev.get(n, []): f()
    stamp(a, 50)
    OP = 56
    M, XF, XN, DU, TMP, T2 = 104, 112, 120, 128, 132, 136
    def rnd(base, n, tmp):
        for e in range(n // 2): a(f"v_cvt_pk_bf16_f32 v{tmp+e}, v{base+2*e}, v{base+1+2*e}")
        for e in range(n // 2): a(f"v_lshlrev_b32 v{base+2*e}, 16, v{tmp+e}\nv_and_b32 v{base+1+2*e}, 0xffff0000, v{tmp+e}")
    poll(11, 8, "s54", "KF_p3", "p3")
    stamp(a, 52)
    a(pr_loads()); vm.issue("pr", 4)
    a(f"s_waitcnt vmcnt({vm.after('x')}) lgkmcnt(0)")
    for e in range(4):
        a(f"v_lshlrev_b32 v{XF+2*e}, 16, v{XR+e}\nv_and_b32 v{XF+1+2*e}, 0xffff0000, v{XR+e}")
    for e in range(2):
        a(f"v_lshlrev_b32 v{DU+2*e}, 16, v{DR+e}\nv_and_b32 v{DU+1+2*e}, 0xffff0000, v{DR+e}")
    for e in range(8): a(f"v_sub_f32 v{XN+e}, v{XF+e}, v{ST+2*(e>>2)}")
    rnd(XN, 8, TMP)
    for e in range(8): a(f"v_mul_f32 v{XN+e}, v{XN+e}, v{ST+1+2*(e>>2)}")
    rnd(XN, 8, TMP)
    for e in range(8): a(f"v_mul_f32 v{XN+e}, v{XN+e}, v{DU+(e&3)}")
    rnd(XN, 8, TMP)
    a("s_waitcnt vmcnt(0)")
    stamp(a, 51)
    for e in range(8): a(f"v_add_f32 v{OP+e}, v{OP+e}, v{PR+8+e}")
    rnd(OP, 8, TMP)
    for e in range(8): a(f"v_mul_f32 v{T2+e}, s53, v{OP+e}")
    for e in range(8): a(f"v_exp_f32 v{T2+e}, v{T2+e}")
    for e in range(8): a(f"v_add_f32 v{M+e}, v{YA+8+e}, v{PR+e}")
    for e in range(8): a(f"v_add_f32 v{T2+e}, 1.0, v{T2+e}")
    for e in range(8): a(f"v_rcp_f32 v{T2+e}, v{T2+e}")
    for e in range(8): a(f"v_fma_f32 v{M+e}, v{M+e}, 2.0, v{XN+e}")
    for e in range(8): a(f"v_mul_f32 v{OP+e}, v{OP+e}, v{T2+e}")
    rnd(OP, 8, TMP)
    for e in range(8): a(f"v_mul_f32 v{M+e}, v{M+e}, v{OP+e}")
    for e in range(8): a(f"v_add_f32 v{M+e}, v{M+e}, v{XF+e}")
    a(f"""
    s_mov_b32 s48, 32768
    buffer_store_dwordx4 v[{M}:{M+3}], v12, s[8:11], 0 offen
    buffer_store_dwordx4 v[{M+4}:{M+7}], v12, s[8:11], s48 offen
    """)
    if STAMP: a("s_waitcnt vmcnt(0)")
    stamp(a, 53)
    stamp_store(a, 16, 0)
    probe_end(a)
    a("""
    KF_done:
    s_endpgm
    KF_restart:
    s_and_b32 s100, s48, 255
    s_mov_b32 s101, 2
    s_cmp_eq_u32 s48, 2
    s_cselect_b32 s100, s2, s100
    s_cselect_b32 s101, 1, s101
    s_waitcnt vmcnt(0) lgkmcnt(0)
    s_barrier
    s_branch KF_top
    """)
    for t_ in tail: a.raw(t_)

HEADER = open("recurrent_scan__ssm_conv_s5__dense_activation_silu__prompt.s.ref").read().split("; Override launch")[0]

def build():
    a = Asm()
    a.raw(HEADER.rstrip("\n"))
    a.raw(f"; @launch grid=(256,1,1) block=(512,1,1) lds={KF_LDS}")
    a.raw('.amdgcn_target "amdgcn-amd-amdhsa--gfx950"\n.text')
    gen_kf(a)
    a.raw('.section .rodata,"a"\n.p2align 6')
    a.raw(kd(KNAME, 256))
    return a.text()

if __name__ == "__main__":
    STAMP = len(sys.argv) > 2 and "stamp" in sys.argv[2]
    open(sys.argv[1], "w").write(build())
```

```python
import sys, struct
sys.path.insert(0, "dev")
from asmlib import Asm, kd

import os
PAD = int(os.environ.get("PAD", "0"))
ROT = int(os.environ.get("ROT", "1"))
MAP = int(os.environ.get("MAP", "1"))
BU_JS = 8192 + 512 * PAD
BU_SS = 4 * BU_JS + 256 * PAD
FT = 56 * 1024 + 256 * PAD
WS_BU  = 0
WS_H1F = 10 << 20
WS_W2F = 18 << 20
WS_S8X = 20 << 20
WS_E   = 21 << 20
WS_TP  = (21 << 20) + (64 << 10)
WS_TL  = (21 << 20) + (128 << 10)
WS_ST  = (21 << 20) + (192 << 10)
WS_CF  = 22 << 20
WS_FL  = 23 << 20
WS_G   = 26 << 20
WS_DBG = 24 << 20
WS_SIZE = 28 << 20
STAMP = False

PCLK = "s_memrealtime" if os.environ.get("PRT") else "s_memtime"
PROBE = os.environ.get("PROBE")
def probe_end(a):
    if not PROBE: return
    pa, pb, K, w, wg = [int(x) for x in PROBE.split(",")]
    a(f"""
    s_waitcnt vmcnt(0)
    s_cmp_lg_u32 s34, {w}
    s_cbranch_scc1 KF_done
    """)
    if wg >= 0: a(f"s_cmp_lg_u32 s2, {wg}\ns_cbranch_scc1 KF_done")
    if os.environ.get("PWB"): a("s_and_b32 s48, s100, 3\ns_cmp_lg_u32 s48, 0\ns_cbranch_scc1 KF_nwbp\nbuffer_wbl2 sc1\ns_waitcnt vmcnt(0)\nKF_nwbp:")
    if pa == -2:
        a(f"""
        s_mov_b32 s98, {pb}
        KF_prl:
        s_sleep 1
        {PCLK} s[48:49]
        s_waitcnt lgkmcnt(0)
        s_sub_u32 s48, s48, s96
        s_cmp_lt_u32 s48, s98
        s_cbranch_scc1 KF_prl
        """)
        return
    if pa < 0: a(f"s_mov_b32 s98, {pb}")
    else: a(f"s_sub_u32 s98, s98, s96\ns_mul_i32 s98, s98, {K}")
    a(f"""
    s_min_u32 s98, s98, {20000 if os.environ.get("PRT") else 400000}
    {PCLK} s[96:97]
    s_waitcnt lgkmcnt(0)
    KF_prl:
    s_sleep 1
    {PCLK} s[48:49]
    s_waitcnt lgkmcnt(0)
    s_sub_u32 s48, s48, s96
    s_cmp_lt_u32 s48, s98
    s_cbranch_scc1 KF_prl
    """)
def stamp(a, i):
    if PROBE:
        pa, pb = [int(x) for x in PROBE.split(",")[:2]]
        if pa == -2 and i == 30: a(PCLK + " s[96:97]\ns_waitcnt lgkmcnt(0)")
        if pa >= 0 and i == pa: a(PCLK + " s[96:97]\ns_waitcnt lgkmcnt(0)")
        if pa >= 0 and i == pb:
            if i == 53: a("s_waitcnt vmcnt(0)")
            a(PCLK + " s[98:99]\ns_waitcnt lgkmcnt(0)")
        return
    if not STAMP: return
    a(f"""
    s_memtime s[96:97]
    s_waitcnt lgkmcnt(0)
    v_writelane_b32 v255, s96, {i}
    """)

def rstamp(a, i):
    if not STAMP: return
    a(f"""
    s_memrealtime s[96:97]
    s_waitcnt lgkmcnt(0)
    v_writelane_b32 v255, s96, {i}
    """)

def stamp_store(a, srd, k):
    if not STAMP: return
    rstamp(a, 63)
    a(f"""
    s_mov_b64 exec, -1
    v_and_b32 v254, 63, v0
    v_lshlrev_b32 v254, 2, v254
    s_lshl_b32 s96, s2, 3
    s_add_u32 s96, s96, s34
    s_lshl_b32 s96, s96, 8
    s_add_u32 s96, s96, {WS_DBG + k * (1 << 20)}
    buffer_store_dword v255, v254, s[{srd}:{srd+3}], s96 offen
    """)

def srd(a, d, base, nbytes):
    a(f"""
    s_mov_b32 s{d}, s{base}
    s_and_b32 s{d+1}, s{base+1}, 0xffff
    s_mov_b32 s{d+2}, {nbytes}
    s_mov_b32 s{d+3}, 0x00020000
    """)

def f2u(x):
    return struct.unpack("<I", struct.pack("<f", x))[0]

def cplx_sq(a, d, s, t):
    a(f"""
    v_mul_f32 v{t}, v{s+1}, v{s+1}
    v_mul_f32 v{d+1}, v{s}, v{s+1}
    v_fma_f32 v{d}, v{s}, v{s}, -v{t}
    v_add_f32 v{d+1}, v{d+1}, v{d+1}
    """)

def cmul_acc(a, d, x, m, add):
    if add is None:
        a(f"v_pk_mul_f32 v[{d}:{d+1}], v[{x}:{x+1}], v[{m}:{m+1}] op_sel_hi:[1,0]")
    else:
        a(f"v_pk_fma_f32 v[{d}:{d+1}], v[{x}:{x+1}], v[{m}:{m+1}], v[{add}:{add+1}] op_sel_hi:[1,0,1]")
    a(f"v_pk_fma_f32 v[{d}:{d+1}], v[{x}:{x+1}], v[{m}:{m+1}], v[{d}:{d+1}] op_sel:[1,1,0] op_sel_hi:[0,1,1] neg_lo:[0,1,0]")

class Cnt:
    def __init__(self): self.n = 0; self.tags = {}
    def issue(self, tag=None, k=1):
        self.n += k
        if tag is not None: self.tags[tag] = self.n
    def after(self, tag): return self.n - self.tags[tag]
    def copy(self):
        c = Cnt(); c.n = self.n; c.tags = dict(self.tags); return c

def interleave(a, main, fill, lead=0):
    k = 0
    for l in fill[:lead]: a(l)
    k = lead
    n = len(main)
    rest = len(fill) - k
    for i, m in enumerate(main):
        a(m)
        tgt = lead + (rest * (i + 1)) // n
        while k < tgt:
            a(fill[k]); k += 1

L_M = 131072
L_TAB, L_ST, L_CNT, L_Z, L_E16, L_HIN, L_SCR = (L_M, L_M + 20480, L_M + 21504, L_M + 22528, L_M + 24576, L_M + 26624, L_M + 24576)
KF_LDS = 163840
WS_HF = 0
WS_OP = 26 << 20
WS_SIZE = 40 << 20
SPIN = 0x4000
KNAME = "recurrent_scan__ssm_conv_s5__dense_activation_silu__prompt_kernel"
def env(n, d): return int(os.environ.get(n, str(d)))
FORCE = env("FORCE", 0)

def gen_kf(a):
    X, MR, NM, TM = 16, 80, 84, 88
    ACC, BF = 104, 132
    ACCB, BB = 132, 148
    U, Q, MM, LAM, COEF, L4, L16, G1, GG = 164, 180, 184, 188, 192, 196, 200, 204, 208
    WA, WB = 212, 216
    VF, VW, VC, VHB, VW2 = 220, 234, 235, 237, 238
    SELR, VA, W2R, VXS, VXR, VB, VT = 104, 110, 116, 124, 126, 128, 129
    VSC, CRR = 130, 180
    WS_FC, WS_FS = WS_FL + 49152, WS_FL + 57344
    RO, SCB, SHB = 40, 72, 80
    vm = Cnt()
    _af = vm.after
    vm.after = lambda tg: min(63, _af(tg))
    tail = []
    ndual = [0]
    def dual(lines):
        k = ndual[0]; ndual[0] += 1
        a(f"s_cmp_eq_u32 s101, 1\ns_cbranch_scc1 KF_alt{k}")
        for l in lines: a(l)
        a.raw(f"KF_j{k}:")
        tail.append(f"KF_alt{k}:\n    s_nop 7\n    s_nop 7\n" + "".join(f"    {l} sc1\n" for l in lines) + f"    s_nop 7\n    s_branch KF_j{k}")
    a.raw(f".globl {KNAME}\n.p2align 8\n.type {KNAME},@function\n{KNAME}:")
    a("""
    s_cmp_ge_u32 s2, 256
    s_cbranch_scc1 KF_done
    """)
    rstamp(a, 62)
    stamp(a, 30)
    a(f"""
    s_getreg_b32 s3, hwreg(HW_REG_XCC_ID, 0, 3)
    s_mov_b32 s101, 0                       ; mode
    s_lshr_b32 s48, s2, 3
    s_lshl_b32 s100, s3, 5
    s_add_u32 s100, s100, s48
    KF_top:
    s_setprio 3
    s_load_dwordx16 s[72:87], s[0:1], 0
    s_load_dwordx4 s[88:91], s[0:1], 80     ; w1 w2
    s_load_dwordx4 s[92:95], s[0:1], 104
    v_lshrrev_b32 v1, 6, v0
    v_and_b32 v2, 63, v0                    ; lane
    v_readfirstlane_b32 s34, v1             ; wave
    v_and_b32 v14, 15, v2                   ; n
    v_lshrrev_b32 v15, 4, v2                ; g
    v_lshlrev_b32 v1, 4, v2                 ; lane*16
    s_bfe_u32 s32, s100, 0x20006
    s_lshl_b32 s32, s32, 2
    s_and_b32 s48, s100, 3
    s_add_u32 s32, s32, s48
    s_bfe_u32 s63, s100, 0x10005
    s_lshl_b32 s33, s63, 3
    s_bfe_u32 s48, s100, 0x30002
    s_add_u32 s33, s33, s48
    s_and_b32 s35, s34, 3
    s_lshr_b32 s36, s34, 2
    s_lshl_b32 s51, s34, 10                 ; wave*1024
    s_lshl_b32 s52, s34, 14                 ; region
    s_and_b32 s48, s32, 3
    s_lshl_b32 s48, s48, 1
    s_add_u32 s50, s33, s48
    """)
    for pos in range(8):
        a(f"s_add_u32 s48, s50, {pos}\ns_and_b32 s48, s48, 7\ns_lshl_b32 s{64+pos}, s48, 7")
    a(f"""
    s_lshl_b32 s48, s63, 9
    v_lshl_add_u32 v5, v0, 1, s48
    ; x source
    s_lshl_b32 s48, s32, 17
    s_add_u32 s48, s48, s52
    v_lshrrev_b32 v9, 3, v2                 ; r8
    v_and_b32 v10, 7, v2                    ; slot
    v_lshrrev_b32 v12, 1, v9
    v_xor_b32 v13, v12, v10
    v_lshl_add_u32 v4, v9, 10, s48
    v_lshl_add_u32 v{VXS}, v13, 4, v4
    v_xor_b32 v13, 4, v13
    v_lshl_add_u32 v{VXS+1}, v13, 4, v4
    v_add_u32 v{VXS+1}, 8192, v{VXS+1}
    s_and_b32 s60, s33, 3                   ; cq
    s_and_b32 s48, s34, 1
    s_lshl_b32 s48, s48, 2
    v_or_b32 v12, s48, v12
    v_xor_b32 v12, v12, v10
    s_lshl_b32 s48, s35, 3
    s_lshl_b32 s49, s33, 5
    s_add_u32 s48, s48, s49
    v_add_u32 v13, s48, v9                  ; channel
    v_lshlrev_b32 v13, 10, v13
    v_lshl_add_u32 v{VB}, v12, 4, v13
    s_lshl_b32 s57, s2, 3
    s_add_u32 s57, s57, s34                 ; b
    s_sub_u32 s48, s57, 256
    s_cmp_ge_u32 s57, 1792
    s_cselect_b32 s57, s48, s57
    s_lshr_b32 s58, s57, 5                  ; kstep
    s_and_b32 s59, s57, 31                  ; dtile
    v_lshrrev_b32 v12, 1, v2
    v_lshlrev_b32 v12, 10, v12
    v_and_b32 v13, 1, v2
    v_lshl_add_u32 v12, v13, 4, v12
    v_and_b32 v13, 7, v14
    v_lshlrev_b32 v13, 10, v13
    v_lshl_add_u32 v13, v15, 4, v13
    v_lshrrev_b32 v4, 3, v14
    v_lshl_add_u32 v13, v4, 6, v13
    s_bfe_u32 s48, s100, 0x20003
    s_lshl_b32 s48, s48, 17
    s_add_u32 s48, s48, s52                 ; + d tile
    s_lshl_b32 s49, s63, 9
    s_add_u32 s48, s48, s49
    s_bfe_u32 s49, s100, 0x20001
    s_lshl_b32 s49, s49, 7
    s_add_u32 s53, s48, s49
    s_lshl_b32 s61, s58, 15
    s_lshl_b32 s49, s59, 5
    s_add_u32 s61, s61, s49
    s_mul_i32 s48, s59, {FT}
    s_lshl_b32 s49, s58, 10
    s_add_u32 s48, s48, s49
    s_add_u32 s55, s48, {WS_W2F}
    s_add_u32 s48, s3, 1
    {'s_cmp_eq_u32 s2, 0' if FORCE else ''}
    {'s_cselect_b32 s49, 1, 0' if FORCE else ''}
    {'s_xor_b32 s48, s3, s49' if FORCE else ''}
    {'s_add_u32 s48, s48, 1' if FORCE else ''}
    s_mov_b32 s59, s48
    """)
    if STAMP: a("s_memtime s[98:99]")
    a("s_waitcnt lgkmcnt(0)")
    if STAMP: a("v_writelane_b32 v255, s98, 31")
    srd(a, 4, 72, 2048 * 1024)
    srd(a, 20, 92, 256)
    srd(a, 8, 74, 1024)
    srd(a, 12, 76, 1024)
    srd(a, 24, 86, 1024)
    a(f"""
    s_cmp_lg_u32 s36, 0
    s_cbranch_scc1 KF_np
    buffer_load_ushort v6, v5, s[8:11], 0 offen
    buffer_load_ushort v7, v5, s[12:15], 0 offen
    buffer_load_ushort v11, v5, s[24:27], 0 offen
    KF_np:
    """)
    vm.tags["par"] = vm.n
    for pos in range(8):
        for hh in range(2):
            a(f"""
            s_add_u32 m0, s52, {pos * 2048 + hh * 1024}
            s_nop 0
            buffer_load_dwordx4 v{VXS+hh}, s[4:7], s{64+pos} offen lds
            """)
            vm.issue(("x", pos))
    stamp(a, 0)
    srd(a, 28, 90, 1792 * 1024)
    a("""
    s_bitcmp0_b32 s100, 0
    s_cselect_b32 s48, s82, s84
    s_cselect_b32 s49, s83, s85
    """)
    srd(a, 24, 48, 512 * 1024)
    a(f"""
    s_add_u32 s48, s53, 8192
    buffer_load_dwordx4 v[{CRR}:{CRR+3}], v13, s[24:27], s53 offen
    buffer_load_dwordx4 v[{CRR+4}:{CRR+7}], v13, s[24:27], s48 offen
    buffer_load_dwordx4 v[{W2R}:{W2R+3}], v12, s[28:31], s61 offen
    s_cmp_lt_u32 s34, 4
    s_cselect_b32 s48, s78, s80
    s_cselect_b32 s49, s79, s81
    """)
    vm.issue("w2r", 3)
    srd(a, 8, 48, 512 * 1024)
    a("s_setprio 0")
    stamp(a, 16)
    srd(a, 16, 94, WS_SIZE)
    srd(a, 12, 88, 512 * 3584)
    a(f"""
    s_load_dwordx2 s[88:89], s[0:1], 64     ; Dskip
    s_load_dwordx2 s[90:91], s[0:1], 96     ; out
    v_mov_b32 v244, 0
    v_mov_b32 v245, 0
    v_mov_b32 v246, 0
    v_mov_b32 v247, 0
    s_cmp_lg_u32 s34, 4
    s_cbranch_scc1 KF_nz0
    v_add_u32 v9, {L_Z}, v1
    ds_write_b128 v9, v[244:247]
    ds_write_b128 v9, v[244:247] offset:1024
    v_mov_b32 v9, {L_CNT}
    ds_write_b128 v9, v[244:247] offset:16
    KF_nz0:
    v_bfe_u32 v12, v14, 1, 3                ; key = (n>>1)&7
    v_xor_b32 v12, v12, v15                 ; g ^ key
    v_lshlrev_b32 v13, 7, v14
    v_add_u32 v13, s52, v13
    v_lshl_add_u32 v{VXR}, v12, 4, v13
    v_xor_b32 v{VXR+1}, 64, v{VXR}
    v_and_b32 v13, 7, v14
    v_lshlrev_b32 v13, 7, v13
    v_lshrrev_b32 v9, 3, v14
    v_lshl_add_u32 v13, v9, 14, v13
    v_lshl_add_u32 v{VA}, v12, 4, v13
    v_xor_b32 v{VA+1}, 64, v{VA}
    v_add_u32 v{VA+2}, 65536, v{VA}
    v_add_u32 v{VA+3}, 65536, v{VA+1}
    ; w1 source
    s_and_b32 s48, s34, 1
    s_lshl_b32 s48, s48, 2
    v_or_b32 v13, s48, v15                  ; s(k)
    v_bfe_u32 v9, v2, 1, 3                  ; pair'
    v_xor_b32 v13, v13, v9                  ; pair
    v_lshlrev_b32 v13, 5, v13
    v_and_b32 v9, 1, v2
    v_lshl_add_u32 v13, v9, 4, v13
    s_lshl_b32 s48, s34, 3
    v_add_u32 v12, s48, v15                 ; k local (j=0)
    s_movk_i32 s49, 3584
    v_mul_lo_u32 v12, v12, s49
    s_mul_i32 s48, s33, 224
    v_add3_u32 v{VW}, v12, v13, s48
    v_lshlrev_b32 v242, 2, v2
    """)
    fillers = []
    def F(t): fillers.append(t)
    F(f"""
    v_lshrrev_b32 v9, 2, v14                ; m>>2
    v_cmp_eq_u32 vcc, v9, v15
    v_and_b32 v9, 1, v14
    v_lshlrev_b32 v9, 4, v9
    v_mov_b32 v10, 0x3f80
    v_lshlrev_b32 v9, v9, v10
    v_cndmask_b32 v9, 0, v9, vcc
    v_and_b32 v10, 2, v14
    v_cmp_eq_u32 vcc, 0, v10
    v_cndmask_b32 v{SELR+2}, 0, v9, vcc
    v_cndmask_b32 v{SELR+3}, v9, 0, vcc
    v_mov_b32 v{SELR}, 0
    v_mov_b32 v{SELR+1}, 0
    v_mov_b32 v{SELR+4}, 0
    v_mov_b32 v{SELR+5}, 0
    s_lshl_b32 s37, s32, 8
    s_lshl_b32 s48, s63, 7
    s_add_u32 s37, s37, s48
    s_add_u32 s39, s37, {WS_FL}
    s_and_b32 s48, s33, 7
    s_lshl_b32 s48, s48, 2
    s_add_u32 s37, s39, s48
    s_lshl_b32 s38, s32, 4
    s_add_u32 s38, s38, s33
    s_lshl_b32 s47, s33, 12
    s_lshl_b32 s48, s32, 8
    s_add_u32 s47, s47, s48
    s_add_u32 s47, s47, {WS_E}
    s_and_b32 s48, s33, 7
    s_lshl_b32 s48, s48, 8
    s_add_u32 s48, s48, {L_TAB}
    v_lshl_add_u32 v{VT}, v14, 4, s48
    s_add_u32 s48, s51, {L_SCR}
    v_add_u32 v{VSC}, s48, v1
    v_bfe_u32 v9, v2, 2, 2
    v_lshl_add_u32 v9, v15, 2, v9           ; 4g + r
    v_lshlrev_b32 v9, 5, v9
    v_and_b32 v10, 3, v2
    v_lshl_add_u32 v9, v10, 3, v9
    v_add_u32 v{VSC+1}, s48, v9
    """)
    t_ = f"""
    v_bfe_u32 v12, v2, 2, 2                 ; r
    v_and_b32 v13, 1, v15
    v_lshl_or_b32 v13, v13, 2, v12          ; sw
    v_lshlrev_b32 v12, 8, v12
    v_lshl_add_u32 v12, v15, 14, v12        ; g*16384 + r*256
    v_and_b32 v4, 3, v2
    v_lshl_add_u32 v12, v4, 3, v12          ; + c*8
    s_and_b32 s54, s33, 1                   ; par
    s_cmp_lg_u32 s54, 0
    s_cselect_b32 s56, 0, 6
    """
    for p in range(7):
        if p < 6: t_ += f"s_add_u32 s48, s54, {p}\n"
        sreg = "s48" if p < 6 else "s56"
        t_ += f"v_xor_b32 v4, {sreg}, v13\nv_lshl_add_u32 v{VF+p}, v4, 5, v12\nv_add_u32 v{VF+7+p}, 65536, v{VF+p}\n"
    F(t_)
    t_ = f"""
    s_add_u32 s48, s33, s32
    s_lshl_b32 s49, s32, 1
    s_add_u32 s48, s48, s49
    s_and_b32 s62, s48, 7                   ; rot8
    s_cmp_eq_u32 s62, 7
    s_cselect_b32 s61, 3, s62               ; rot7
    """
    for p in range(7):
        t_ += f"""
        s_add_u32 s48, s61, {p}
        s_sub_u32 s49, s48, 7
        s_cmp_ge_u32 s48, 7
        s_cselect_b32 s48, s49, s48
        s_lshl_b32 s{RO+p}, s48, 12
        """
    F(t_)
    t_ = f"""
    s_lshl_b32 s50, s63, 15
    s_lshl_b32 s61, s60, 18
    s_lshl_b32 s48, s63, 17
    s_add_u32 s61, s61, s48
    s_add_u32 s61, s61, {WS_CF}
    """
    for p in range(8):
        t_ += f"""
        s_add_u32 s48, s62, {p}
        s_and_b32 s48, s48, 7
        s_lshl_b32 s49, s48, 14
        s_add_u32 s{SCB+p}, s49, s61
        s_lshl_b32 s49, s48, 12
        s_add_u32 s{SHB+p}, s49, s50
        """
    F(t_)
    F(f"""
    s_lshl_b32 s48, s60, 3
    s_add_u32 s48, s48, s34                 ; cq*8 + w
    s_mul_i32 s48, s48, {FT}
    s_mul_i32 s60, s63, {28 * 1024}         ; kh * 28K
    s_add_u32 s48, s48, s60
    s_add_u32 s48, s48, {WS_W2F}
    v_add_u32 v{VW2}, s48, v1
    v_add_u32 v{VC}, s51, v1
    v_add_u32 v{VC+1}, 8192, v{VC}
    s_bfe_u32 s48, s33, 0x10002             ; rh
    s_lshl_b32 s48, s48, 1
    s_add_u32 s62, s48, s63
    s_lshl_b32 s48, s32, 3
    s_add_u32 s48, s48, s34
    s_lshl_b32 s48, s48, 16
    s_lshl_b32 s49, s33, 12
    s_add_u32 s57, s48, s49
    """)
    a(fillers.pop(0))
    a(f"""
    s_lshr_b32 s48, s100, 3
    s_lshl_b32 s48, s48, 7
    s_and_b32 s49, s100, 7
    s_lshl_b32 s49, s49, 2
    s_add_u32 s48, s48, s49
    s_add_u32 s58, s48, {WS_FC}
    s_cmp_lg_u32 s34, 5
    s_cbranch_scc1 KF_nz
    v_mov_b32 v8, -1
    v_mov_b32 v9, -1
    v_mov_b32 v10, -1
    v_mov_b32 v11, -1
    v_mov_b32 v3, 0
    s_add_u32 s50, s37, 4096
    s_lshl_b32 s48, s38, 7
    s_add_u32 s48, s48, {WS_FL + 8192}
    s_xor_b32 s48, s48, {8 << 7}
    s_lshl_b32 s49, s2, 2
    s_add_u32 s49, s49, {WS_FS}
    s_mov_b64 exec, 0xffff
    buffer_store_dwordx4 v[8:11], v1, s[16:19], s47 offen sc1
    s_mov_b64 exec, 1
    buffer_store_dword v3, v3, s[16:19], s37 offen sc1
    buffer_store_dword v3, v3, s[16:19], s50 offen sc1
    buffer_store_dword v3, v3, s[16:19], s58 offen sc1
    buffer_store_dword v3, v3, s[16:19], s49 offen sc1
    s_mov_b64 exec, 0xff
    buffer_store_dword v3, v242, s[16:19], s48 offen sc1
    s_mov_b64 exec, -1
    KF_nz:
    """)
    vm.tags["clr"] = vm.n
    stamp(a, 1)
    T0 = 136
    def t(i): return T0 + i
    a(f"""
    s_cmp_lg_u32 s36, 0
    s_cbranch_scc1 KF_ntab
    s_waitcnt vmcnt({vm.after('par')})
    v_lshlrev_b32 v{t(1)}, 16, v7               ; Lim
    v_lshlrev_b32 v{t(0)}, 16, v6               ; Lre
    v_lshlrev_b32 v{t(2)}, 16, v11              ; log_dt
    v_mul_f32 v{t(2)}, {f2u(1.4426950408889634):#x}, v{t(2)}
    v_exp_f32 v{t(2)}, v{t(2)}
    v_cvt_pk_bf16_f32 v{t(2)}, v{t(2)}, v{t(2)}
    v_lshlrev_b32 v{t(2)}, 16, v{t(2)}
    v_mul_f32 v{t(3)}, v{t(2)}, v{t(0)}                 ; a
    v_mul_f32 v{t(4)}, v{t(2)}, v{t(1)}                 ; b
    v_mul_f32 v{t(3)}, {f2u(1.4426950408889634):#x}, v{t(3)}
    v_exp_f32 v{t(3)}, v{t(3)}                      ; e^a
    v_mul_f32 v{t(5)}, {f2u(0.6366197723675814):#x}, v{t(4)}
    v_rndne_f32 v{t(5)}, v{t(5)}                    ; n
    v_mov_b32 v{t(6)}, {f2u(1.5703125):#x}
    v_fma_f32 v{t(4)}, -v{t(5)}, v{t(6)}, v{t(4)}
    v_mov_b32 v{t(6)}, {f2u(4.837512969970703125e-4):#x}
    v_fma_f32 v{t(4)}, -v{t(5)}, v{t(6)}, v{t(4)}
    v_mov_b32 v{t(6)}, {f2u(7.54978995489188216e-8):#x}
    v_fma_f32 v{t(4)}, -v{t(5)}, v{t(6)}, v{t(4)}           ; r
    v_cvt_i32_f32 v{t(5)}, v{t(5)}                  ; q
    v_mul_f32 v{t(6)}, v{t(4)}, v{t(4)}                 ; z
    v_mov_b32 v{t(7)}, {f2u(-1.9515295891e-4):#x}
    v_mov_b32 v{t(8)}, {f2u(8.3321608736e-3):#x}
    v_fma_f32 v{t(7)}, v{t(7)}, v{t(6)}, v{t(8)}
    v_mov_b32 v{t(8)}, {f2u(-1.6666654611e-1):#x}
    v_fma_f32 v{t(7)}, v{t(7)}, v{t(6)}, v{t(8)}
    v_mul_f32 v{t(7)}, v{t(7)}, v{t(6)}
    v_fma_f32 v{t(7)}, v{t(7)}, v{t(4)}, v{t(4)}            ; sin r
    v_mov_b32 v{t(8)}, {f2u(2.443315711809948e-5):#x}
    v_mov_b32 v{t(9)}, {f2u(-1.388731625493765e-3):#x}
    v_fma_f32 v{t(8)}, v{t(8)}, v{t(6)}, v{t(9)}
    v_mov_b32 v{t(9)}, {f2u(4.166664568298827e-2):#x}
    v_fma_f32 v{t(8)}, v{t(8)}, v{t(6)}, v{t(9)}
    v_mul_f32 v{t(8)}, v{t(8)}, v{t(6)}
    v_fma_f32 v{t(8)}, v{t(8)}, v{t(6)}, 1.0
    v_fma_f32 v{t(8)}, v{t(6)}, -0.5, v{t(8)}           ; cos r
    v_and_b32 v{t(9)}, 1, v{t(5)}
    v_cmp_eq_u32 vcc, 1, v{t(9)}
    v_cndmask_b32 v{t(10)}, v{t(7)}, v{t(8)}, vcc
    v_cndmask_b32 v{t(11)}, v{t(8)}, v{t(7)}, vcc
    v_lshlrev_b32 v{t(9)}, 30, v{t(5)}
    v_and_b32 v{t(9)}, 0x80000000, v{t(9)}
    v_xor_b32 v{t(10)}, v{t(10)}, v{t(9)}                 ; sin b
    v_add_u32 v{t(9)}, 1, v{t(5)}
    v_lshlrev_b32 v{t(9)}, 30, v{t(9)}
    v_and_b32 v{t(9)}, 0x80000000, v{t(9)}
    v_xor_b32 v{t(11)}, v{t(11)}, v{t(9)}                 ; cos b
    v_mul_f32 v{t(12)}, v{t(3)}, v{t(11)}
    v_mul_f32 v{t(13)}, v{t(3)}, v{t(10)}
    v_lshrrev_b32 v4, 5, v0
    v_lshlrev_b32 v4, 8, v4
    v_lshl_add_u32 v4, v14, 4, v4
    v_and_b32 v8, 1, v15
    v_lshl_add_u32 v4, v8, 3, v4
    v_add_u32 v4, {L_TAB}, v4
    ds_write_b64 v4, v[{t(12)}:{t(13)}]
    """)
    P = {1: t(12)}
    for k in range(1, 8):
        P[1 << k] = t(14 + 2 * k)
        cplx_sq(a, P[1 << k], P[1 << (k - 1)], t(30))
        ent = {2: 2, 3: 3, 4: 5, 5: 6, 6: 8, 7: 9}.get(k)
        if ent is not None: a(f"ds_write_b64 v4, v[{P[1<<k]}:{P[1<<k]+1}] offset:{ent*2048}")
    cmul_acc(a, t(32), P[4], P[8], None); a(f"ds_write_b64 v4, v[{t(32)}:{t(33)}] offset:{4*2048}")
    cmul_acc(a, t(34), P[16], P[32], None); a(f"ds_write_b64 v4, v[{t(34)}:{t(35)}] offset:{7*2048}")
    a(f"""
    v_add_f32 v{t(4)}, -1.0, v{t(12)}                ; Lr-1
    v_mul_f32 v{t(5)}, v{t(13)}, v{t(1)}
    v_fma_f32 v{t(5)}, v{t(4)}, v{t(0)}, v{t(5)}
    v_mul_f32 v{t(6)}, v{t(4)}, v{t(1)}
    v_fma_f32 v{t(6)}, v{t(13)}, v{t(0)}, -v{t(6)}
    v_mul_f32 v{t(7)}, v{t(1)}, v{t(1)}
    v_fma_f32 v{t(7)}, v{t(0)}, v{t(0)}, v{t(7)}            ; den
    v_rcp_f32 v{t(8)}, v{t(7)}
    v_fma_f32 v{t(9)}, -v{t(7)}, v{t(8)}, 2.0
    v_mul_f32 v{t(8)}, v{t(8)}, v{t(9)}
    v_mul_f32 v{t(14)}, v{t(5)}, v{t(8)}
    v_mul_f32 v{t(15)}, v{t(6)}, v{t(8)}
    ds_write_b64 v4, v[{t(14)}:{t(15)}] offset:2048
    KF_ntab:
    """)
    stamp(a, 28)
    def sto(st): return 8192 + st * 2048 if st < 4 else (st - 4) * 2048
    def dma_piece(st, i):
        base = sto(st)
        if i == 0:
            a(f"""
            s_add_u32 m0, s52, {base}
            s_mul_i32 s49, s{64+st}, 1792
            buffer_load_dwordx4 v{VW}, s[12:15], s49 offen lds
            """)
        else:
            a(f"""
            s_mul_i32 s49, s{64+st}, 1792
            s_add_u32 m0, s52, {base + 1024}
            s_add_u32 s49, s49, {4 * 3584}
            buffer_load_dwordx4 v{VW}, s[12:15], s49 offen lds
            """)
        vm.issue(("dma", st), 1)
    def arrive(word, reg):
        a(f"""
        v_mov_b32 v8, {L_CNT + word}
        v_mov_b32 v9, 1
        s_mov_b64 exec, 1
        ds_add_rtn_u32 v{reg}, v8, v9
        s_mov_b64 exec, -1
        """)
    def setflag(w, sreg, label, local):
        a(f"""
        s_cmp_lg_u32 s34, {w}
        s_cbranch_scc1 {label}
        v_mov_b32 v9, 1
        v_mov_b32 v8, 0
        s_mov_b64 exec, 1
        """)
        if local: dual([f"buffer_store_dword v9, v8, s[16:19], {sreg} offen"])
        else: a(f"buffer_store_dword v9, v8, s[16:19], {sreg} offen sc1")
        a(f"s_mov_b64 exec, -1\n{label}:")
    S1, S2 = TM, TM + 2
    a("s_mov_b32 s53, 0x3f803f80")
    def bdma(s):
        a(f"""
        s_add_u32 m0, s52, {s * 1024}
        s_nop 0
        buffer_load_dwordx4 v{VB}, s[8:11], s{64+s} offen lds
        """)
        vm.issue("bdma", 1)
    def xread(c):
        a(f"s_waitcnt vmcnt({vm.after(('x', c))})")
        for h in range(2):
            r = X + (c * 2 + h) * 4
            a(f"ds_read_b128 v[{r}:{r+3}], v{VXR+h} offset:{c*2048}")
    xread(0)
    for c in range(8):
        if c < 7: xread(c + 1)
        stamp(a, 20 + c)
        a(f"s_waitcnt lgkmcnt({2 if c < 7 else 0})")
        if c < 4:
            bdma(2 * c); bdma(2 * c + 1)
        else:
            dma_piece(c - 4, 0); dma_piece(c - 4, 1)
        if c < len(fillers): a(fillers[c])
        if c == env("ARC", 5):
            a(f"""
            s_cmp_lg_u32 s34, 5
            s_cbranch_scc1 KF_narr
            s_cmp_lg_u32 s101, 0
            s_cselect_b32 s48, 0x30, 0x20
            s_or_b32 s48, s48, s59
            v_mov_b32 v9, s48
            v_mov_b32 v8, s2
            s_waitcnt vmcnt({vm.after('clr')})
            s_mov_b64 exec, 1
            buffer_store_byte v9, v8, s[20:23], 0 offen sc1
            s_mov_b64 exec, -1
            KF_narr:
            """)
        for d in range(8):
            x = X + c * 8 + d
            s1 = S1 + (d & 1); s2 = S2 + (d & 1)
            first = (c == 0 and d < 2)
            a(f"v_dot2_f32_bf16 v{s1}, v{x}, s53, {'0' if first else 'v%d' % s1}")
            a(f"v_dot2_f32_bf16 v{s2}, v{x}, v{x}, {'0' if first else 'v%d' % s2}")
    stamp(a, 2)
    a(f"""
    s_waitcnt vmcnt({vm.after('w2r')})
    ds_write_b128 v{VSC}, v[{W2R}:{W2R+3}]
    ds_read_b64_tr_b16 v[{W2R}:{W2R+1}], v{VSC+1}
    ds_read_b64_tr_b16 v[{W2R+2}:{W2R+3}], v{VSC+1} offset:512
    s_bfe_u32 s48, s100, 0x20003
    s_lshl_b32 s48, s48, 18
    s_lshl_b32 s49, s63, 17
    s_add_u32 s48, s48, s49
    s_bfe_u32 s49, s100, 0x20001
    s_lshl_b32 s49, s49, 15
    s_add_u32 s48, s48, s49
    s_and_b32 s49, s100, 1
    s_lshl_b32 s49, s49, 13
    s_add_u32 s48, s48, s49
    s_add_u32 s48, s48, s51
    s_add_u32 s48, s48, {WS_CF}
    s_add_u32 s49, s48, 16384
    """)
    for e in range(4): a(f"v_mov_b32 v{CRR+8+e}, v{CRR+e}")
    for e in range(4): a(f"v_mov_b32_dpp v{CRR+e}, v{CRR+4+e} row_ror:8 row_mask:0xf bank_mask:0xc")
    for e in range(4): a(f"v_mov_b32_dpp v{CRR+4+e}, v{CRR+8+e} row_ror:8 row_mask:0xf bank_mask:0x3")
    dual([f"buffer_store_dwordx4 v[{CRR}:{CRR+3}], v1, s[16:19], s48 offen", f"buffer_store_dwordx4 v[{CRR+4}:{CRR+7}], v1, s[16:19], s49 offen"])
    vm.issue("cst", 2)
    a(f"""
    s_waitcnt lgkmcnt(0)
    buffer_store_dwordx4 v[{W2R}:{W2R+3}], v1, s[16:19], s55 offen sc1
    """)
    vm.issue("sts", 1)
    stamp(a, 29)
    Qs = TM + 8
    a(f"""
    v_add_f32 v{Qs}, v{S1}, v{S1+1}
    v_add_f32 v{Qs+1}, v{S2}, v{S2+1}
    """)
    for op in ("v_permlane16_swap_b32", "v_permlane32_swap_b32"):
        a(f"""
        v_mov_b32 v{Qs+2}, v{Qs}
        v_mov_b32 v{Qs+3}, v{Qs+1}
        {op} v{Qs}, v{Qs+2}
        {op} v{Qs+1}, v{Qs+3}
        v_add_f32 v{Qs}, v{Qs}, v{Qs+2}
        v_add_f32 v{Qs+1}, v{Qs+1}, v{Qs+3}
        """)
    a(f"""
    v_mul_f32 v{Qs}, {f2u(1/512):#x}, v{Qs}
    v_mul_f32 v{Qs+1}, {f2u(1/512):#x}, v{Qs+1}
    v_fma_f32 v{Qs+1}, -v{Qs}, v{Qs}, v{Qs+1}
    v_max_f32 v{Qs+1}, 0, v{Qs+1}
    v_cvt_pk_bf16_f32 v{Qs+2}, v{Qs}, v{Qs+1}
    v_lshlrev_b32 v{MR}, 16, v{Qs+2}
    v_and_b32 v{Qs+1}, 0xffff0000, v{Qs+2}
    v_xor_b32 v{NM}, 0x80000000, v{MR}
    v_add_f32 v{Qs+1}, {f2u(1e-5):#x}, v{Qs+1}
    v_mov_b32 v{NM+1}, v{NM}
    v_cvt_pk_bf16_f32 v{Qs+1}, v{Qs+1}, v{Qs+1}
    v_mov_b32 v{NM+2}, v{NM}
    v_lshlrev_b32 v{Qs+1}, 16, v{Qs+1}
    v_mov_b32 v{NM+3}, v{NM}
    v_sqrt_f32 v{Qs+1}, v{Qs+1}
    v_cvt_pk_bf16_f32 v{Qs+1}, v{Qs+1}, v{Qs+1}
    v_lshlrev_b32 v{Qs+1}, 16, v{Qs+1}
    v_rcp_f32 v{Qs+2}, v{Qs+1}
    v_fma_f32 v{Qs+3}, -v{Qs+1}, v{Qs+2}, 2.0
    v_mul_f32 v{MR+1}, v{Qs+2}, v{Qs+3}
    """)
    def unpack(f):
        x0 = X + f * 4
        T = TM + 8 * (f & 1)
        return [f"v_mfma_f32_16x16x32_bf16 v[{T}:{T+3}], v[{SELR+2}:{SELR+5}], v[{x0}:{x0+3}], v[{NM}:{NM+3}]",
                f"v_mfma_f32_16x16x32_bf16 v[{T+4}:{T+7}], v[{SELR}:{SELR+3}], v[{x0}:{x0+3}], v[{NM}:{NM+3}]"]
    def norm_valu(f):
        x0 = X + f * 4
        T = TM + 8 * (f & 1)
        o = []
        for e in range(8): o.append(f"v_cvt_pk_bf16_f32 v{T+e}, 0, v{T+e}")
        for e in range(8): o.append(f"v_mul_f32 v{T+e}, v{T+e}, v{MR+1}")
        for d in range(4): o.append(f"v_cvt_pk_bf16_f32 v{x0+d}, v{T+2*d}, v{T+2*d+1}")
        return o
    for l in unpack(0) + unpack(1): a(l)
    a(f"""
    s_lshl_b32 s48, s34, 7
    v_lshl_add_u32 v4, v14, 3, s48
    v_add_u32 v4, {L_ST}, v4
    ds_write_b64 v4, v[{MR}:{MR+1}]
    v_lshl_add_u32 v4, v15, 11, v{VT}       ; + g*2048
    s_lshl_b32 s48, s35, 11
    v_add_u32 v5, s48, v{VT}
    """)
    for l in norm_valu(0): a(l)
    for l in unpack(2): a(l)
    stamp(a, 3)
    a(f"""
    s_waitcnt vmcnt({vm.after('bdma')}) lgkmcnt(0)
    s_barrier
    """)
    def breads(j):
        pos, ks = j >> 1, j & 1
        b = BB + (j & 1) * 16
        return [f"ds_read_b128 v[{b+4*q}:{b+4*q+3}], v{VA + ks + 2 * (q >> 1)} offset:{pos * 1024 + (q & 1) * 32768}" for q in range(4)]
    for l in breads(0): a(l)
    lg = Cnt()
    lg.tags[("b", 0)] = 0
    a(f"""
    ds_read_b128 v[{LAM}:{LAM+3}], v{VT}
    ds_read_b128 v[{COEF}:{COEF+3}], v{VT} offset:2048
    ds_read_b128 v[{L4}:{L4+3}], v{VT} offset:4096
    ds_read_b128 v[{L16}:{L16+3}], v{VT} offset:{5*2048}
    ds_read_b128 v[{GG}:{GG+3}], v4 offset:2048
    ds_read_b128 v[{WA}:{WA+3}], v5 offset:{4*2048}
    ds_read_b128 v[{WB}:{WB+3}], v{VT} offset:{8*2048}
    """)
    lg.issue(None, 7)
    for l in norm_valu(1): a(l)
    stamp(a, 4)
    ARJ = env("ARJ", 2)
    for j in range(16):
        b = BB + (j & 1) * 16
        a(f"s_waitcnt lgkmcnt({lg.after(('b', j))})")
        main = []
        for q in range(4):
            ac = ACCB + 4 * q
            c = "0" if j == 0 else f"v[{ac}:{ac+3}]"
            main.append(f"v_mfma_f32_16x16x32_bf16 v[{ac}:{ac+3}], v[{X+4*j}:{X+4*j+3}], v[{b+4*q}:{b+4*q+3}], {c}")
        if j + 3 < 16:
            un = unpack(j + 3)
            main = [main[0], main[1], main[2], main[3], un[0], un[1]]
        nr = breads(j + 1) if j < 15 else []
        va = norm_valu(j + 2) if j + 2 < 16 else []
        interleave(a, main, nr + va, lead=0)
        lg.issue(("b", j + 1), len(nr))
        if j == 7:
            a(f"s_waitcnt vmcnt({vm.after('cst')})\ns_barrier")
            setflag(3, "s58", "KF_nfc", True)
            dma_piece(4, 0); dma_piece(4, 1)
        if j == 8:
            dma_piece(5, 0); dma_piece(5, 1)
        if j == 13:
            a(f"""
            s_cmp_lg_u32 s34, 7
            s_cbranch_scc1 KF_np0
            buffer_load_dword v243, v242, s[20:23], 0 offen sc1
            KF_np0:
            v_cmp_eq_u32 vcc, 0, v15
            """)
            for e in range(4): a(f"v_cndmask_b32 v{GG+e}, v{GG+e}, {'1.0' if e % 2 == 0 else '0'}, vcc")
            a("v_and_b32 v4, 1, v15\nv_cmp_eq_u32 vcc, 1, v4")
            for e in range(4): a(f"v_cndmask_b32 v{G1+e}, {'1.0' if e % 2 == 0 else '0'}, v{L4+e}, vcc")
            a("s_cmp_eq_u32 s35, 0\ns_cselect_b64 vcc, -1, 0")
            for e in range(4): a(f"v_cndmask_b32 v{WA+e}, v{WA+e}, {'1.0' if e % 2 == 0 else '0'}, vcc")
            a("s_cmp_eq_u32 s36, 0\ns_cselect_b64 vcc, -1, 0")
            for e in range(4): a(f"v_cndmask_b32 v{WB+e}, v{WB+e}, {'1.0' if e % 2 == 0 else '0'}, vcc")
        if j == 14:
            for ct in range(2): cmul_acc(a, Q + 2 * ct, WA + 2 * ct, WB + 2 * ct, None)
            for ct in range(2): cmul_acc(a, MM + 2 * ct, Q + 2 * ct, GG + 2 * ct, None)
    stamp(a, 5)
    for ct in range(2):
        cf = COEF + 2 * ct
        for r in range(4):
            u = U + ct * 8 + 2 * r
            re = ACCB + (0 * 2 + ct) * 4 + r
            im = ACCB + (1 * 2 + ct) * 4 + r
            a(f"""
            v_mul_f32 v{u}, v{cf+1}, v{im}
            v_mul_f32 v{u+1}, v{cf+1}, v{re}
            v_fma_f32 v{u}, v{cf}, v{re}, -v{u}
            v_fma_f32 v{u+1}, v{cf}, v{im}, v{u+1}
            """)
    for r in range(1, 4):
        for ct in range(2):
            c = U + ct * 8 + 2 * r
            cmul_acc(a, c, c - 2, LAM + 2 * ct, c)
    TT, CC, E8, X1, SS = 88, 92, 96, 100, 148
    def e4(i): return U + (i >> 1) * 8 + 6 + (i & 1)
    for i in range(4): a(f"v_mov_b32 v{TT+i}, 0\nv_mov_b32 v{CC+i}, v{e4(i)}")
    for i in range(4): a(f"v_permlane16_swap_b32 v{TT+i}, v{CC+i}")
    for ct in range(2): cmul_acc(a, E8 + 2 * ct, TT + 2 * ct, L4 + 2 * ct, e4(2 * ct))
    for i in range(4): a(f"v_mov_b32 v{X1+i}, v{E8+i}\nv_mov_b32 v{SS+i}, 0")
    for i in range(4): a(f"v_permlane16_swap_b32 v{X1+i}, v{E8+i}")
    for i in range(4): a(f"v_permlane32_swap_b32 v{SS+i}, v{E8+i}")
    for ct in range(2): cmul_acc(a, Q + 2 * ct, SS + 2 * ct, G1 + 2 * ct, TT + 2 * ct)
    for ct in range(2): cmul_acc(a, G1 + 2 * ct, Q + 2 * ct, L4 + 2 * ct, e4(2 * ct))
    E16 = G1
    a(f"""
    s_lshl_b32 s48, s34, 8
    s_add_u32 s48, s48, {L_E16}
    v_lshl_add_u32 v4, v14, 4, s48
    s_mov_b32 s48, 0
    s_mov_b32 s49, 0xffff0000
    s_mov_b64 exec, s[48:49]
    ds_write_b128 v4, v[{E16}:{E16+3}]
    s_mov_b64 exec, -1
    v_subrev_u32 v12, {7 * 256}, v4         ; e16[w-7]
    """)
    stamp(a, 6)
    a(f"""
    s_cmp_lg_u32 s34, 7
    s_cbranch_scc1 KF_nck
    s_mov_b32 s50, 1
    s_movk_i32 s61, {SPIN}
    s_mov_b32 s49, 0x20202020
    s_cmp_lg_u32 s101, 0
    s_cselect_b32 s49, 0x10101010, s49
    s_waitcnt vmcnt(0)
    KF_ckl:
    v_and_b32 v4, s49, v243
    v_cmp_ne_u32 vcc, s49, v4
    s_cbranch_vccz KF_cka
    s_sub_u32 s61, s61, 1
    s_cbranch_scc1 KF_ckd
    s_sleep 1
    buffer_load_dword v243, v242, s[20:23], 0 offen sc1
    s_waitcnt vmcnt(0)
    s_branch KF_ckl
    KF_cka:
    s_cmp_lg_u32 s101, 0
    s_cbranch_scc1 KF_ckd
    v_bfe_u32 v4, v243, 0, 4
    v_bfe_u32 v5, v243, 8, 4
    v_bfe_u32 v6, v243, 16, 4
    v_bfe_u32 v7, v243, 24, 4
    v_lshlrev_b32 v4, v4, 1
    v_lshlrev_b32 v5, v5, 1
    v_lshlrev_b32 v6, v6, 1
    v_lshlrev_b32 v7, v7, 1
    v_or3_b32 v4, v4, v5, v6
    v_or_b32 v4, v4, v7
    v_or_b32_dpp v4, v4, v4 quad_perm:[1,0,3,2] row_mask:0xf bank_mask:0xf
    v_cmp_ne_u32 vcc, 0x1fe, v4
    s_cbranch_vccz KF_ckd
    v_mov_b32 v4, 0
    v_mov_b32 v5, 0
    s_mov_b32 s61, 0
    """)
    for j in range(4):
        a(f"""
        v_bfe_u32 v8, v243, {8*j}, 4
        v_cmp_eq_u32 s[48:49], s59, v8
        v_add_u32 v9, {j}, v242
        v_cmp_gt_u32 vcc, s2, v9
        v_lshlrev_b32 v8, 3, v8
        v_subrev_u32 v8, 8, v8
        v_lshlrev_b64 v[6:7], v8, 1
        v_add_u32 v4, v4, v6
        v_add_u32 v5, v5, v7
        s_and_b64 s[48:49], s[48:49], vcc
        s_bcnt1_i32_b64 s48, s[48:49]
        s_add_u32 s61, s61, s48
        """)
    for r in (1, 2, 4, 8):
        a(f"v_add_u32_dpp v4, v4, v4 row_ror:{r} row_mask:0xf bank_mask:0xf\nv_add_u32_dpp v5, v5, v5 row_ror:{r} row_mask:0xf bank_mask:0xf")
    for op in ("v_permlane16_swap_b32", "v_permlane32_swap_b32"):
        a(f"""
        v_mov_b32 v6, v4
        v_mov_b32 v7, v5
        {op} v4, v6
        {op} v5, v7
        v_add_u32 v4, v4, v6
        v_add_u32 v5, v5, v7
        """)
    a(f"""
    v_readfirstlane_b32 s48, v4
    v_readfirstlane_b32 s49, v5
    s_xor_b32 s48, s48, 0x20202020
    s_xor_b32 s49, s49, 0x20202020
    s_or_b32 s48, s48, s49
    s_lshl_b32 s49, s3, 5
    s_add_u32 s49, s49, s61
    s_or_b32 s50, s49, 0x100
    s_cmp_lg_u32 s48, 0
    s_cselect_b32 s50, 2, s50
    KF_ckd:
    v_mov_b32 v8, s50
    v_mov_b32 v4, {L_CNT}
    ds_write_b32 v4, v8
    KF_nck:
    v_mov_b32 v3, {L_CNT}
    s_waitcnt vmcnt({vm.after(('dma', 3))}) lgkmcnt(0)
    s_barrier
    ds_read_b32 v3, v3
    """)
    stamp(a, 7)
    EBL = [88, 92, 96, 100, 84, 4, 8]
    for j in range(7): a(f"ds_read_b128 v[{EBL[j]}:{EBL[j]+3}], v12 offset:{j*256}")
    lg = Cnt()
    def fread(i):
        k, p = divmod(i, 7)
        st, ks = k >> 1, k & 1
        b = BF + (i % 8) * 4
        a(f"ds_read_b64_tr_b16 v[{b}:{b+1}], v{VF+7*ks+p} offset:{sto(st)}")
        a(f"ds_read_b64_tr_b16 v[{b+2}:{b+3}], v{VF+7*ks+p} offset:{sto(st)+1024}")
        lg.issue(("f", i), 2)
    a("s_waitcnt lgkmcnt(7)\nv_readfirstlane_b32 s48, v3\ns_cmp_lg_u32 s48, 1\ns_cbranch_scc1 KF_restart")
    lg.issue("p2b", 7)
    for i in range(4): fread(i)
    dma_piece(6, 0); dma_piece(6, 1)
    for i in range(4, 7): fread(i)
    dma_piece(7, 0); dma_piece(7, 1)
    WF = {}
    def wload(i, q, reg):
        a(f"buffer_load_dwordx4 v[{reg}:{reg+3}], v{VW2}, s[16:19], s{RO+i} offen offset:{q*1024}")
        vm.issue(("w", i)); WF[(i, q)] = reg
    def cload(b, ri):
        reg = X + 8 * b + 4 * ri
        a(f"buffer_load_dwordx4 v[{reg}:{reg+3}], v{VC+ri}, s[16:19], s{SCB+b} offen")
        vm.issue(("c", b))
    class L:
        def __init__(s): s.l = []
        def __call__(s, t_): s.l += [x.strip() for x in t_.strip().split("\n") if x.strip()]
    a(f"s_waitcnt lgkmcnt({min(15, lg.after('p2b'))})")
    for j in range(1, 7):
        for ct in range(2): cmul_acc(a, EBL[j] + 2 * ct, EBL[j - 1] + 2 * ct, L16 + 2 * ct, EBL[j] + 2 * ct)
    for ct in range(2): cmul_acc(a, E16 + 2 * ct, EBL[6] + 2 * ct, L16 + 2 * ct, E16 + 2 * ct)
    a(f"""
    s_cmp_lg_u32 s34, 7
    s_cbranch_scc1 KF_npub
    v_lshlrev_b32 v3, 4, v14
    s_mov_b32 s48, 0
    s_mov_b32 s49, 0xffff0000
    s_mov_b64 exec, s[48:49]
    buffer_store_dwordx4 v[{E16}:{E16+3}], v3, s[16:19], s47 offen sc1
    s_mov_b64 exec, -1
    KF_npub:
    """)
    vm.tags["dbg"] = vm.n
    for ct in range(2): cmul_acc(a, Q + 2 * ct, EBL[6] + 2 * ct, GG + 2 * ct, Q + 2 * ct)
    PC, PH, PL, PT = 192, 200, 208, 216
    def psf_valu():
        o = L()
        for ct in range(2): cmul_acc(o, PC + 2 * ct, PT + 2 * ct, MM + 2 * ct, Q + 2 * ct)
        for r in range(4):
            for ct in range(2):
                src = PC + (r & 1) * 4 + 2 * ct; dst = PC + ((r + 1) & 1) * 4 + 2 * ct
                cmul_acc(o, dst, src, LAM + 2 * ct, None)
                u = U + ct * 8 + 2 * r
                o(f"v_pk_add_f32 v[{u}:{u+1}], v[{u}:{u+1}], v[{dst}:{dst+1}]")
        return o.l
    def psf_split(ri):
        o = L(); ng = "-" if ri else ""
        for ct in range(2):
            h = PH + ri * 4 + ct * 2; l = PL + ri * 4 + ct * 2
            u = lambda r: U + ct * 8 + 2 * r + ri
            for pr in range(2):
                o(f"v_cvt_pk_bf16_f32 v{h+pr}, {ng}v{u(2*pr)}, {ng}v{u(2*pr+1)}")
            for pr in range(2):
                o(f"v_lshlrev_b32 v{PT+2*pr}, 16, v{h+pr}\nv_and_b32 v{PT+2*pr+1}, 0xffff0000, v{h+pr}")
            o(f"ds_write_b64 v3, v[{h}:{h+1}] offset:{ct*512}")
            for r in range(4): o(f"v_sub_f32 v{PT+r}, {ng}v{u(r)}, v{PT+r}")
            for pr in range(2): o(f"v_cvt_pk_bf16_f32 v{l+pr}, v{PT+2*pr}, v{PT+2*pr+1}")
            o(f"ds_write_b64 v3, v[{l}:{l+1}] offset:{1024 + ct*512}")
        return o.l
    HO = [PC, PC + 4, U, U + 4]
    def psf_tr(ri):
        o = []
        for hl in range(2):
            d = HO[ri * 2 + hl]
            o.append(f"ds_read_b64_tr_b16 v[{d}:{d+1}], v12 offset:{hl*1024}")
            o.append(f"ds_read_b64_tr_b16 v[{d+2}:{d+3}], v13 offset:{hl*1024}")
        return o
    def psf_addr():
        o = L()
        o(f"""
        v_lshlrev_b32 v4, 4, v14
        v_add_u32 v4, {L_HIN}, v4
        ds_read_b128 v[{PT}:{PT+3}], v4
        s_lshl_b32 s48, s34, 11
        s_add_u32 s48, s48, {L_TAB}
        v_lshrrev_b32 v3, 2, v14
        v_xor_b32 v3, v3, v15
        v_lshlrev_b32 v3, 3, v3
        v_lshl_add_u32 v3, v14, 5, v3
        v_add_u32 v3, s48, v3
        v_bfe_u32 v12, v2, 2, 2
        v_lshl_add_u32 v12, v15, 3, v12
        v_lshlrev_b32 v13, 1, v15
        v_and_b32 v13, 3, v13
        v_and_b32 v4, 3, v2
        v_xor_b32 v13, v13, v4
        v_lshlrev_b32 v13, 3, v13
        v_lshl_add_u32 v12, v12, 5, v13
        v_add_u32 v12, s48, v12
        v_add_u32 v13, 128, v12
        v_xor_b32 v13, 8, v13
        """)
        return o.l
    EL, R7, L128, L512, HG = 192, 208, 4, 8, 216
    def w7_eload(first):
        o = ""
        for j in range(4):
            o += f"buffer_load_dwordx4 v[{EL+4*j}:{EL+4*j+3}], v{244+j}, s[16:19], s50 offen sc1\n"
        if not first: return o
        a(f"""
        s_cmp_lg_u32 s34, 7
        s_cbranch_scc1 KF_nel
        s_sub_u32 s48, s32, 1
        v_sub_u32 v8, s48, v15                  ; rt - 1 - g
        """)
        for j in range(4):
            a(f"""
            v_subrev_u32 v9, {4*j}, v8
            v_cmp_gt_i32 vcc, 0, v9
            v_lshlrev_b32 v9, 8, v9
            v_lshl_add_u32 v9, v14, 4, v9
            v_mov_b32 v10, {WS_SIZE}
            v_cndmask_b32 v{244+j}, v9, v10, vcc
            """)
        a(f"""
        s_lshl_b32 s50, s33, 12
        s_add_u32 s50, s50, {WS_E}
        {o}
        s_and_b32 s48, s33, 7
        s_lshl_b32 s48, s48, 8
        s_add_u32 s48, s48, {L_TAB + 9 * 2048}
        v_lshl_add_u32 v8, v14, 4, s48
        ds_read_b128 v[{L128}:{L128+3}], v8
        s_waitcnt lgkmcnt(0)
        """)
        for ct in range(2): cplx_sq(a, R7 + 2 * ct, L128 + 2 * ct, 3)
        for ct in range(2): cplx_sq(a, L512 + 2 * ct, R7 + 2 * ct, 3)
        a("v_and_b32 v3, 1, v15\nv_cmp_eq_u32 vcc, 1, v3")
        for e in range(4): a(f"v_cndmask_b32 v{L128+e}, {'1.0' if e % 2 == 0 else '0'}, v{L128+e}, vcc")
        a("v_cmp_lt_u32 vcc, 1, v15")
        for e in range(4): a(f"v_cndmask_b32 v{R7+e}, {'1.0' if e % 2 == 0 else '0'}, v{R7+e}, vcc")
        for ct in range(2): cmul_acc(a, HG + 2 * ct, L128 + 2 * ct, R7 + 2 * ct, None)
        a("KF_nel:")
        vm.tags["e"] = vm.n
    def w7_horner():
        a(f"""
        s_cmp_lg_u32 s34, 7
        s_cbranch_scc1 KF_nho
        s_movk_i32 s61, {SPIN}
        s_waitcnt vmcnt({vm.after('e')})
        KF_hol:
        """)
        a(f"v_cmp_eq_u32 vcc, -1, v{EL}")
        for i in range(1, 16):
            a(f"v_cmp_eq_u32 s[48:49], -1, v{EL+i}\ns_or_b64 vcc, vcc, s[48:49]")
        a(f"""
        s_cmp_eq_u64 vcc, 0
        s_cbranch_scc1 KF_hod
        s_sub_u32 s61, s61, 1
        s_cbranch_scc1 KF_hod
        s_sleep 1
        {w7_eload(False)}
        s_waitcnt vmcnt(0)
        s_branch KF_hol
        KF_hod:
        """)
        for j in (2, 1, 0):
            for ct in range(2): cmul_acc(a, EL + 4 * j + 2 * ct, EL + 4 * (j + 1) + 2 * ct, L512 + 2 * ct, EL + 4 * j + 2 * ct)
        R = R7
        for ct in range(2): cmul_acc(a, R + 2 * ct, EL + 2 * ct, HG + 2 * ct, None)
        for op in ("v_permlane16_swap_b32", "v_permlane32_swap_b32"):
            for i in range(4): a(f"v_mov_b32 v{R+4+i}, v{R+i}")
            for i in range(4): a(f"{op} v{R+i}, v{R+4+i}")
            for i in range(4): a(f"v_add_f32 v{R+i}, v{R+i}, v{R+4+i}")
        a(f"""
        v_add_u32 v8, {L_HIN}, v1
        s_mov_b64 exec, 0xffff
        ds_write_b128 v8, v[{R}:{R+3}]
        s_mov_b64 exec, -1
        s_waitcnt lgkmcnt(0)
        KF_nho:
        """)
    def signal(reg, sreg, label):
        a(f"""
        v_readfirstlane_b32 s48, v{reg}
        s_cmp_lg_u32 s48, 7
        s_cbranch_scc1 {label}
        v_mov_b32 v9, 1
        v_mov_b32 v8, 0
        s_mov_b64 exec, 1
        """)
        dual([f"buffer_store_dword v9, v8, s[16:19], {sreg} offen"])
        a(f"s_mov_b64 exec, -1\n{label}:")
    def poll(reg, addr, sreg, label, tag):
        a(f"""
        s_movk_i32 s61, {SPIN}
        s_waitcnt vmcnt({vm.after(tag)})
        {label}l:
        v_cmp_ne_u32 vcc, 1, v{reg}
        s_cbranch_vccz {label}d
        s_sub_u32 s61, s61, 1
        s_cbranch_scc1 {label}d
        s_sleep 1
        buffer_load_dword v{reg}, v{addr}, s[16:19], {sreg} offen sc1
        s_waitcnt vmcnt(0)
        s_branch {label}l
        {label}d:
        """)
    EI, HI, PSN = env("EI", 28), env("HB", 63), env("PSN", 24)
    ev = {}
    def add(i, f): ev.setdefault(i, []).append(f)
    W01 = [80, 84, 88, 92, 96, 100, 248, 244]
    def fc_issue():
        a(f"""
        v_and_b32 v5, 7, v2
        v_lshlrev_b32 v5, 2, v5
        s_lshr_b32 s48, s100, 5
        s_lshl_b32 s48, s48, 2
        s_and_b32 s49, s33, 3
        s_add_u32 s48, s48, s49
        s_lshl_b32 s48, s48, 7
        s_add_u32 s55, s48, {WS_FC}
        buffer_load_dword v11, v5, s[16:19], s55 offen sc1
        """)
        vm.issue("pc")
    add(0, fc_issue)
    add(14, lambda: poll(11, 5, "s55", "KF_pc", "pc"))
    def fs_set():
        a(f"s_lshl_b32 s49, s2, 2\ns_add_u32 s49, s49, {WS_FS}")
        setflag(3, "s49", "KF_nfs", False)
    add(48, fs_set)
    for b in range(7):
        for ri in range(2): add((2 * b + 2) * 7 + 1 + 3 * ri, (lambda b=b, ri=ri: cload(b, ri)))
    add(EI, lambda: w7_eload(True))
    add(HI, w7_horner)
    items = psf_addr() + ["@w"] + psf_valu() + psf_split(0) + psf_tr(0) + ["#t0"] + psf_split(1) + psf_tr(1) + ["#t1", "@s"]
    for k, l in enumerate(items): add(HI + 1 + (k * PSN) // len(items), l)
    AR4 = min(110, HI + PSN + env("A4", 8))
    def h_arrive():
        a(f"s_waitcnt vmcnt({vm.after('hst')})"); arrive(20, 10); lg.issue("ar4")
    add(AR4, h_arrive)
    def h_signal():
        a(f"s_waitcnt lgkmcnt({min(15, lg.after('ar4'))})\ns_add_u32 s49, s37, 4096"); signal(10, "s49", "KF_nf4")
    add(min(111, AR4 + 4), h_signal)
    bars = {48: ("dma", 5), 76: ("dma", 7)}
    for i in range(112):
        k, p = divmod(i, 7)
        if p == 0 and k % 2 == 0: stamp(a, 8 + k // 2)
        b = BF + (i % 8) * 4
        ac = ACC + p * 4
        a(f"s_waitcnt lgkmcnt({min(15, lg.after(('f', i)))})")
        c = "0" if k == 0 else f"v[{ac}:{ac+3}]"
        a(f"v_mfma_f32_16x16x32_bf16 v[{ac}:{ac+3}], v[{b}:{b+3}], v[{X+4*k}:{X+4*k+3}], {c}")
        pre = [f for f in ev.get(i, []) if f is w7_horner]
        for f in pre: f()
        if i in bars: a(f"s_waitcnt vmcnt({vm.after(bars[i])})\ns_barrier")
        elif i == HI: a("s_barrier")
        if i + 7 < 112: fread(i + 7)
        for f in ev.get(i, []):
            if f is w7_horner: continue
            if callable(f): f()
            elif f == "@w": a(f"s_waitcnt lgkmcnt({min(15, lg.after('hin'))})")
            elif f[0] == "#": lg.tags[f[1:]] = lg.n
            elif f == "@s":
                a(f"s_waitcnt lgkmcnt({min(15, lg.after('t1'))})")
                dual([f"buffer_store_dwordx4 v[{HO[kk]}:{HO[kk]+3}], v1, s[16:19], s57 offen offset:{kk*1024}" for kk in range(4)])
                vm.issue("hst", 4)
            else:
                a(f)
                if f.startswith("ds_"):
                    lg.issue("hin" if f"v[{PT}:{PT+3}]" in f else None)
    stamp(a, 17)
    YA, OA, HB = 220, 16, BF
    VH, VP = 12, 6
    a("s_waitcnt lgkmcnt(0)")
    cload(7, 0); cload(7, 1)
    a(f"""
    v_and_b32 v5, 7, v2
    v_lshlrev_b32 v5, 2, v5
    s_add_u32 s55, s39, 4096
    buffer_load_dword v11, v5, s[16:19], s55 offen sc1
    v_min_u32 v242, 27, v2
    s_mul_i32 s48, s63, 28
    v_add_u32 v242, s48, v242
    v_lshlrev_b32 v242, 4, v242
    s_and_b32 s48, s33, 3
    s_lshl_b32 s48, s48, 2
    s_add_u32 s47, s48, {WS_FS}
    buffer_load_dword v243, v242, s[16:19], s47 offen sc1
    s_barrier
    s_lshl_b32 s48, s32, 3
    s_add_u32 s48, s48, s34
    s_mul_i32 s48, s48, {FT}
    s_add_u32 s48, s48, {WS_H1F}
    s_mul_i32 s49, s33, 7
    s_add_u32 s58, s49, s54
    s_lshl_b32 s58, s58, 9
    s_add_u32 s58, s58, s48
    s_add_u32 s59, s49, s56
    s_lshr_b32 s61, s59, 1
    s_lshl_b32 s61, s61, 10
    s_and_b32 s59, s59, 1
    s_lshl_b32 s59, s59, 3
    s_add_u32 s59, s59, s61
    s_add_u32 s59, s59, s48
    s_mov_b32 s53, {f2u(-1.4426950408889634):#x}
    s_bfe_u32 s48, s33, 0x10002             ; rh
    s_lshl_b32 s48, s48, 2
    s_lshl_b32 s49, s32, 3
    s_add_u32 s48, s48, s49
    s_lshr_b32 s49, s34, 1
    s_add_u32 s48, s48, s49
    s_and_b32 s49, s34, 1
    s_lshl_b32 s49, s49, 11
    s_lshl_b32 s50, s48, 16
    s_add_u32 s50, s50, s49
    v_add_u32 v{VH}, s50, v1
    s_mul_i32 s48, s48, {FT}
    s_add_u32 s48, s48, s49
    s_add_u32 s48, s48, s60
    s_add_u32 s48, s48, {WS_H1F}
    v_add_u32 v{VH+1}, s48, v1
    s_lshl_b32 s48, s63, 16
    v_add_u32 v{VP+1}, s48, v1
    v_xor_b32 v{VP}, 65536, v{VP+1}
    """)
    vm.issue("p4"); vm.issue("ps")
    def silu_tile(p, dst):
        ac = ACC + p * 4
        tt = 164 + (p & 1) * 12
        a(f"""
        v_cvt_pk_bf16_f32 v{tt}, v{ac}, v{ac+1}
        v_cvt_pk_bf16_f32 v{tt+1}, v{ac+2}, v{ac+3}
        v_lshlrev_b32 v{tt+4}, 16, v{tt}
        v_and_b32 v{tt+5}, 0xffff0000, v{tt}
        v_lshlrev_b32 v{tt+6}, 16, v{tt+1}
        v_and_b32 v{tt+7}, 0xffff0000, v{tt+1}
        """)
        for r in range(4): a(f"v_mul_f32 v{tt+8+r}, s53, v{tt+4+r}")
        for r in range(4): a(f"v_exp_f32 v{tt+8+r}, v{tt+8+r}")
        for r in range(4): a(f"v_add_f32 v{tt+8+r}, 1.0, v{tt+8+r}")
        for r in range(4): a(f"v_rcp_f32 v{tt+8+r}, v{tt+8+r}")
        for r in range(4): a(f"v_mul_f32 v{tt+4+r}, v{tt+4+r}, v{tt+8+r}")
        a(f"""
        v_cvt_pk_bf16_f32 v{dst}, v{tt+4}, v{tt+5}
        v_cvt_pk_bf16_f32 v{dst+1}, v{tt+6}, v{tt+7}
        """)
    def hdma(i, j):
        if j == 0: a(f"s_add_u32 m0, s52, {sto(i)}\ns_nop 0")
        a(f"buffer_load_dwordx4 v{VH}, s[16:19], s{SHB+i} offen offset:{j*1024} lds")
        vm.issue(("hd", i))
    def h1dma(i, j):
        if j == 0: a(f"s_add_u32 m0, s52, {sto(i)}\ns_nop 0")
        a(f"buffer_load_dwordx4 v{VH+1}, s[16:19], s{RO+i} offen offset:{j*1024} lds")
        vm.issue(("h1d", i))
    P4P = env("P4P", 2)
    H1O = 188
    for pr in range(4):
        if pr == P4P:
            stamp(a, 18)
            poll(11, 5, "s55", "KF_p4", "p4")
            for i in range(8): hdma(i, 0); hdma(i, 1)
            stamp(a, 19)
        o = H1O + 4 * pr
        silu_tile(2 * pr, o)
        if pr < 3: silu_tile(2 * pr + 1, o + 2)
    dual([f"buffer_store_dwordx4 v[{H1O+4*pr}:{H1O+4*pr+3}], v1, s[16:19], s58 offen offset:{pr*1024}" for pr in range(3)]
         + [f"buffer_store_dwordx2 v[{H1O+12}:{H1O+13}], v1, s[16:19], s59 offen"])
    vm.issue("h1s", 4)
    if P4P == 4:
        stamp(a, 18)
        poll(11, 5, "s55", "KF_p4", "p4")
        for i in range(8): hdma(i, 0); hdma(i, 1)
        stamp(a, 19)
    WR = [104 + 4 * i for i in range(7)] + [164 + 4 * i for i in range(6)] + [204 + 4 * i for i in range(4)] + [24, 28, 32]
    seq = []
    for i in range(8):
        for ri in range(2):
            for tp in range(2):
                for tq in range(2):
                    for hl in range(2): seq.append(("y", i, tp, tq, ri, hl))
    for tp in range(2):
        for i in range(7):
            for q in range(4):
                for tq in range(2): seq.append(("o", i, tp, tq, q >> 1, q & 1))
    N = len(seq)
    lg = Cnt()
    def bread(n):
        kind, i, tp, tq, hi, lo = seq[n]
        b = HB + (n % 8) * 4
        a(f"ds_read_b128 v[{b}:{b+3}], v{VP+tp} offset:{(2*tq+hi)*16384 + sto(i) + lo*1024}")
        lg.issue(("f", n))
    A1, P1I, P1C = env("A1", 6), env("P1I", 30), env("P1C", 48)
    ev = {}
    def h1_arrive():
        a(f"s_waitcnt vmcnt({vm.after('h1s')})"); arrive(24, 10); lg.issue("ar1")
    add(A1, h1_arrive)
    def h1_signal():
        a(f"s_waitcnt lgkmcnt({min(15, lg.after('ar1'))})"); signal(10, "s37", "KF_nf1")
    add(A1 + 6, h1_signal)
    def p1_issue():
        a("buffer_load_dword v11, v5, s[16:19], s39 offen sc1"); vm.issue("p1")
    add(P1I, p1_issue)
    add(P1C, lambda: poll(11, 5, "s39", "KF_p1", "p1"))
    WBM = env("WBM", 0)
    def wb_issue():
        a(f"""
        s_cmp_lg_u32 s34, {env("WBW", 6)}
        s_cbranch_scc1 KF_nwb
        s_and_b32 s48, s33, {env("WBK", 7)}
        s_cmp_lg_u32 s48, 0
        s_cbranch_scc1 KF_nwb
        buffer_wbl2 sc1
        KF_nwb:
        """)
    if WBM: add(WBM, wb_issue)
    nxt = P1C + 1
    for i in range(7):
        nxt = max(nxt, 16 * (i + 1) + 1)
        add(nxt, (lambda i=i: (h1dma(i, 0), h1dma(i, 1)))); nxt += 3
    WS0, WSP = env("WS0", 3), env("WSP", 4)
    add(WS0 - 1, lambda: poll(243, 242, "s47", "KF_ps", "ps"))
    WR = W01 + WR
    wl = [(i, q) for i in range(0, 7) for q in range(4)]
    for k, (i, q) in enumerate(wl):
        pos = WS0 + k * WSP
        if WR[k] < 80: pos = max(pos, 16 * ((WR[k] - X) // 8 + 1) + 1)
        add(pos, (lambda i=i, q=q, k=k: wload(i, q, WR[k])))
    XR, DR, PR, ST = 80, 84, 40, 88
    def y_send():
        a(f"""
        s_lshl_b32 s48, s38, 15
        s_lshl_b32 s49, s34, 12
        s_add_u32 s48, s48, s49
        s_add_u32 s58, s48, {WS_OP}
        s_xor_b32 s57, s58, {8 << 15}
        s_lshl_b32 s48, s38, 7
        s_lshl_b32 s49, s34, 2
        s_add_u32 s48, s48, s49
        s_add_u32 s54, s48, {WS_FL + 8192}
        s_xor_b32 s55, s54, {8 << 7}
        buffer_store_dwordx4 v[{YA}:{YA+3}], v1, s[16:19], s57 offen sc1
        buffer_store_dwordx4 v[{YA+4}:{YA+7}], v1, s[16:19], s57 offen offset:1024 sc1
        """)
        vm.issue("ys", 2)
    add(128 + 3, y_send)
    def o_send():
        a(f"""
        buffer_store_dwordx4 v[{OA}:{OA+3}], v1, s[16:19], s57 offen offset:2048 sc1
        buffer_store_dwordx4 v[{OA+4}:{OA+7}], v1, s[16:19], s57 offen offset:3072 sc1
        """)
        vm.issue("os", 2)
    add(184 + 4, o_send)
    def fin_addr():
        a(f"""
        s_lshl_b32 s48, s32, 7
        s_lshl_b32 s49, s62, 5
        s_add_u32 s48, s48, s49
        v_add_u32 v12, s48, v14
        v_lshlrev_b32 v12, 10, v12
        s_and_b32 s48, s33, 3
        s_lshl_b32 s48, s48, 8
        s_lshl_b32 s49, s34, 5
        s_add_u32 s48, s48, s49
        v_lshl_add_u32 v13, v15, 3, s48
        v_add_u32 v12, v12, v13
        s_movk_i32 s48, 16384
        buffer_load_dwordx2 v[{XR}:{XR+1}], v12, s[4:7], 0 offen
        buffer_load_dwordx2 v[{XR+2}:{XR+3}], v12, s[4:7], s48 offen
        v_lshlrev_b32 v12, 1, v12
        s_lshl_b32 s48, s62, 8
        v_lshl_add_u32 v4, v14, 3, s48
        v_add_u32 v4, {L_ST}, v4
        """)
        vm.issue("x", 2)
        srd(a, 12, 88, 1024)
        srd(a, 8, 90, 2048 * 2048)
        a(f"""
        buffer_load_dwordx2 v[{DR}:{DR+1}], v13, s[12:15], 0 offen
        ds_read_b64 v[{ST}:{ST+1}], v4
        ds_read_b64 v[{ST+2}:{ST+3}], v4 offset:128
        """)
        vm.issue("x"); lg.issue(None, 2)
    add(184 + 12, fin_addr)
    def pr_loads():
        return "\n".join(f"buffer_load_dwordx4 v[{PR+4*k}:{PR+4*k+3}], v1, s[16:19], s58 offen offset:{k*1024} sc1" for k in (2, 3, 0, 1))
    F3, PRI = env("F3", 28), env("PRI", 50)
    def f3_send():
        a(f"""
        v_mov_b32 v9, 1
        v_mov_b32 v8, 0
        s_waitcnt vmcnt({vm.after('os')})
        s_mov_b64 exec, 1
        buffer_store_dword v9, v8, s[16:19], s55 offen sc1
        s_mov_b64 exec, -1
        """)
        vm.issue("f3")
    add(184 + F3, f3_send)
    def pr_issue():
        a("buffer_load_dword v11, v8, s[16:19], s54 offen sc1"); vm.issue("p3")
    add(184 + PRI, pr_issue)
    a(f"s_waitcnt vmcnt({vm.after(('hd', 0))})\ns_barrier")
    stamp(a, 32)
    for n in range(7): bread(n)
    for n in range(N):
        kind, i, tp, tq, hi, lo = seq[n]
        if n < 128 and n % 16 == 0:
            if n: stamp(a, 32 + n // 16)
            tg = ("hd", n // 16 + 1) if n < 112 else None
            w_ = [vm.after(("c", n // 16))]
            if tg: w_.append(vm.after(tg))
            a(f"s_waitcnt vmcnt({min(w_)})\ns_barrier")
        if n + 7 >= 128 and n + 7 < 184 and (n + 7 - 128) % 8 == 0:
            s_ = (n + 7 - 128) // 8
            a(f"s_waitcnt vmcnt({vm.after(('h1d', s_))})\ns_barrier")
        if n >= 128 and n < 184 and (n - 128) % 8 == 0:
            s_ = (n - 128) // 8
            stamp(a, 40 + s_)
            a(f"s_waitcnt vmcnt({vm.after(('w', s_))})")
        if n == 184: stamp(a, 47)
        b = HB + (n % 8) * 4
        a(f"s_waitcnt lgkmcnt({min(15, lg.after(('f', n)))})")
        if kind == "y":
            ac = YA + (tp * 2 + tq) * 4; af = X + 8 * i + 4 * hi
            first = (i == 0 and hi == 0 and lo == 0)
        else:
            ac = OA + (tp * 2 + tq) * 4 if tp == 0 else 56 + tq * 4
            af = WF[(i, 2 * hi + lo)]
            first = (i == 0 and hi == 0 and lo == 0)
        c = "0" if first else f"v[{ac}:{ac+3}]"
        a(f"v_mfma_f32_16x16x32_bf16 v[{ac}:{ac+3}], v[{af}:{af+3}], v[{b}:{b+3}], {c}")
        if n + 7 < N: bread(n + 7)
        for f in ev.get(n, []): f()
    stamp(a, 50)
    OP = 56
    M, XF, XN, DU, TMP, T2 = 104, 112, 120, 128, 132, 136
    def rnd(base, n, tmp):
        for e in range(n // 2): a(f"v_cvt_pk_bf16_f32 v{tmp+e}, v{base+2*e}, v{base+1+2*e}")
        for e in range(n // 2): a(f"v_lshlrev_b32 v{base+2*e}, 16, v{tmp+e}\nv_and_b32 v{base+1+2*e}, 0xffff0000, v{tmp+e}")
    poll(11, 8, "s54", "KF_p3", "p3")
    stamp(a, 52)
    a(pr_loads()); vm.issue("pr", 4)
    a(f"s_waitcnt vmcnt({vm.after('x')}) lgkmcnt(0)")
    for e in range(4):
        a(f"v_lshlrev_b32 v{XF+2*e}, 16, v{XR+e}\nv_and_b32 v{XF+1+2*e}, 0xffff0000, v{XR+e}")
    for e in range(2):
        a(f"v_lshlrev_b32 v{DU+2*e}, 16, v{DR+e}\nv_and_b32 v{DU+1+2*e}, 0xffff0000, v{DR+e}")
    for e in range(8): a(f"v_sub_f32 v{XN+e}, v{XF+e}, v{ST+2*(e>>2)}")
    rnd(XN, 8, TMP)
    for e in range(8): a(f"v_mul_f32 v{XN+e}, v{XN+e}, v{ST+1+2*(e>>2)}")
    rnd(XN, 8, TMP)
    for e in range(8): a(f"v_mul_f32 v{XN+e}, v{XN+e}, v{DU+(e&3)}")
    rnd(XN, 8, TMP)
    a("s_waitcnt vmcnt(0)")
    stamp(a, 51)
    for e in range(8): a(f"v_add_f32 v{OP+e}, v{OP+e}, v{PR+8+e}")
    rnd(OP, 8, TMP)
    for e in range(8): a(f"v_mul_f32 v{T2+e}, s53, v{OP+e}")
    for e in range(8): a(f"v_exp_f32 v{T2+e}, v{T2+e}")
    for e in range(8): a(f"v_add_f32 v{M+e}, v{YA+8+e}, v{PR+e}")
    for e in range(8): a(f"v_add_f32 v{T2+e}, 1.0, v{T2+e}")
    for e in range(8): a(f"v_rcp_f32 v{T2+e}, v{T2+e}")
    for e in range(8): a(f"v_fma_f32 v{M+e}, v{M+e}, 2.0, v{XN+e}")
    for e in range(8): a(f"v_mul_f32 v{OP+e}, v{OP+e}, v{T2+e}")
    rnd(OP, 8, TMP)
    for e in range(8): a(f"v_mul_f32 v{M+e}, v{M+e}, v{OP+e}")
    for e in range(8): a(f"v_add_f32 v{M+e}, v{M+e}, v{XF+e}")
    a(f"""
    s_mov_b32 s48, 32768
    buffer_store_dwordx4 v[{M}:{M+3}], v12, s[8:11], 0 offen
    buffer_store_dwordx4 v[{M+4}:{M+7}], v12, s[8:11], s48 offen
    """)
    if STAMP: a("s_waitcnt vmcnt(0)")
    stamp(a, 53)
    stamp_store(a, 16, 0)
    probe_end(a)
    a("""
    KF_done:
    s_endpgm
    KF_restart:
    s_and_b32 s100, s48, 255
    s_mov_b32 s101, 2
    s_cmp_eq_u32 s48, 2
    s_cselect_b32 s100, s2, s100
    s_cselect_b32 s101, 1, s101
    s_waitcnt vmcnt(0) lgkmcnt(0)
    s_barrier
    s_branch KF_top
    """)
    for t_ in tail: a.raw(t_)

HEADER = open("recurrent_scan__ssm_conv_s5__dense_activation_silu__prompt.s.ref").read().split("; Override launch")[0]

def build():
    a = Asm()
    a.raw(HEADER.rstrip("\n"))
    a.raw(f"; @launch grid=(256,1,1) block=(512,1,1) lds={KF_LDS}")
    a.raw('.amdgcn_target "amdgcn-amd-amdhsa--gfx950"\n.text')
    gen_kf(a)
    a.raw('.section .rodata,"a"\n.p2align 6')
    a.raw(kd(KNAME, 256))
    return a.text()

if __name__ == "__main__":
    STAMP = len(sys.argv) > 2 and "stamp" in sys.argv[2]
    open(sys.argv[1], "w").write(build())
```

```python
import sys, struct
sys.path.insert(0, "dev")
from asmlib import Asm, kd

import os
PAD = int(os.environ.get("PAD", "0"))
ROT = int(os.environ.get("ROT", "1"))
MAP = int(os.environ.get("MAP", "1"))
BU_JS = 8192 + 512 * PAD
BU_SS = 4 * BU_JS + 256 * PAD
FT = 56 * 1024 + 256 * PAD
WS_BU  = 0
WS_H1F = 10 << 20
WS_W2F = 18 << 20
WS_S8X = 20 << 20
WS_E   = 21 << 20
WS_TP  = (21 << 20) + (64 << 10)
WS_TL  = (21 << 20) + (128 << 10)
WS_ST  = (21 << 20) + (192 << 10)
WS_CF  = 22 << 20
WS_FL  = 23 << 20
WS_G   = 26 << 20
WS_DBG = 24 << 20
WS_SIZE = 28 << 20
STAMP = False

PCLK = "s_memrealtime" if os.environ.get("PRT") else "s_memtime"
PROBE = os.environ.get("PROBE")
def probe_end(a):
    if not PROBE: return
    pa, pb, K, w, wg = [int(x) for x in PROBE.split(",")]
    a(f"""
    s_waitcnt vmcnt(0)
    s_cmp_lg_u32 s34, {w}
    s_cbranch_scc1 KF_done
    """)
    if wg >= 0: a(f"s_cmp_lg_u32 s2, {wg}\ns_cbranch_scc1 KF_done")
    if os.environ.get("PWB"): a("s_and_b32 s48, s100, 3\ns_cmp_lg_u32 s48, 0\ns_cbranch_scc1 KF_nwbp\nbuffer_wbl2 sc1\ns_waitcnt vmcnt(0)\nKF_nwbp:")
    if pa == -2:
        a(f"""
        s_mov_b32 s98, {pb}
        KF_prl:
        s_sleep 1
        {PCLK} s[48:49]
        s_waitcnt lgkmcnt(0)
        s_sub_u32 s48, s48, s96
        s_cmp_lt_u32 s48, s98
        s_cbranch_scc1 KF_prl
        """)
        return
    if pa in (-3, -4):
        a(f"""
        s_mov_b64 exec, -1
        v_and_b32 v4, 63, v0
        v_lshlrev_b32 v4, 4, v4
        s_mov_b32 s48, {WS_DBG}
        buffer_load_dwordx4 v[8:11], v4, s[16:19], s48 offen sc1
        s_waitcnt vmcnt(0)
        v_subrev_u32 v8, s96, v8
        v_subrev_u32 v9, s96, v9
        v_subrev_u32 v10, s96, v10
        v_subrev_u32 v11, s96, v11
        v_min_i32 v12, v8, v9
        v_min3_i32 v12, v12, v10, v11
        v_max_i32 v13, v8, v9
        v_max3_i32 v13, v13, v10, v11
        s_mov_b32 s50, 0
        s_mov_b32 s51, 0
        s_nop 4
        """)
        for l in range(64):
            a(f"v_readlane_b32 s48, v12, {l}\nv_readlane_b32 s49, v13, {l}\ns_nop 3\ns_min_i32 s50, s50, s48\ns_max_i32 s51, s51, s49")
        if pa == -3: a("s_sub_u32 s98, s51, s50")
        else: a("s_sub_u32 s98, 0, s50")
        a(f"s_mul_i32 s98, s98, {pb}")
    elif pa < 0: a(f"s_mov_b32 s98, {pb}")
    else: a(f"s_sub_u32 s98, s98, s96\ns_mul_i32 s98, s98, {K}")
    a(f"""
    s_min_u32 s98, s98, {20000 if os.environ.get("PRT") else 400000}
    {PCLK} s[96:97]
    s_waitcnt lgkmcnt(0)
    KF_prl:
    s_sleep 1
    {PCLK} s[48:49]
    s_waitcnt lgkmcnt(0)
    s_sub_u32 s48, s48, s96
    s_cmp_lt_u32 s48, s98
    s_cbranch_scc1 KF_prl
    """)
def stamp(a, i):
    if PROBE:
        pa, pb = [int(x) for x in PROBE.split(",")[:2]]
        if pa in (-2, -3, -4) and i == 30: a(PCLK + " s[96:97]\ns_waitcnt lgkmcnt(0)")
        if pa >= 0 and i == pa: a(PCLK + " s[96:97]\ns_waitcnt lgkmcnt(0)")
        if pa >= 0 and i == pb:
            if i == 53: a("s_waitcnt vmcnt(0)")
            a(PCLK + " s[98:99]\ns_waitcnt lgkmcnt(0)")
        return
    if not STAMP: return
    a(f"""
    s_memtime s[96:97]
    s_waitcnt lgkmcnt(0)
    v_writelane_b32 v255, s96, {i}
    """)

def rstamp(a, i):
    if not STAMP: return
    a(f"""
    s_memrealtime s[96:97]
    s_waitcnt lgkmcnt(0)
    v_writelane_b32 v255, s96, {i}
    """)

def stamp_store(a, srd, k):
    if not STAMP: return
    rstamp(a, 63)
    a(f"""
    s_mov_b64 exec, -1
    v_and_b32 v254, 63, v0
    v_lshlrev_b32 v254, 2, v254
    s_lshl_b32 s96, s2, 3
    s_add_u32 s96, s96, s34
    s_lshl_b32 s96, s96, 8
    s_add_u32 s96, s96, {WS_DBG + k * (1 << 20)}
    buffer_store_dword v255, v254, s[{srd}:{srd+3}], s96 offen
    """)

def srd(a, d, base, nbytes):
    a(f"""
    s_mov_b32 s{d}, s{base}
    s_and_b32 s{d+1}, s{base+1}, 0xffff
    s_mov_b32 s{d+2}, {nbytes}
    s_mov_b32 s{d+3}, 0x00020000
    """)

def f2u(x):
    return struct.unpack("<I", struct.pack("<f", x))[0]

def cplx_sq(a, d, s, t):
    a(f"""
    v_mul_f32 v{t}, v{s+1}, v{s+1}
    v_mul_f32 v{d+1}, v{s}, v{s+1}
    v_fma_f32 v{d}, v{s}, v{s}, -v{t}
    v_add_f32 v{d+1}, v{d+1}, v{d+1}
    """)

def cmul_acc(a, d, x, m, add):
    if add is None:
        a(f"v_pk_mul_f32 v[{d}:{d+1}], v[{x}:{x+1}], v[{m}:{m+1}] op_sel_hi:[1,0]")
    else:
        a(f"v_pk_fma_f32 v[{d}:{d+1}], v[{x}:{x+1}], v[{m}:{m+1}], v[{add}:{add+1}] op_sel_hi:[1,0,1]")
    a(f"v_pk_fma_f32 v[{d}:{d+1}], v[{x}:{x+1}], v[{m}:{m+1}], v[{d}:{d+1}] op_sel:[1,1,0] op_sel_hi:[0,1,1] neg_lo:[0,1,0]")

class Cnt:
    def __init__(self): self.n = 0; self.tags = {}
    def issue(self, tag=None, k=1):
        self.n += k
        if tag is not None: self.tags[tag] = self.n
    def after(self, tag): return self.n - self.tags[tag]
    def copy(self):
        c = Cnt(); c.n = self.n; c.tags = dict(self.tags); return c

def interleave(a, main, fill, lead=0):
    k = 0
    for l in fill[:lead]: a(l)
    k = lead
    n = len(main)
    rest = len(fill) - k
    for i, m in enumerate(main):
        a(m)
        tgt = lead + (rest * (i + 1)) // n
        while k < tgt:
            a(fill[k]); k += 1


def probe_mid(a):
    if not PROBE: return
    pa = int(PROBE.split(",")[0])
    if pa not in (-3, -4): return
    a(f"""
    s_lshl_b32 s48, s2, 2
    s_add_u32 s48, s48, {WS_DBG}
    v_mov_b32 v8, s96
    v_mov_b32 v3, 0
    s_mov_b64 exec, 1
    buffer_store_dword v8, v3, s[16:19], s48 offen sc1
    s_mov_b64 exec, -1
    """)
L_M = 131072
L_TAB, L_ST, L_CNT, L_Z, L_E16, L_HIN, L_SCR = (L_M, L_M + 20480, L_M + 21504, L_M + 22528, L_M + 24576, L_M + 26624, L_M + 24576)
KF_LDS = 163840
WS_HF = 0
WS_OP = 26 << 20
WS_SIZE = 40 << 20
SPIN = 0x4000
KNAME = "recurrent_scan__ssm_conv_s5__dense_activation_silu__prompt_kernel"
def env(n, d): return int(os.environ.get(n, str(d)))
FORCE = env("FORCE", 0)

def gen_kf(a):
    X, MR, NM, TM = 16, 80, 84, 88
    ACC, BF = 104, 132
    ACCB, BB = 132, 148
    U, Q, MM, LAM, COEF, L4, L16, G1, GG = 164, 180, 184, 188, 192, 196, 200, 204, 208
    WA, WB = 212, 216
    VF, VW, VC, VHB, VW2 = 220, 234, 235, 237, 238
    SELR, VA, W2R, VXS, VXR, VB, VT = 104, 110, 116, 124, 126, 128, 129
    VSC, CRR = 130, 180
    WS_FC, WS_FS = WS_FL + 49152, WS_FL + 57344
    RO, SCB, SHB = 40, 72, 80
    vm = Cnt()
    _af = vm.after
    vm.after = lambda tg: min(63, _af(tg))
    tail = []
    ndual = [0]
    def dual(lines):
        k = ndual[0]; ndual[0] += 1
        a(f"s_cmp_eq_u32 s101, 1\ns_cbranch_scc1 KF_alt{k}")
        for l in lines: a(l)
        a.raw(f"KF_j{k}:")
        tail.append(f"KF_alt{k}:\n    s_nop 7\n    s_nop 7\n" + "".join(f"    {l} sc1\n" for l in lines) + f"    s_nop 7\n    s_branch KF_j{k}")
    a.raw(f".globl {KNAME}\n.p2align 8\n.type {KNAME},@function\n{KNAME}:")
    a("""
    s_cmp_ge_u32 s2, 256
    s_cbranch_scc1 KF_done
    """)
    rstamp(a, 62)
    stamp(a, 30)
    a(f"""
    s_getreg_b32 s3, hwreg(HW_REG_XCC_ID, 0, 3)
    s_mov_b32 s101, 0                       ; mode
    s_lshr_b32 s48, s2, 3
    s_lshl_b32 s100, s3, 5
    s_add_u32 s100, s100, s48
    KF_top:
    s_setprio 3
    s_load_dwordx16 s[72:87], s[0:1], 0
    s_load_dwordx4 s[88:91], s[0:1], 80     ; w1 w2
    s_load_dwordx4 s[92:95], s[0:1], 104
    v_lshrrev_b32 v1, 6, v0
    v_and_b32 v2, 63, v0                    ; lane
    v_readfirstlane_b32 s34, v1             ; wave
    v_and_b32 v14, 15, v2                   ; n
    v_lshrrev_b32 v15, 4, v2                ; g
    v_lshlrev_b32 v1, 4, v2                 ; lane*16
    s_bfe_u32 s32, s100, 0x20006
    s_lshl_b32 s32, s32, 2
    s_and_b32 s48, s100, 3
    s_add_u32 s32, s32, s48
    s_bfe_u32 s63, s100, 0x10005
    s_lshl_b32 s33, s63, 3
    s_bfe_u32 s48, s100, 0x30002
    s_add_u32 s33, s33, s48
    s_and_b32 s35, s34, 3
    s_lshr_b32 s36, s34, 2
    s_lshl_b32 s51, s34, 10                 ; wave*1024
    s_lshl_b32 s52, s34, 14                 ; region
    s_and_b32 s48, s32, 3
    s_lshl_b32 s48, s48, 1
    s_add_u32 s50, s33, s48
    """)
    for pos in range(8):
        a(f"s_add_u32 s48, s50, {pos}\ns_and_b32 s48, s48, 7\ns_lshl_b32 s{64+pos}, s48, 7")
    a(f"""
    s_lshl_b32 s48, s63, 9
    v_lshl_add_u32 v5, v0, 1, s48
    ; x source
    s_lshl_b32 s48, s32, 17
    s_add_u32 s48, s48, s52
    v_lshrrev_b32 v9, 3, v2                 ; r8
    v_and_b32 v10, 7, v2                    ; slot
    v_lshrrev_b32 v12, 1, v9
    v_xor_b32 v13, v12, v10
    v_lshl_add_u32 v4, v9, 10, s48
    v_lshl_add_u32 v{VXS}, v13, 4, v4
    v_xor_b32 v13, 4, v13
    v_lshl_add_u32 v{VXS+1}, v13, 4, v4
    v_add_u32 v{VXS+1}, 8192, v{VXS+1}
    s_and_b32 s60, s33, 3                   ; cq
    s_and_b32 s48, s34, 1
    s_lshl_b32 s48, s48, 2
    v_or_b32 v12, s48, v12
    v_xor_b32 v12, v12, v10
    s_lshl_b32 s48, s35, 3
    s_lshl_b32 s49, s33, 5
    s_add_u32 s48, s48, s49
    v_add_u32 v13, s48, v9                  ; channel
    v_lshlrev_b32 v13, 10, v13
    v_lshl_add_u32 v{VB}, v12, 4, v13
    s_lshl_b32 s57, s2, 3
    s_add_u32 s57, s57, s34                 ; b
    s_sub_u32 s48, s57, 256
    s_cmp_ge_u32 s57, 1792
    s_cselect_b32 s57, s48, s57
    s_lshr_b32 s58, s57, 5                  ; kstep
    s_and_b32 s59, s57, 31                  ; dtile
    v_lshrrev_b32 v12, 1, v2
    v_lshlrev_b32 v12, 10, v12
    v_and_b32 v13, 1, v2
    v_lshl_add_u32 v12, v13, 4, v12
    v_and_b32 v13, 7, v14
    v_lshlrev_b32 v13, 10, v13
    v_lshl_add_u32 v13, v15, 4, v13
    v_lshrrev_b32 v4, 3, v14
    v_lshl_add_u32 v13, v4, 6, v13
    s_bfe_u32 s48, s100, 0x20003
    s_lshl_b32 s48, s48, 17
    s_add_u32 s48, s48, s52                 ; + d tile
    s_lshl_b32 s49, s63, 9
    s_add_u32 s48, s48, s49
    s_bfe_u32 s49, s100, 0x20001
    s_lshl_b32 s49, s49, 7
    s_add_u32 s53, s48, s49
    s_lshl_b32 s61, s58, 15
    s_lshl_b32 s49, s59, 5
    s_add_u32 s61, s61, s49
    s_mul_i32 s48, s59, {FT}
    s_lshl_b32 s49, s58, 10
    s_add_u32 s48, s48, s49
    s_add_u32 s55, s48, {WS_W2F}
    s_add_u32 s48, s3, 1
    {'s_cmp_eq_u32 s2, 0' if FORCE else ''}
    {'s_cselect_b32 s49, 1, 0' if FORCE else ''}
    {'s_xor_b32 s48, s3, s49' if FORCE else ''}
    {'s_add_u32 s48, s48, 1' if FORCE else ''}
    s_mov_b32 s59, s48
    """)
    if STAMP: a("s_memtime s[98:99]")
    a("s_waitcnt lgkmcnt(0)")
    if STAMP: a("v_writelane_b32 v255, s98, 31")
    srd(a, 4, 72, 2048 * 1024)
    srd(a, 20, 92, 256)
    srd(a, 8, 74, 1024)
    srd(a, 12, 76, 1024)
    srd(a, 24, 86, 1024)
    a(f"""
    s_cmp_lg_u32 s36, 0
    s_cbranch_scc1 KF_np
    buffer_load_ushort v6, v5, s[8:11], 0 offen
    buffer_load_ushort v7, v5, s[12:15], 0 offen
    buffer_load_ushort v11, v5, s[24:27], 0 offen
    KF_np:
    """)
    vm.tags["par"] = vm.n
    for pos in range(8):
        for hh in range(2):
            a(f"""
            s_add_u32 m0, s52, {pos * 2048 + hh * 1024}
            s_nop 0
            buffer_load_dwordx4 v{VXS+hh}, s[4:7], s{64+pos} offen lds
            """)
            vm.issue(("x", pos))
    stamp(a, 0)
    srd(a, 28, 90, 1792 * 1024)
    a("""
    s_bitcmp0_b32 s100, 0
    s_cselect_b32 s48, s82, s84
    s_cselect_b32 s49, s83, s85
    """)
    srd(a, 24, 48, 512 * 1024)
    a(f"""
    s_add_u32 s48, s53, 8192
    buffer_load_dwordx4 v[{CRR}:{CRR+3}], v13, s[24:27], s53 offen
    buffer_load_dwordx4 v[{CRR+4}:{CRR+7}], v13, s[24:27], s48 offen
    buffer_load_dwordx4 v[{W2R}:{W2R+3}], v12, s[28:31], s61 offen
    s_cmp_lt_u32 s34, 4
    s_cselect_b32 s48, s78, s80
    s_cselect_b32 s49, s79, s81
    """)
    vm.issue("w2r", 3)
    srd(a, 8, 48, 512 * 1024)
    a("s_setprio 0")
    stamp(a, 16)
    srd(a, 16, 94, WS_SIZE)
    srd(a, 12, 88, 512 * 3584)
    a(f"""
    s_load_dwordx2 s[88:89], s[0:1], 64     ; Dskip
    s_load_dwordx2 s[90:91], s[0:1], 96     ; out
    v_mov_b32 v244, 0
    v_mov_b32 v245, 0
    v_mov_b32 v246, 0
    v_mov_b32 v247, 0
    s_cmp_lg_u32 s34, 4
    s_cbranch_scc1 KF_nz0
    v_add_u32 v9, {L_Z}, v1
    ds_write_b128 v9, v[244:247]
    ds_write_b128 v9, v[244:247] offset:1024
    v_mov_b32 v9, {L_CNT}
    ds_write_b128 v9, v[244:247] offset:16
    KF_nz0:
    v_bfe_u32 v12, v14, 1, 3                ; key = (n>>1)&7
    v_xor_b32 v12, v12, v15                 ; g ^ key
    v_lshlrev_b32 v13, 7, v14
    v_add_u32 v13, s52, v13
    v_lshl_add_u32 v{VXR}, v12, 4, v13
    v_xor_b32 v{VXR+1}, 64, v{VXR}
    v_and_b32 v13, 7, v14
    v_lshlrev_b32 v13, 7, v13
    v_lshrrev_b32 v9, 3, v14
    v_lshl_add_u32 v13, v9, 14, v13
    v_lshl_add_u32 v{VA}, v12, 4, v13
    v_xor_b32 v{VA+1}, 64, v{VA}
    v_add_u32 v{VA+2}, 65536, v{VA}
    v_add_u32 v{VA+3}, 65536, v{VA+1}
    ; w1 source
    s_and_b32 s48, s34, 1
    s_lshl_b32 s48, s48, 2
    v_or_b32 v13, s48, v15                  ; s(k)
    v_bfe_u32 v9, v2, 1, 3                  ; pair'
    v_xor_b32 v13, v13, v9                  ; pair
    v_lshlrev_b32 v13, 5, v13
    v_and_b32 v9, 1, v2
    v_lshl_add_u32 v13, v9, 4, v13
    s_lshl_b32 s48, s34, 3
    v_add_u32 v12, s48, v15                 ; k local (j=0)
    s_movk_i32 s49, 3584
    v_mul_lo_u32 v12, v12, s49
    s_mul_i32 s48, s33, 224
    v_add3_u32 v{VW}, v12, v13, s48
    v_lshlrev_b32 v242, 2, v2
    """)
    fillers = []
    def F(t): fillers.append(t)
    F(f"""
    v_lshrrev_b32 v9, 2, v14                ; m>>2
    v_cmp_eq_u32 vcc, v9, v15
    v_and_b32 v9, 1, v14
    v_lshlrev_b32 v9, 4, v9
    v_mov_b32 v10, 0x3f80
    v_lshlrev_b32 v9, v9, v10
    v_cndmask_b32 v9, 0, v9, vcc
    v_and_b32 v10, 2, v14
    v_cmp_eq_u32 vcc, 0, v10
    v_cndmask_b32 v{SELR+2}, 0, v9, vcc
    v_cndmask_b32 v{SELR+3}, v9, 0, vcc
    v_mov_b32 v{SELR}, 0
    v_mov_b32 v{SELR+1}, 0
    v_mov_b32 v{SELR+4}, 0
    v_mov_b32 v{SELR+5}, 0
    s_lshl_b32 s37, s32, 8
    s_lshl_b32 s48, s63, 7
    s_add_u32 s37, s37, s48
    s_add_u32 s39, s37, {WS_FL}
    s_and_b32 s48, s33, 7
    s_lshl_b32 s48, s48, 2
    s_add_u32 s37, s39, s48
    s_lshl_b32 s38, s32, 4
    s_add_u32 s38, s38, s33
    s_lshl_b32 s47, s33, 12
    s_lshl_b32 s48, s32, 8
    s_add_u32 s47, s47, s48
    s_add_u32 s47, s47, {WS_E}
    s_and_b32 s48, s33, 7
    s_lshl_b32 s48, s48, 8
    s_add_u32 s48, s48, {L_TAB}
    v_lshl_add_u32 v{VT}, v14, 4, s48
    s_add_u32 s48, s51, {L_SCR}
    v_add_u32 v{VSC}, s48, v1
    v_bfe_u32 v9, v2, 2, 2
    v_lshl_add_u32 v9, v15, 2, v9           ; 4g + r
    v_lshlrev_b32 v9, 5, v9
    v_and_b32 v10, 3, v2
    v_lshl_add_u32 v9, v10, 3, v9
    v_add_u32 v{VSC+1}, s48, v9
    """)
    t_ = f"""
    v_bfe_u32 v12, v2, 2, 2                 ; r
    v_and_b32 v13, 1, v15
    v_lshl_or_b32 v13, v13, 2, v12          ; sw
    v_lshlrev_b32 v12, 8, v12
    v_lshl_add_u32 v12, v15, 14, v12        ; g*16384 + r*256
    v_and_b32 v4, 3, v2
    v_lshl_add_u32 v12, v4, 3, v12          ; + c*8
    s_and_b32 s54, s33, 1                   ; par
    s_cmp_lg_u32 s54, 0
    s_cselect_b32 s56, 0, 6
    """
    for p in range(7):
        if p < 6: t_ += f"s_add_u32 s48, s54, {p}\n"
        sreg = "s48" if p < 6 else "s56"
        t_ += f"v_xor_b32 v4, {sreg}, v13\nv_lshl_add_u32 v{VF+p}, v4, 5, v12\nv_add_u32 v{VF+7+p}, 65536, v{VF+p}\n"
    F(t_)
    t_ = f"""
    s_add_u32 s48, s33, s32
    s_lshl_b32 s49, s32, 1
    s_add_u32 s48, s48, s49
    s_and_b32 s62, s48, 7                   ; rot8
    s_cmp_eq_u32 s62, 7
    s_cselect_b32 s61, 3, s62               ; rot7
    """
    for p in range(7):
        t_ += f"""
        s_add_u32 s48, s61, {p}
        s_sub_u32 s49, s48, 7
        s_cmp_ge_u32 s48, 7
        s_cselect_b32 s48, s49, s48
        s_lshl_b32 s{RO+p}, s48, 12
        """
    F(t_)
    t_ = f"""
    s_lshl_b32 s50, s63, 15
    s_lshl_b32 s61, s60, 18
    s_lshl_b32 s48, s63, 17
    s_add_u32 s61, s61, s48
    s_add_u32 s61, s61, {WS_CF}
    """
    for p in range(8):
        t_ += f"""
        s_add_u32 s48, s62, {p}
        s_and_b32 s48, s48, 7
        s_lshl_b32 s49, s48, 14
        s_add_u32 s{SCB+p}, s49, s61
        s_lshl_b32 s49, s48, 12
        s_add_u32 s{SHB+p}, s49, s50
        """
    F(t_)
    F(f"""
    s_lshl_b32 s48, s60, 3
    s_add_u32 s48, s48, s34                 ; cq*8 + w
    s_mul_i32 s48, s48, {FT}
    s_mul_i32 s60, s63, {28 * 1024}         ; kh * 28K
    s_add_u32 s48, s48, s60
    s_add_u32 s48, s48, {WS_W2F}
    v_add_u32 v{VW2}, s48, v1
    v_add_u32 v{VC}, s51, v1
    v_add_u32 v{VC+1}, 8192, v{VC}
    s_bfe_u32 s48, s33, 0x10002             ; rh
    s_lshl_b32 s48, s48, 1
    s_add_u32 s62, s48, s63
    s_lshl_b32 s48, s32, 3
    s_add_u32 s48, s48, s34
    s_lshl_b32 s48, s48, 16
    s_lshl_b32 s49, s33, 12
    s_add_u32 s57, s48, s49
    """)
    a(fillers.pop(0))
    a(f"""
    s_lshr_b32 s48, s100, 3
    s_lshl_b32 s48, s48, 7
    s_and_b32 s49, s100, 7
    s_lshl_b32 s49, s49, 2
    s_add_u32 s48, s48, s49
    s_add_u32 s58, s48, {WS_FC}
    s_cmp_lg_u32 s34, 5
    s_cbranch_scc1 KF_nz
    v_mov_b32 v8, -1
    v_mov_b32 v9, -1
    v_mov_b32 v10, -1
    v_mov_b32 v11, -1
    v_mov_b32 v3, 0
    s_add_u32 s50, s37, 4096
    s_lshl_b32 s48, s38, 7
    s_add_u32 s48, s48, {WS_FL + 8192}
    s_xor_b32 s48, s48, {8 << 7}
    s_lshl_b32 s49, s2, 2
    s_add_u32 s49, s49, {WS_FS}
    s_mov_b64 exec, 0xffff
    buffer_store_dwordx4 v[8:11], v1, s[16:19], s47 offen sc1
    s_mov_b64 exec, 1
    buffer_store_dword v3, v3, s[16:19], s37 offen sc1
    buffer_store_dword v3, v3, s[16:19], s50 offen sc1
    buffer_store_dword v3, v3, s[16:19], s58 offen sc1
    buffer_store_dword v3, v3, s[16:19], s49 offen sc1
    s_mov_b64 exec, 0xff
    buffer_store_dword v3, v242, s[16:19], s48 offen sc1
    s_mov_b64 exec, -1
    """)
    probe_mid(a)
    a("KF_nz:")
    vm.tags["clr"] = vm.n
    stamp(a, 1)
    T0 = 136
    def t(i): return T0 + i
    a(f"""
    s_cmp_lg_u32 s36, 0
    s_cbranch_scc1 KF_ntab
    s_waitcnt vmcnt({vm.after('par')})
    v_lshlrev_b32 v{t(1)}, 16, v7               ; Lim
    v_lshlrev_b32 v{t(0)}, 16, v6               ; Lre
    v_lshlrev_b32 v{t(2)}, 16, v11              ; log_dt
    v_mul_f32 v{t(2)}, {f2u(1.4426950408889634):#x}, v{t(2)}
    v_exp_f32 v{t(2)}, v{t(2)}
    v_cvt_pk_bf16_f32 v{t(2)}, v{t(2)}, v{t(2)}
    v_lshlrev_b32 v{t(2)}, 16, v{t(2)}
    v_mul_f32 v{t(3)}, v{t(2)}, v{t(0)}                 ; a
    v_mul_f32 v{t(4)}, v{t(2)}, v{t(1)}                 ; b
    v_mul_f32 v{t(3)}, {f2u(1.4426950408889634):#x}, v{t(3)}
    v_exp_f32 v{t(3)}, v{t(3)}                      ; e^a
    v_mul_f32 v{t(5)}, {f2u(0.6366197723675814):#x}, v{t(4)}
    v_rndne_f32 v{t(5)}, v{t(5)}                    ; n
    v_mov_b32 v{t(6)}, {f2u(1.5703125):#x}
    v_fma_f32 v{t(4)}, -v{t(5)}, v{t(6)}, v{t(4)}
    v_mov_b32 v{t(6)}, {f2u(4.837512969970703125e-4):#x}
    v_fma_f32 v{t(4)}, -v{t(5)}, v{t(6)}, v{t(4)}
    v_mov_b32 v{t(6)}, {f2u(7.54978995489188216e-8):#x}
    v_fma_f32 v{t(4)}, -v{t(5)}, v{t(6)}, v{t(4)}           ; r
    v_cvt_i32_f32 v{t(5)}, v{t(5)}                  ; q
    v_mul_f32 v{t(6)}, v{t(4)}, v{t(4)}                 ; z
    v_mov_b32 v{t(7)}, {f2u(-1.9515295891e-4):#x}
    v_mov_b32 v{t(8)}, {f2u(8.3321608736e-3):#x}
    v_fma_f32 v{t(7)}, v{t(7)}, v{t(6)}, v{t(8)}
    v_mov_b32 v{t(8)}, {f2u(-1.6666654611e-1):#x}
    v_fma_f32 v{t(7)}, v{t(7)}, v{t(6)}, v{t(8)}
    v_mul_f32 v{t(7)}, v{t(7)}, v{t(6)}
    v_fma_f32 v{t(7)}, v{t(7)}, v{t(4)}, v{t(4)}            ; sin r
    v_mov_b32 v{t(8)}, {f2u(2.443315711809948e-5):#x}
    v_mov_b32 v{t(9)}, {f2u(-1.388731625493765e-3):#x}
    v_fma_f32 v{t(8)}, v{t(8)}, v{t(6)}, v{t(9)}
    v_mov_b32 v{t(9)}, {f2u(4.166664568298827e-2):#x}
    v_fma_f32 v{t(8)}, v{t(8)}, v{t(6)}, v{t(9)}
    v_mul_f32 v{t(8)}, v{t(8)}, v{t(6)}
    v_fma_f32 v{t(8)}, v{t(8)}, v{t(6)}, 1.0
    v_fma_f32 v{t(8)}, v{t(6)}, -0.5, v{t(8)}           ; cos r
    v_and_b32 v{t(9)}, 1, v{t(5)}
    v_cmp_eq_u32 vcc, 1, v{t(9)}
    v_cndmask_b32 v{t(10)}, v{t(7)}, v{t(8)}, vcc
    v_cndmask_b32 v{t(11)}, v{t(8)}, v{t(7)}, vcc
    v_lshlrev_b32 v{t(9)}, 30, v{t(5)}
    v_and_b32 v{t(9)}, 0x80000000, v{t(9)}
    v_xor_b32 v{t(10)}, v{t(10)}, v{t(9)}                 ; sin b
    v_add_u32 v{t(9)}, 1, v{t(5)}
    v_lshlrev_b32 v{t(9)}, 30, v{t(9)}
    v_and_b32 v{t(9)}, 0x80000000, v{t(9)}
    v_xor_b32 v{t(11)}, v{t(11)}, v{t(9)}                 ; cos b
    v_mul_f32 v{t(12)}, v{t(3)}, v{t(11)}
    v_mul_f32 v{t(13)}, v{t(3)}, v{t(10)}
    v_lshrrev_b32 v4, 5, v0
    v_lshlrev_b32 v4, 8, v4
    v_lshl_add_u32 v4, v14, 4, v4
    v_and_b32 v8, 1, v15
    v_lshl_add_u32 v4, v8, 3, v4
    v_add_u32 v4, {L_TAB}, v4
    ds_write_b64 v4, v[{t(12)}:{t(13)}]
    """)
    P = {1: t(12)}
    for k in range(1, 8):
        P[1 << k] = t(14 + 2 * k)
        cplx_sq(a, P[1 << k], P[1 << (k - 1)], t(30))
        ent = {2: 2, 3: 3, 4: 5, 5: 6, 6: 8, 7: 9}.get(k)
        if ent is not None: a(f"ds_write_b64 v4, v[{P[1<<k]}:{P[1<<k]+1}] offset:{ent*2048}")
    cmul_acc(a, t(32), P[4], P[8], None); a(f"ds_write_b64 v4, v[{t(32)}:{t(33)}] offset:{4*2048}")
    cmul_acc(a, t(34), P[16], P[32], None); a(f"ds_write_b64 v4, v[{t(34)}:{t(35)}] offset:{7*2048}")
    a(f"""
    v_add_f32 v{t(4)}, -1.0, v{t(12)}                ; Lr-1
    v_mul_f32 v{t(5)}, v{t(13)}, v{t(1)}
    v_fma_f32 v{t(5)}, v{t(4)}, v{t(0)}, v{t(5)}
    v_mul_f32 v{t(6)}, v{t(4)}, v{t(1)}
    v_fma_f32 v{t(6)}, v{t(13)}, v{t(0)}, -v{t(6)}
    v_mul_f32 v{t(7)}, v{t(1)}, v{t(1)}
    v_fma_f32 v{t(7)}, v{t(0)}, v{t(0)}, v{t(7)}            ; den
    v_rcp_f32 v{t(8)}, v{t(7)}
    v_fma_f32 v{t(9)}, -v{t(7)}, v{t(8)}, 2.0
    v_mul_f32 v{t(8)}, v{t(8)}, v{t(9)}
    v_mul_f32 v{t(14)}, v{t(5)}, v{t(8)}
    v_mul_f32 v{t(15)}, v{t(6)}, v{t(8)}
    ds_write_b64 v4, v[{t(14)}:{t(15)}] offset:2048
    KF_ntab:
    """)
    stamp(a, 28)
    def sto(st): return 8192 + st * 2048 if st < 4 else (st - 4) * 2048
    def dma_piece(st, i):
        base = sto(st)
        if i == 0:
            a(f"""
            s_add_u32 m0, s52, {base}
            s_mul_i32 s49, s{64+st}, 1792
            buffer_load_dwordx4 v{VW}, s[12:15], s49 offen lds
            """)
        else:
            a(f"""
            s_mul_i32 s49, s{64+st}, 1792
            s_add_u32 m0, s52, {base + 1024}
            s_add_u32 s49, s49, {4 * 3584}
            buffer_load_dwordx4 v{VW}, s[12:15], s49 offen lds
            """)
        vm.issue(("dma", st), 1)
    def arrive(word, reg):
        a(f"""
        v_mov_b32 v8, {L_CNT + word}
        v_mov_b32 v9, 1
        s_mov_b64 exec, 1
        ds_add_rtn_u32 v{reg}, v8, v9
        s_mov_b64 exec, -1
        """)
    def setflag(w, sreg, label, local):
        a(f"""
        s_cmp_lg_u32 s34, {w}
        s_cbranch_scc1 {label}
        v_mov_b32 v9, 1
        v_mov_b32 v8, 0
        s_mov_b64 exec, 1
        """)
        if local: dual([f"buffer_store_dword v9, v8, s[16:19], {sreg} offen"])
        else: a(f"buffer_store_dword v9, v8, s[16:19], {sreg} offen sc1")
        a(f"s_mov_b64 exec, -1\n{label}:")
    S1, S2 = TM, TM + 2
    a("s_mov_b32 s53, 0x3f803f80")
    def bdma(s):
        a(f"""
        s_add_u32 m0, s52, {s * 1024}
        s_nop 0
        buffer_load_dwordx4 v{VB}, s[8:11], s{64+s} offen lds
        """)
        vm.issue("bdma", 1)
    def xread(c):
        a(f"s_waitcnt vmcnt({vm.after(('x', c))})")
        for h in range(2):
            r = X + (c * 2 + h) * 4
            a(f"ds_read_b128 v[{r}:{r+3}], v{VXR+h} offset:{c*2048}")
    xread(0)
    for c in range(8):
        if c < 7: xread(c + 1)
        stamp(a, 20 + c)
        a(f"s_waitcnt lgkmcnt({2 if c < 7 else 0})")
        if c < 4:
            bdma(2 * c); bdma(2 * c + 1)
        else:
            dma_piece(c - 4, 0); dma_piece(c - 4, 1)
        if c < len(fillers): a(fillers[c])
        if c == env("ARC", 5):
            a(f"""
            s_cmp_lg_u32 s34, 5
            s_cbranch_scc1 KF_narr
            s_cmp_lg_u32 s101, 0
            s_cselect_b32 s48, 0x30, 0x20
            s_or_b32 s48, s48, s59
            v_mov_b32 v9, s48
            v_mov_b32 v8, s2
            s_waitcnt vmcnt({vm.after('clr')})
            s_mov_b64 exec, 1
            buffer_store_byte v9, v8, s[20:23], 0 offen sc1
            s_mov_b64 exec, -1
            KF_narr:
            """)
        for d in range(8):
            x = X + c * 8 + d
            s1 = S1 + (d & 1); s2 = S2 + (d & 1)
            first = (c == 0 and d < 2)
            a(f"v_dot2_f32_bf16 v{s1}, v{x}, s53, {'0' if first else 'v%d' % s1}")
            a(f"v_dot2_f32_bf16 v{s2}, v{x}, v{x}, {'0' if first else 'v%d' % s2}")
    stamp(a, 2)
    a(f"""
    s_waitcnt vmcnt({vm.after('w2r')})
    ds_write_b128 v{VSC}, v[{W2R}:{W2R+3}]
    ds_read_b64_tr_b16 v[{W2R}:{W2R+1}], v{VSC+1}
    ds_read_b64_tr_b16 v[{W2R+2}:{W2R+3}], v{VSC+1} offset:512
    s_bfe_u32 s48, s100, 0x20003
    s_lshl_b32 s48, s48, 18
    s_lshl_b32 s49, s63, 17
    s_add_u32 s48, s48, s49
    s_bfe_u32 s49, s100, 0x20001
    s_lshl_b32 s49, s49, 15
    s_add_u32 s48, s48, s49
    s_and_b32 s49, s100, 1
    s_lshl_b32 s49, s49, 13
    s_add_u32 s48, s48, s49
    s_add_u32 s48, s48, s51
    s_add_u32 s48, s48, {WS_CF}
    s_add_u32 s49, s48, 16384
    """)
    for e in range(4): a(f"v_mov_b32 v{CRR+8+e}, v{CRR+e}")
    for e in range(4): a(f"v_mov_b32_dpp v{CRR+e}, v{CRR+4+e} row_ror:8 row_mask:0xf bank_mask:0xc")
    for e in range(4): a(f"v_mov_b32_dpp v{CRR+4+e}, v{CRR+8+e} row_ror:8 row_mask:0xf bank_mask:0x3")
    dual([f"buffer_store_dwordx4 v[{CRR}:{CRR+3}], v1, s[16:19], s48 offen", f"buffer_store_dwordx4 v[{CRR+4}:{CRR+7}], v1, s[16:19], s49 offen"])
    vm.issue("cst", 2)
    a(f"""
    s_waitcnt lgkmcnt(0)
    buffer_store_dwordx4 v[{W2R}:{W2R+3}], v1, s[16:19], s55 offen sc1
    """)
    vm.issue("sts", 1)
    stamp(a, 29)
    Qs = TM + 8
    a(f"""
    v_add_f32 v{Qs}, v{S1}, v{S1+1}
    v_add_f32 v{Qs+1}, v{S2}, v{S2+1}
    """)
    for op in ("v_permlane16_swap_b32", "v_permlane32_swap_b32"):
        a(f"""
        v_mov_b32 v{Qs+2}, v{Qs}
        v_mov_b32 v{Qs+3}, v{Qs+1}
        {op} v{Qs}, v{Qs+2}
        {op} v{Qs+1}, v{Qs+3}
        v_add_f32 v{Qs}, v{Qs}, v{Qs+2}
        v_add_f32 v{Qs+1}, v{Qs+1}, v{Qs+3}
        """)
    a(f"""
    v_mul_f32 v{Qs}, {f2u(1/512):#x}, v{Qs}
    v_mul_f32 v{Qs+1}, {f2u(1/512):#x}, v{Qs+1}
    v_fma_f32 v{Qs+1}, -v{Qs}, v{Qs}, v{Qs+1}
    v_max_f32 v{Qs+1}, 0, v{Qs+1}
    v_cvt_pk_bf16_f32 v{Qs+2}, v{Qs}, v{Qs+1}
    v_lshlrev_b32 v{MR}, 16, v{Qs+2}
    v_and_b32 v{Qs+1}, 0xffff0000, v{Qs+2}
    v_xor_b32 v{NM}, 0x80000000, v{MR}
    v_add_f32 v{Qs+1}, {f2u(1e-5):#x}, v{Qs+1}
    v_mov_b32 v{NM+1}, v{NM}
    v_cvt_pk_bf16_f32 v{Qs+1}, v{Qs+1}, v{Qs+1}
    v_mov_b32 v{NM+2}, v{NM}
    v_lshlrev_b32 v{Qs+1}, 16, v{Qs+1}
    v_mov_b32 v{NM+3}, v{NM}
    v_sqrt_f32 v{Qs+1}, v{Qs+1}
    v_cvt_pk_bf16_f32 v{Qs+1}, v{Qs+1}, v{Qs+1}
    v_lshlrev_b32 v{Qs+1}, 16, v{Qs+1}
    v_rcp_f32 v{Qs+2}, v{Qs+1}
    v_fma_f32 v{Qs+3}, -v{Qs+1}, v{Qs+2}, 2.0
    v_mul_f32 v{MR+1}, v{Qs+2}, v{Qs+3}
    """)
    def unpack(f):
        x0 = X + f * 4
        T = TM + 8 * (f & 1)
        return [f"v_mfma_f32_16x16x32_bf16 v[{T}:{T+3}], v[{SELR+2}:{SELR+5}], v[{x0}:{x0+3}], v[{NM}:{NM+3}]",
                f"v_mfma_f32_16x16x32_bf16 v[{T+4}:{T+7}], v[{SELR}:{SELR+3}], v[{x0}:{x0+3}], v[{NM}:{NM+3}]"]
    def norm_valu(f):
        x0 = X + f * 4
        T = TM + 8 * (f & 1)
        o = []
        for e in range(8): o.append(f"v_cvt_pk_bf16_f32 v{T+e}, 0, v{T+e}")
        for e in range(8): o.append(f"v_mul_f32 v{T+e}, v{T+e}, v{MR+1}")
        for d in range(4): o.append(f"v_cvt_pk_bf16_f32 v{x0+d}, v{T+2*d}, v{T+2*d+1}")
        return o
    for l in unpack(0) + unpack(1): a(l)
    a(f"""
    s_lshl_b32 s48, s34, 7
    v_lshl_add_u32 v4, v14, 3, s48
    v_add_u32 v4, {L_ST}, v4
    ds_write_b64 v4, v[{MR}:{MR+1}]
    v_lshl_add_u32 v4, v15, 11, v{VT}       ; + g*2048
    s_lshl_b32 s48, s35, 11
    v_add_u32 v5, s48, v{VT}
    """)
    for l in norm_valu(0): a(l)
    for l in unpack(2): a(l)
    stamp(a, 3)
    a(f"""
    s_waitcnt vmcnt({vm.after('bdma')}) lgkmcnt(0)
    s_barrier
    """)
    def breads(j):
        pos, ks = j >> 1, j & 1
        b = BB + (j & 1) * 16
        return [f"ds_read_b128 v[{b+4*q}:{b+4*q+3}], v{VA + ks + 2 * (q >> 1)} offset:{pos * 1024 + (q & 1) * 32768}" for q in range(4)]
    for l in breads(0): a(l)
    lg = Cnt()
    lg.tags[("b", 0)] = 0
    a(f"""
    ds_read_b128 v[{LAM}:{LAM+3}], v{VT}
    ds_read_b128 v[{COEF}:{COEF+3}], v{VT} offset:2048
    ds_read_b128 v[{L4}:{L4+3}], v{VT} offset:4096
    ds_read_b128 v[{L16}:{L16+3}], v{VT} offset:{5*2048}
    ds_read_b128 v[{GG}:{GG+3}], v4 offset:2048
    ds_read_b128 v[{WA}:{WA+3}], v5 offset:{4*2048}
    ds_read_b128 v[{WB}:{WB+3}], v{VT} offset:{8*2048}
    """)
    lg.issue(None, 7)
    for l in norm_valu(1): a(l)
    stamp(a, 4)
    ARJ = env("ARJ", 2)
    for j in range(16):
        b = BB + (j & 1) * 16
        a(f"s_waitcnt lgkmcnt({lg.after(('b', j))})")
        main = []
        for q in range(4):
            ac = ACCB + 4 * q
            c = "0" if j == 0 else f"v[{ac}:{ac+3}]"
            main.append(f"v_mfma_f32_16x16x32_bf16 v[{ac}:{ac+3}], v[{X+4*j}:{X+4*j+3}], v[{b+4*q}:{b+4*q+3}], {c}")
        if j + 3 < 16:
            un = unpack(j + 3)
            main = [main[0], main[1], main[2], main[3], un[0], un[1]]
        nr = breads(j + 1) if j < 15 else []
        va = norm_valu(j + 2) if j + 2 < 16 else []
        interleave(a, main, nr + va, lead=0)
        lg.issue(("b", j + 1), len(nr))
        if j == 7:
            a(f"s_waitcnt vmcnt({vm.after('cst')})\ns_barrier")
            setflag(3, "s58", "KF_nfc", True)
            dma_piece(4, 0); dma_piece(4, 1)
        if j == 8:
            dma_piece(5, 0); dma_piece(5, 1)
        if j == 13:
            a(f"""
            s_cmp_lg_u32 s34, 7
            s_cbranch_scc1 KF_np0
            buffer_load_dword v243, v242, s[20:23], 0 offen sc1
            KF_np0:
            v_cmp_eq_u32 vcc, 0, v15
            """)
            for e in range(4): a(f"v_cndmask_b32 v{GG+e}, v{GG+e}, {'1.0' if e % 2 == 0 else '0'}, vcc")
            a("v_and_b32 v4, 1, v15\nv_cmp_eq_u32 vcc, 1, v4")
            for e in range(4): a(f"v_cndmask_b32 v{G1+e}, {'1.0' if e % 2 == 0 else '0'}, v{L4+e}, vcc")
            a("s_cmp_eq_u32 s35, 0\ns_cselect_b64 vcc, -1, 0")
            for e in range(4): a(f"v_cndmask_b32 v{WA+e}, v{WA+e}, {'1.0' if e % 2 == 0 else '0'}, vcc")
            a("s_cmp_eq_u32 s36, 0\ns_cselect_b64 vcc, -1, 0")
            for e in range(4): a(f"v_cndmask_b32 v{WB+e}, v{WB+e}, {'1.0' if e % 2 == 0 else '0'}, vcc")
        if j == 14:
            for ct in range(2): cmul_acc(a, Q + 2 * ct, WA + 2 * ct, WB + 2 * ct, None)
            for ct in range(2): cmul_acc(a, MM + 2 * ct, Q + 2 * ct, GG + 2 * ct, None)
    stamp(a, 5)
    for ct in range(2):
        cf = COEF + 2 * ct
        for r in range(4):
            u = U + ct * 8 + 2 * r
            re = ACCB + (0 * 2 + ct) * 4 + r
            im = ACCB + (1 * 2 + ct) * 4 + r
            a(f"""
            v_mul_f32 v{u}, v{cf+1}, v{im}
            v_mul_f32 v{u+1}, v{cf+1}, v{re}
            v_fma_f32 v{u}, v{cf}, v{re}, -v{u}
            v_fma_f32 v{u+1}, v{cf}, v{im}, v{u+1}
            """)
    for r in range(1, 4):
        for ct in range(2):
            c = U + ct * 8 + 2 * r
            cmul_acc(a, c, c - 2, LAM + 2 * ct, c)
    TT, CC, E8, X1, SS = 88, 92, 96, 100, 148
    def e4(i): return U + (i >> 1) * 8 + 6 + (i & 1)
    for i in range(4): a(f"v_mov_b32 v{TT+i}, 0\nv_mov_b32 v{CC+i}, v{e4(i)}")
    for i in range(4): a(f"v_permlane16_swap_b32 v{TT+i}, v{CC+i}")
    for ct in range(2): cmul_acc(a, E8 + 2 * ct, TT + 2 * ct, L4 + 2 * ct, e4(2 * ct))
    for i in range(4): a(f"v_mov_b32 v{X1+i}, v{E8+i}\nv_mov_b32 v{SS+i}, 0")
    for i in range(4): a(f"v_permlane16_swap_b32 v{X1+i}, v{E8+i}")
    for i in range(4): a(f"v_permlane32_swap_b32 v{SS+i}, v{E8+i}")
    for ct in range(2): cmul_acc(a, Q + 2 * ct, SS + 2 * ct, G1 + 2 * ct, TT + 2 * ct)
    for ct in range(2): cmul_acc(a, G1 + 2 * ct, Q + 2 * ct, L4 + 2 * ct, e4(2 * ct))
    E16 = G1
    a(f"""
    s_lshl_b32 s48, s34, 8
    s_add_u32 s48, s48, {L_E16}
    v_lshl_add_u32 v4, v14, 4, s48
    s_mov_b32 s48, 0
    s_mov_b32 s49, 0xffff0000
    s_mov_b64 exec, s[48:49]
    ds_write_b128 v4, v[{E16}:{E16+3}]
    s_mov_b64 exec, -1
    v_subrev_u32 v12, {7 * 256}, v4         ; e16[w-7]
    """)
    stamp(a, 6)
    a(f"""
    s_cmp_lg_u32 s34, 7
    s_cbranch_scc1 KF_nck
    s_mov_b32 s50, 1
    s_movk_i32 s61, {SPIN}
    s_mov_b32 s49, 0x20202020
    s_cmp_lg_u32 s101, 0
    s_cselect_b32 s49, 0x10101010, s49
    s_waitcnt vmcnt(0)
    KF_ckl:
    v_and_b32 v4, s49, v243
    v_cmp_ne_u32 vcc, s49, v4
    s_cbranch_vccz KF_cka
    s_sub_u32 s61, s61, 1
    s_cbranch_scc1 KF_ckd
    s_sleep 1
    buffer_load_dword v243, v242, s[20:23], 0 offen sc1
    s_waitcnt vmcnt(0)
    s_branch KF_ckl
    KF_cka:
    s_cmp_lg_u32 s101, 0
    s_cbranch_scc1 KF_ckd
    v_bfe_u32 v4, v243, 0, 4
    v_bfe_u32 v5, v243, 8, 4
    v_bfe_u32 v6, v243, 16, 4
    v_bfe_u32 v7, v243, 24, 4
    v_lshlrev_b32 v4, v4, 1
    v_lshlrev_b32 v5, v5, 1
    v_lshlrev_b32 v6, v6, 1
    v_lshlrev_b32 v7, v7, 1
    v_or3_b32 v4, v4, v5, v6
    v_or_b32 v4, v4, v7
    v_or_b32_dpp v4, v4, v4 quad_perm:[1,0,3,2] row_mask:0xf bank_mask:0xf
    v_cmp_ne_u32 vcc, 0x1fe, v4
    s_cbranch_vccz KF_ckd
    v_mov_b32 v4, 0
    v_mov_b32 v5, 0
    s_mov_b32 s61, 0
    """)
    for j in range(4):
        a(f"""
        v_bfe_u32 v8, v243, {8*j}, 4
        v_cmp_eq_u32 s[48:49], s59, v8
        v_add_u32 v9, {j}, v242
        v_cmp_gt_u32 vcc, s2, v9
        v_lshlrev_b32 v8, 3, v8
        v_subrev_u32 v8, 8, v8
        v_lshlrev_b64 v[6:7], v8, 1
        v_add_u32 v4, v4, v6
        v_add_u32 v5, v5, v7
        s_and_b64 s[48:49], s[48:49], vcc
        s_bcnt1_i32_b64 s48, s[48:49]
        s_add_u32 s61, s61, s48
        """)
    for r in (1, 2, 4, 8):
        a(f"v_add_u32_dpp v4, v4, v4 row_ror:{r} row_mask:0xf bank_mask:0xf\nv_add_u32_dpp v5, v5, v5 row_ror:{r} row_mask:0xf bank_mask:0xf")
    for op in ("v_permlane16_swap_b32", "v_permlane32_swap_b32"):
        a(f"""
        v_mov_b32 v6, v4
        v_mov_b32 v7, v5
        {op} v4, v6
        {op} v5, v7
        v_add_u32 v4, v4, v6
        v_add_u32 v5, v5, v7
        """)
    a(f"""
    v_readfirstlane_b32 s48, v4
    v_readfirstlane_b32 s49, v5
    s_xor_b32 s48, s48, 0x20202020
    s_xor_b32 s49, s49, 0x20202020
    s_or_b32 s48, s48, s49
    s_lshl_b32 s49, s3, 5
    s_add_u32 s49, s49, s61
    s_or_b32 s50, s49, 0x100
    s_cmp_lg_u32 s48, 0
    s_cselect_b32 s50, 2, s50
    KF_ckd:
    v_mov_b32 v8, s50
    v_mov_b32 v4, {L_CNT}
    ds_write_b32 v4, v8
    KF_nck:
    v_mov_b32 v3, {L_CNT}
    s_waitcnt vmcnt({vm.after(('dma', 3))}) lgkmcnt(0)
    s_barrier
    ds_read_b32 v3, v3
    """)
    stamp(a, 7)
    EBL = [88, 92, 96, 100, 84, 4, 8]
    for j in range(7): a(f"ds_read_b128 v[{EBL[j]}:{EBL[j]+3}], v12 offset:{j*256}")
    lg = Cnt()
    def fread(i):
        k, p = divmod(i, 7)
        st, ks = k >> 1, k & 1
        b = BF + (i % 8) * 4
        a(f"ds_read_b64_tr_b16 v[{b}:{b+1}], v{VF+7*ks+p} offset:{sto(st)}")
        a(f"ds_read_b64_tr_b16 v[{b+2}:{b+3}], v{VF+7*ks+p} offset:{sto(st)+1024}")
        lg.issue(("f", i), 2)
    a("s_waitcnt lgkmcnt(7)\nv_readfirstlane_b32 s48, v3\ns_cmp_lg_u32 s48, 1\ns_cbranch_scc1 KF_restart")
    lg.issue("p2b", 7)
    for i in range(4): fread(i)
    dma_piece(6, 0); dma_piece(6, 1)
    for i in range(4, 7): fread(i)
    dma_piece(7, 0); dma_piece(7, 1)
    WF = {}
    def wload(i, q, reg):
        a(f"buffer_load_dwordx4 v[{reg}:{reg+3}], v{VW2}, s[16:19], s{RO+i} offen offset:{q*1024}")
        vm.issue(("w", i)); WF[(i, q)] = reg
    def cload(b, ri):
        reg = X + 8 * b + 4 * ri
        a(f"buffer_load_dwordx4 v[{reg}:{reg+3}], v{VC+ri}, s[16:19], s{SCB+b} offen")
        vm.issue(("c", b))
    class L:
        def __init__(s): s.l = []
        def __call__(s, t_): s.l += [x.strip() for x in t_.strip().split("\n") if x.strip()]
    a(f"s_waitcnt lgkmcnt({min(15, lg.after('p2b'))})")
    for j in range(1, 7):
        for ct in range(2): cmul_acc(a, EBL[j] + 2 * ct, EBL[j - 1] + 2 * ct, L16 + 2 * ct, EBL[j] + 2 * ct)
    for ct in range(2): cmul_acc(a, E16 + 2 * ct, EBL[6] + 2 * ct, L16 + 2 * ct, E16 + 2 * ct)
    a(f"""
    s_cmp_lg_u32 s34, 7
    s_cbranch_scc1 KF_npub
    v_lshlrev_b32 v3, 4, v14
    s_mov_b32 s48, 0
    s_mov_b32 s49, 0xffff0000
    s_mov_b64 exec, s[48:49]
    buffer_store_dwordx4 v[{E16}:{E16+3}], v3, s[16:19], s47 offen sc1
    s_mov_b64 exec, -1
    KF_npub:
    """)
    vm.tags["dbg"] = vm.n
    for ct in range(2): cmul_acc(a, Q + 2 * ct, EBL[6] + 2 * ct, GG + 2 * ct, Q + 2 * ct)
    PC, PH, PL, PT = 192, 200, 208, 216
    def psf_valu():
        o = L()
        for ct in range(2): cmul_acc(o, PC + 2 * ct, PT + 2 * ct, MM + 2 * ct, Q + 2 * ct)
        for r in range(4):
            for ct in range(2):
                src = PC + (r & 1) * 4 + 2 * ct; dst = PC + ((r + 1) & 1) * 4 + 2 * ct
                cmul_acc(o, dst, src, LAM + 2 * ct, None)
                u = U + ct * 8 + 2 * r
                o(f"v_pk_add_f32 v[{u}:{u+1}], v[{u}:{u+1}], v[{dst}:{dst+1}]")
        return o.l
    def psf_split(ri):
        o = L(); ng = "-" if ri else ""
        for ct in range(2):
            h = PH + ri * 4 + ct * 2; l = PL + ri * 4 + ct * 2
            u = lambda r: U + ct * 8 + 2 * r + ri
            for pr in range(2):
                o(f"v_cvt_pk_bf16_f32 v{h+pr}, {ng}v{u(2*pr)}, {ng}v{u(2*pr+1)}")
            for pr in range(2):
                o(f"v_lshlrev_b32 v{PT+2*pr}, 16, v{h+pr}\nv_and_b32 v{PT+2*pr+1}, 0xffff0000, v{h+pr}")
            o(f"ds_write_b64 v3, v[{h}:{h+1}] offset:{ct*512}")
            for r in range(4): o(f"v_sub_f32 v{PT+r}, {ng}v{u(r)}, v{PT+r}")
            for pr in range(2): o(f"v_cvt_pk_bf16_f32 v{l+pr}, v{PT+2*pr}, v{PT+2*pr+1}")
            o(f"ds_write_b64 v3, v[{l}:{l+1}] offset:{1024 + ct*512}")
        return o.l
    HO = [PC, PC + 4, U, U + 4]
    def psf_tr(ri):
        o = []
        for hl in range(2):
            d = HO[ri * 2 + hl]
            o.append(f"ds_read_b64_tr_b16 v[{d}:{d+1}], v12 offset:{hl*1024}")
            o.append(f"ds_read_b64_tr_b16 v[{d+2}:{d+3}], v13 offset:{hl*1024}")
        return o
    def psf_addr():
        o = L()
        o(f"""
        v_lshlrev_b32 v4, 4, v14
        v_add_u32 v4, {L_HIN}, v4
        ds_read_b128 v[{PT}:{PT+3}], v4
        s_lshl_b32 s48, s34, 11
        s_add_u32 s48, s48, {L_TAB}
        v_lshrrev_b32 v3, 2, v14
        v_xor_b32 v3, v3, v15
        v_lshlrev_b32 v3, 3, v3
        v_lshl_add_u32 v3, v14, 5, v3
        v_add_u32 v3, s48, v3
        v_bfe_u32 v12, v2, 2, 2
        v_lshl_add_u32 v12, v15, 3, v12
        v_lshlrev_b32 v13, 1, v15
        v_and_b32 v13, 3, v13
        v_and_b32 v4, 3, v2
        v_xor_b32 v13, v13, v4
        v_lshlrev_b32 v13, 3, v13
        v_lshl_add_u32 v12, v12, 5, v13
        v_add_u32 v12, s48, v12
        v_add_u32 v13, 128, v12
        v_xor_b32 v13, 8, v13
        """)
        return o.l
    EL, R7, L128, L512, HG = 192, 208, 4, 8, 216
    def w7_eload(first):
        o = ""
        for j in range(4):
            o += f"buffer_load_dwordx4 v[{EL+4*j}:{EL+4*j+3}], v{244+j}, s[16:19], s50 offen sc1\n"
        if not first: return o
        a(f"""
        s_cmp_lg_u32 s34, 7
        s_cbranch_scc1 KF_nel
        s_sub_u32 s48, s32, 1
        v_sub_u32 v8, s48, v15                  ; rt - 1 - g
        """)
        for j in range(4):
            a(f"""
            v_subrev_u32 v9, {4*j}, v8
            v_cmp_gt_i32 vcc, 0, v9
            v_lshlrev_b32 v9, 8, v9
            v_lshl_add_u32 v9, v14, 4, v9
            v_mov_b32 v10, {WS_SIZE}
            v_cndmask_b32 v{244+j}, v9, v10, vcc
            """)
        a(f"""
        s_lshl_b32 s50, s33, 12
        s_add_u32 s50, s50, {WS_E}
        {o}
        s_and_b32 s48, s33, 7
        s_lshl_b32 s48, s48, 8
        s_add_u32 s48, s48, {L_TAB + 9 * 2048}
        v_lshl_add_u32 v8, v14, 4, s48
        ds_read_b128 v[{L128}:{L128+3}], v8
        s_waitcnt lgkmcnt(0)
        """)
        for ct in range(2): cplx_sq(a, R7 + 2 * ct, L128 + 2 * ct, 3)
        for ct in range(2): cplx_sq(a, L512 + 2 * ct, R7 + 2 * ct, 3)
        a("v_and_b32 v3, 1, v15\nv_cmp_eq_u32 vcc, 1, v3")
        for e in range(4): a(f"v_cndmask_b32 v{L128+e}, {'1.0' if e % 2 == 0 else '0'}, v{L128+e}, vcc")
        a("v_cmp_lt_u32 vcc, 1, v15")
        for e in range(4): a(f"v_cndmask_b32 v{R7+e}, {'1.0' if e % 2 == 0 else '0'}, v{R7+e}, vcc")
        for ct in range(2): cmul_acc(a, HG + 2 * ct, L128 + 2 * ct, R7 + 2 * ct, None)
        a("KF_nel:")
        vm.tags["e"] = vm.n
    def w7_horner():
        a(f"""
        s_cmp_lg_u32 s34, 7
        s_cbranch_scc1 KF_nho
        s_movk_i32 s61, {SPIN}
        s_waitcnt vmcnt({vm.after('e')})
        KF_hol:
        """)
        a(f"v_cmp_eq_u32 vcc, -1, v{EL}")
        for i in range(1, 16):
            a(f"v_cmp_eq_u32 s[48:49], -1, v{EL+i}\ns_or_b64 vcc, vcc, s[48:49]")
        a(f"""
        s_cmp_eq_u64 vcc, 0
        s_cbranch_scc1 KF_hod
        s_sub_u32 s61, s61, 1
        s_cbranch_scc1 KF_hod
        s_sleep 1
        {w7_eload(False)}
        s_waitcnt vmcnt(0)
        s_branch KF_hol
        KF_hod:
        """)
        for j in (2, 1, 0):
            for ct in range(2): cmul_acc(a, EL + 4 * j + 2 * ct, EL + 4 * (j + 1) + 2 * ct, L512 + 2 * ct, EL + 4 * j + 2 * ct)
        R = R7
        for ct in range(2): cmul_acc(a, R + 2 * ct, EL + 2 * ct, HG + 2 * ct, None)
        for op in ("v_permlane16_swap_b32", "v_permlane32_swap_b32"):
            for i in range(4): a(f"v_mov_b32 v{R+4+i}, v{R+i}")
            for i in range(4): a(f"{op} v{R+i}, v{R+4+i}")
            for i in range(4): a(f"v_add_f32 v{R+i}, v{R+i}, v{R+4+i}")
        a(f"""
        v_add_u32 v8, {L_HIN}, v1
        s_mov_b64 exec, 0xffff
        ds_write_b128 v8, v[{R}:{R+3}]
        s_mov_b64 exec, -1
        s_waitcnt lgkmcnt(0)
        KF_nho:
        """)
    def signal(reg, sreg, label):
        a(f"""
        v_readfirstlane_b32 s48, v{reg}
        s_cmp_lg_u32 s48, 7
        s_cbranch_scc1 {label}
        v_mov_b32 v9, 1
        v_mov_b32 v8, 0
        s_mov_b64 exec, 1
        """)
        dual([f"buffer_store_dword v9, v8, s[16:19], {sreg} offen"])
        a(f"s_mov_b64 exec, -1\n{label}:")
    def poll(reg, addr, sreg, label, tag):
        a(f"""
        s_movk_i32 s61, {SPIN}
        s_waitcnt vmcnt({vm.after(tag)})
        {label}l:
        v_cmp_ne_u32 vcc, 1, v{reg}
        s_cbranch_vccz {label}d
        s_sub_u32 s61, s61, 1
        s_cbranch_scc1 {label}d
        s_sleep 1
        buffer_load_dword v{reg}, v{addr}, s[16:19], {sreg} offen sc1
        s_waitcnt vmcnt(0)
        s_branch {label}l
        {label}d:
        """)
    EI, HI, PSN = env("EI", 28), env("HB", 63), env("PSN", 24)
    ev = {}
    def add(i, f): ev.setdefault(i, []).append(f)
    W01 = [80, 84, 88, 92, 96, 100, 248, 244]
    def fc_issue():
        a(f"""
        v_and_b32 v5, 7, v2
        v_lshlrev_b32 v5, 2, v5
        s_lshr_b32 s48, s100, 5
        s_lshl_b32 s48, s48, 2
        s_and_b32 s49, s33, 3
        s_add_u32 s48, s48, s49
        s_lshl_b32 s48, s48, 7
        s_add_u32 s55, s48, {WS_FC}
        buffer_load_dword v11, v5, s[16:19], s55 offen sc1
        """)
        vm.issue("pc")
    add(0, fc_issue)
    add(14, lambda: poll(11, 5, "s55", "KF_pc", "pc"))
    def fs_set():
        a(f"s_lshl_b32 s49, s2, 2\ns_add_u32 s49, s49, {WS_FS}")
        setflag(3, "s49", "KF_nfs", False)
    add(48, fs_set)
    for b in range(7):
        for ri in range(2): add((2 * b + 2) * 7 + 1 + 3 * ri, (lambda b=b, ri=ri: cload(b, ri)))
    add(EI, lambda: w7_eload(True))
    add(HI, w7_horner)
    items = psf_addr() + ["@w"] + psf_valu() + psf_split(0) + psf_tr(0) + ["#t0"] + psf_split(1) + psf_tr(1) + ["#t1", "@s"]
    for k, l in enumerate(items): add(HI + 1 + (k * PSN) // len(items), l)
    AR4 = min(110, HI + PSN + env("A4", 8))
    def h_arrive():
        a(f"s_waitcnt vmcnt({vm.after('hst')})"); arrive(20, 10); lg.issue("ar4")
    add(AR4, h_arrive)
    def h_signal():
        a(f"s_waitcnt lgkmcnt({min(15, lg.after('ar4'))})\ns_add_u32 s49, s37, 4096"); signal(10, "s49", "KF_nf4")
    add(min(111, AR4 + 4), h_signal)
    bars = {48: ("dma", 5), 76: ("dma", 7)}
    for i in range(112):
        k, p = divmod(i, 7)
        if p == 0 and k % 2 == 0: stamp(a, 8 + k // 2)
        b = BF + (i % 8) * 4
        ac = ACC + p * 4
        a(f"s_waitcnt lgkmcnt({min(15, lg.after(('f', i)))})")
        c = "0" if k == 0 else f"v[{ac}:{ac+3}]"
        a(f"v_mfma_f32_16x16x32_bf16 v[{ac}:{ac+3}], v[{b}:{b+3}], v[{X+4*k}:{X+4*k+3}], {c}")
        pre = [f for f in ev.get(i, []) if f is w7_horner]
        for f in pre: f()
        if i in bars: a(f"s_waitcnt vmcnt({vm.after(bars[i])})\ns_barrier")
        elif i == HI: a("s_barrier")
        if i + 7 < 112: fread(i + 7)
        for f in ev.get(i, []):
            if f is w7_horner: continue
            if callable(f): f()
            elif f == "@w": a(f"s_waitcnt lgkmcnt({min(15, lg.after('hin'))})")
            elif f[0] == "#": lg.tags[f[1:]] = lg.n
            elif f == "@s":
                a(f"s_waitcnt lgkmcnt({min(15, lg.after('t1'))})")
                dual([f"buffer_store_dwordx4 v[{HO[kk]}:{HO[kk]+3}], v1, s[16:19], s57 offen offset:{kk*1024}" for kk in range(4)])
                vm.issue("hst", 4)
            else:
                a(f)
                if f.startswith("ds_"):
                    lg.issue("hin" if f"v[{PT}:{PT+3}]" in f else None)
    stamp(a, 17)
    YA, OA, HB = 220, 16, BF
    VH, VP = 12, 6
    a("s_waitcnt lgkmcnt(0)")
    cload(7, 0); cload(7, 1)
    a(f"""
    v_and_b32 v5, 7, v2
    v_lshlrev_b32 v5, 2, v5
    s_add_u32 s55, s39, 4096
    buffer_load_dword v11, v5, s[16:19], s55 offen sc1
    v_min_u32 v242, 27, v2
    s_mul_i32 s48, s63, 28
    v_add_u32 v242, s48, v242
    v_lshlrev_b32 v242, 4, v242
    s_and_b32 s48, s33, 3
    s_lshl_b32 s48, s48, 2
    s_add_u32 s47, s48, {WS_FS}
    buffer_load_dword v243, v242, s[16:19], s47 offen sc1
    s_barrier
    s_lshl_b32 s48, s32, 3
    s_add_u32 s48, s48, s34
    s_mul_i32 s48, s48, {FT}
    s_add_u32 s48, s48, {WS_H1F}
    s_mul_i32 s49, s33, 7
    s_add_u32 s58, s49, s54
    s_lshl_b32 s58, s58, 9
    s_add_u32 s58, s58, s48
    s_add_u32 s59, s49, s56
    s_lshr_b32 s61, s59, 1
    s_lshl_b32 s61, s61, 10
    s_and_b32 s59, s59, 1
    s_lshl_b32 s59, s59, 3
    s_add_u32 s59, s59, s61
    s_add_u32 s59, s59, s48
    s_mov_b32 s53, {f2u(-1.4426950408889634):#x}
    s_bfe_u32 s48, s33, 0x10002             ; rh
    s_lshl_b32 s48, s48, 2
    s_lshl_b32 s49, s32, 3
    s_add_u32 s48, s48, s49
    s_lshr_b32 s49, s34, 1
    s_add_u32 s48, s48, s49
    s_and_b32 s49, s34, 1
    s_lshl_b32 s49, s49, 11
    s_lshl_b32 s50, s48, 16
    s_add_u32 s50, s50, s49
    v_add_u32 v{VH}, s50, v1
    s_mul_i32 s48, s48, {FT}
    s_add_u32 s48, s48, s49
    s_add_u32 s48, s48, s60
    s_add_u32 s48, s48, {WS_H1F}
    v_add_u32 v{VH+1}, s48, v1
    s_lshl_b32 s48, s63, 16
    v_add_u32 v{VP+1}, s48, v1
    v_xor_b32 v{VP}, 65536, v{VP+1}
    """)
    vm.issue("p4"); vm.issue("ps")
    def silu_tile(p, dst):
        ac = ACC + p * 4
        tt = 164 + (p & 1) * 12
        a(f"""
        v_cvt_pk_bf16_f32 v{tt}, v{ac}, v{ac+1}
        v_cvt_pk_bf16_f32 v{tt+1}, v{ac+2}, v{ac+3}
        v_lshlrev_b32 v{tt+4}, 16, v{tt}
        v_and_b32 v{tt+5}, 0xffff0000, v{tt}
        v_lshlrev_b32 v{tt+6}, 16, v{tt+1}
        v_and_b32 v{tt+7}, 0xffff0000, v{tt+1}
        """)
        for r in range(4): a(f"v_mul_f32 v{tt+8+r}, s53, v{tt+4+r}")
        for r in range(4): a(f"v_exp_f32 v{tt+8+r}, v{tt+8+r}")
        for r in range(4): a(f"v_add_f32 v{tt+8+r}, 1.0, v{tt+8+r}")
        for r in range(4): a(f"v_rcp_f32 v{tt+8+r}, v{tt+8+r}")
        for r in range(4): a(f"v_mul_f32 v{tt+4+r}, v{tt+4+r}, v{tt+8+r}")
        a(f"""
        v_cvt_pk_bf16_f32 v{dst}, v{tt+4}, v{tt+5}
        v_cvt_pk_bf16_f32 v{dst+1}, v{tt+6}, v{tt+7}
        """)
    def hdma(i, j):
        if j == 0: a(f"s_add_u32 m0, s52, {sto(i)}\ns_nop 0")
        a(f"buffer_load_dwordx4 v{VH}, s[16:19], s{SHB+i} offen offset:{j*1024} lds")
        vm.issue(("hd", i))
    def h1dma(i, j):
        if j == 0: a(f"s_add_u32 m0, s52, {sto(i)}\ns_nop 0")
        a(f"buffer_load_dwordx4 v{VH+1}, s[16:19], s{RO+i} offen offset:{j*1024} lds")
        vm.issue(("h1d", i))
    P4P = env("P4P", 2)
    H1O = 188
    for pr in range(4):
        if pr == P4P:
            stamp(a, 18)
            poll(11, 5, "s55", "KF_p4", "p4")
            for i in range(8): hdma(i, 0); hdma(i, 1)
            stamp(a, 19)
        o = H1O + 4 * pr
        silu_tile(2 * pr, o)
        if pr < 3: silu_tile(2 * pr + 1, o + 2)
    dual([f"buffer_store_dwordx4 v[{H1O+4*pr}:{H1O+4*pr+3}], v1, s[16:19], s58 offen offset:{pr*1024}" for pr in range(3)]
         + [f"buffer_store_dwordx2 v[{H1O+12}:{H1O+13}], v1, s[16:19], s59 offen"])
    vm.issue("h1s", 4)
    if P4P == 4:
        stamp(a, 18)
        poll(11, 5, "s55", "KF_p4", "p4")
        for i in range(8): hdma(i, 0); hdma(i, 1)
        stamp(a, 19)
    WR = [104 + 4 * i for i in range(7)] + [164 + 4 * i for i in range(6)] + [204 + 4 * i for i in range(4)] + [24, 28, 32]
    seq = []
    for i in range(8):
        for ri in range(2):
            for tp in range(2):
                for tq in range(2):
                    for hl in range(2): seq.append(("y", i, tp, tq, ri, hl))
    for tp in range(2):
        for i in range(7):
            for q in range(4):
                for tq in range(2): seq.append(("o", i, tp, tq, q >> 1, q & 1))
    N = len(seq)
    lg = Cnt()
    def bread(n):
        kind, i, tp, tq, hi, lo = seq[n]
        b = HB + (n % 8) * 4
        a(f"ds_read_b128 v[{b}:{b+3}], v{VP+tp} offset:{(2*tq+hi)*16384 + sto(i) + lo*1024}")
        lg.issue(("f", n))
    A1, P1I, P1C = env("A1", 6), env("P1I", 30), env("P1C", 48)
    ev = {}
    def h1_arrive():
        a(f"s_waitcnt vmcnt({vm.after('h1s')})"); arrive(24, 10); lg.issue("ar1")
    add(A1, h1_arrive)
    def h1_signal():
        a(f"s_waitcnt lgkmcnt({min(15, lg.after('ar1'))})"); signal(10, "s37", "KF_nf1")
    add(A1 + 6, h1_signal)
    def p1_issue():
        a("buffer_load_dword v11, v5, s[16:19], s39 offen sc1"); vm.issue("p1")
    add(P1I, p1_issue)
    add(P1C, lambda: poll(11, 5, "s39", "KF_p1", "p1"))
    WBM = env("WBM", 0)
    def wb_issue():
        a(f"""
        s_cmp_lg_u32 s34, {env("WBW", 6)}
        s_cbranch_scc1 KF_nwb
        s_and_b32 s48, s33, {env("WBK", 7)}
        s_cmp_lg_u32 s48, 0
        s_cbranch_scc1 KF_nwb
        buffer_wbl2 sc1
        KF_nwb:
        """)
    if WBM: add(WBM, wb_issue)
    nxt = P1C + 1
    for i in range(7):
        nxt = max(nxt, 16 * (i + 1) + 1)
        add(nxt, (lambda i=i: (h1dma(i, 0), h1dma(i, 1)))); nxt += 3
    WS0, WSP = env("WS0", 3), env("WSP", 4)
    add(WS0 - 1, lambda: poll(243, 242, "s47", "KF_ps", "ps"))
    WR = W01 + WR
    wl = [(i, q) for i in range(0, 7) for q in range(4)]
    for k, (i, q) in enumerate(wl):
        pos = WS0 + k * WSP
        if WR[k] < 80: pos = max(pos, 16 * ((WR[k] - X) // 8 + 1) + 1)
        add(pos, (lambda i=i, q=q, k=k: wload(i, q, WR[k])))
    XR, DR, PR, ST = 80, 84, 40, 88
    def y_send():
        a(f"""
        s_lshl_b32 s48, s38, 15
        s_lshl_b32 s49, s34, 12
        s_add_u32 s48, s48, s49
        s_add_u32 s58, s48, {WS_OP}
        s_xor_b32 s57, s58, {8 << 15}
        s_lshl_b32 s48, s38, 7
        s_lshl_b32 s49, s34, 2
        s_add_u32 s48, s48, s49
        s_add_u32 s54, s48, {WS_FL + 8192}
        s_xor_b32 s55, s54, {8 << 7}
        buffer_store_dwordx4 v[{YA}:{YA+3}], v1, s[16:19], s57 offen sc1
        buffer_store_dwordx4 v[{YA+4}:{YA+7}], v1, s[16:19], s57 offen offset:1024 sc1
        """)
        vm.issue("ys", 2)
    add(128 + 3, y_send)
    def o_send():
        a(f"""
        buffer_store_dwordx4 v[{OA}:{OA+3}], v1, s[16:19], s57 offen offset:2048 sc1
        buffer_store_dwordx4 v[{OA+4}:{OA+7}], v1, s[16:19], s57 offen offset:3072 sc1
        """)
        vm.issue("os", 2)
    add(184 + 4, o_send)
    def fin_addr():
        a(f"""
        s_lshl_b32 s48, s32, 7
        s_lshl_b32 s49, s62, 5
        s_add_u32 s48, s48, s49
        v_add_u32 v12, s48, v14
        v_lshlrev_b32 v12, 10, v12
        s_and_b32 s48, s33, 3
        s_lshl_b32 s48, s48, 8
        s_lshl_b32 s49, s34, 5
        s_add_u32 s48, s48, s49
        v_lshl_add_u32 v13, v15, 3, s48
        v_add_u32 v12, v12, v13
        s_movk_i32 s48, 16384
        buffer_load_dwordx2 v[{XR}:{XR+1}], v12, s[4:7], 0 offen
        buffer_load_dwordx2 v[{XR+2}:{XR+3}], v12, s[4:7], s48 offen
        v_lshlrev_b32 v12, 1, v12
        s_lshl_b32 s48, s62, 8
        v_lshl_add_u32 v4, v14, 3, s48
        v_add_u32 v4, {L_ST}, v4
        """)
        vm.issue("x", 2)
        srd(a, 12, 88, 1024)
        srd(a, 8, 90, 2048 * 2048)
        a(f"""
        buffer_load_dwordx2 v[{DR}:{DR+1}], v13, s[12:15], 0 offen
        ds_read_b64 v[{ST}:{ST+1}], v4
        ds_read_b64 v[{ST+2}:{ST+3}], v4 offset:128
        """)
        vm.issue("x"); lg.issue(None, 2)
    add(184 + 12, fin_addr)
    def pr_loads():
        return "\n".join(f"buffer_load_dwordx4 v[{PR+4*k}:{PR+4*k+3}], v1, s[16:19], s58 offen offset:{k*1024} sc1" for k in (2, 3, 0, 1))
    F3, PRI = env("F3", 28), env("PRI", 50)
    def f3_send():
        a(f"""
        v_mov_b32 v9, 1
        v_mov_b32 v8, 0
        s_waitcnt vmcnt({vm.after('os')})
        s_mov_b64 exec, 1
        buffer_store_dword v9, v8, s[16:19], s55 offen sc1
        s_mov_b64 exec, -1
        """)
        vm.issue("f3")
    add(184 + F3, f3_send)
    def pr_issue():
        a("buffer_load_dword v11, v8, s[16:19], s54 offen sc1"); vm.issue("p3")
    add(184 + PRI, pr_issue)
    a(f"s_waitcnt vmcnt({vm.after(('hd', 0))})\ns_barrier")
    stamp(a, 32)
    for n in range(7): bread(n)
    for n in range(N):
        kind, i, tp, tq, hi, lo = seq[n]
        if n < 128 and n % 16 == 0:
            if n: stamp(a, 32 + n // 16)
            tg = ("hd", n // 16 + 1) if n < 112 else None
            w_ = [vm.after(("c", n // 16))]
            if tg: w_.append(vm.after(tg))
            a(f"s_waitcnt vmcnt({min(w_)})\ns_barrier")
        if n + 7 >= 128 and n + 7 < 184 and (n + 7 - 128) % 8 == 0:
            s_ = (n + 7 - 128) // 8
            a(f"s_waitcnt vmcnt({vm.after(('h1d', s_))})\ns_barrier")
        if n >= 128 and n < 184 and (n - 128) % 8 == 0:
            s_ = (n - 128) // 8
            stamp(a, 40 + s_)
            a(f"s_waitcnt vmcnt({vm.after(('w', s_))})")
        if n == 184: stamp(a, 47)
        b = HB + (n % 8) * 4
        a(f"s_waitcnt lgkmcnt({min(15, lg.after(('f', n)))})")
        if kind == "y":
            ac = YA + (tp * 2 + tq) * 4; af = X + 8 * i + 4 * hi
            first = (i == 0 and hi == 0 and lo == 0)
        else:
            ac = OA + (tp * 2 + tq) * 4 if tp == 0 else 56 + tq * 4
            af = WF[(i, 2 * hi + lo)]
            first = (i == 0 and hi == 0 and lo == 0)
        c = "0" if first else f"v[{ac}:{ac+3}]"
        a(f"v_mfma_f32_16x16x32_bf16 v[{ac}:{ac+3}], v[{af}:{af+3}], v[{b}:{b+3}], {c}")
        if n + 7 < N: bread(n + 7)
        for f in ev.get(n, []): f()
    stamp(a, 50)
    OP = 56
    M, XF, XN, DU, TMP, T2 = 104, 112, 120, 128, 132, 136
    def rnd(base, n, tmp):
        for e in range(n // 2): a(f"v_cvt_pk_bf16_f32 v{tmp+e}, v{base+2*e}, v{base+1+2*e}")
        for e in range(n // 2): a(f"v_lshlrev_b32 v{base+2*e}, 16, v{tmp+e}\nv_and_b32 v{base+1+2*e}, 0xffff0000, v{tmp+e}")
    poll(11, 8, "s54", "KF_p3", "p3")
    stamp(a, 52)
    a(pr_loads()); vm.issue("pr", 4)
    a(f"s_waitcnt vmcnt({vm.after('x')}) lgkmcnt(0)")
    for e in range(4):
        a(f"v_lshlrev_b32 v{XF+2*e}, 16, v{XR+e}\nv_and_b32 v{XF+1+2*e}, 0xffff0000, v{XR+e}")
    for e in range(2):
        a(f"v_lshlrev_b32 v{DU+2*e}, 16, v{DR+e}\nv_and_b32 v{DU+1+2*e}, 0xffff0000, v{DR+e}")
    for e in range(8): a(f"v_sub_f32 v{XN+e}, v{XF+e}, v{ST+2*(e>>2)}")
    rnd(XN, 8, TMP)
    for e in range(8): a(f"v_mul_f32 v{XN+e}, v{XN+e}, v{ST+1+2*(e>>2)}")
    rnd(XN, 8, TMP)
    for e in range(8): a(f"v_mul_f32 v{XN+e}, v{XN+e}, v{DU+(e&3)}")
    rnd(XN, 8, TMP)
    a("s_waitcnt vmcnt(0)")
    stamp(a, 51)
    for e in range(8): a(f"v_add_f32 v{OP+e}, v{OP+e}, v{PR+8+e}")
    rnd(OP, 8, TMP)
    for e in range(8): a(f"v_mul_f32 v{T2+e}, s53, v{OP+e}")
    for e in range(8): a(f"v_exp_f32 v{T2+e}, v{T2+e}")
    for e in range(8): a(f"v_add_f32 v{M+e}, v{YA+8+e}, v{PR+e}")
    for e in range(8): a(f"v_add_f32 v{T2+e}, 1.0, v{T2+e}")
    for e in range(8): a(f"v_rcp_f32 v{T2+e}, v{T2+e}")
    for e in range(8): a(f"v_fma_f32 v{M+e}, v{M+e}, 2.0, v{XN+e}")
    for e in range(8): a(f"v_mul_f32 v{OP+e}, v{OP+e}, v{T2+e}")
    rnd(OP, 8, TMP)
    for e in range(8): a(f"v_mul_f32 v{M+e}, v{M+e}, v{OP+e}")
    for e in range(8): a(f"v_add_f32 v{M+e}, v{M+e}, v{XF+e}")
    a(f"""
    s_mov_b32 s48, 32768
    buffer_store_dwordx4 v[{M}:{M+3}], v12, s[8:11], 0 offen
    buffer_store_dwordx4 v[{M+4}:{M+7}], v12, s[8:11], s48 offen
    """)
    if STAMP: a("s_waitcnt vmcnt(0)")
    stamp(a, 53)
    stamp_store(a, 16, 0)
    probe_end(a)
    a("""
    KF_done:
    s_endpgm
    KF_restart:
    s_and_b32 s100, s48, 255
    s_mov_b32 s101, 2
    s_cmp_eq_u32 s48, 2
    s_cselect_b32 s100, s2, s100
    s_cselect_b32 s101, 1, s101
    s_waitcnt vmcnt(0) lgkmcnt(0)
    s_barrier
    s_branch KF_top
    """)
    for t_ in tail: a.raw(t_)

HEADER = open("recurrent_scan__ssm_conv_s5__dense_activation_silu__prompt.s.ref").read().split("; Override launch")[0]

def build():
    a = Asm()
    a.raw(HEADER.rstrip("\n"))
    a.raw(f"; @launch grid=(256,1,1) block=(512,1,1) lds={KF_LDS}")
    a.raw('.amdgcn_target "amdgcn-amd-amdhsa--gfx950"\n.text')
    gen_kf(a)
    a.raw('.section .rodata,"a"\n.p2align 6')
    a.raw(kd(KNAME, 256))
    return a.text()

if __name__ == "__main__":
    STAMP = len(sys.argv) > 2 and "stamp" in sys.argv[2]
    open(sys.argv[1], "w").write(build())
```

```python
import sys, struct
sys.path.insert(0, "dev")
from asmlib import Asm, kd

import os
PAD = int(os.environ.get("PAD", "0"))
ROT = int(os.environ.get("ROT", "1"))
MAP = int(os.environ.get("MAP", "1"))
BU_JS = 8192 + 512 * PAD
BU_SS = 4 * BU_JS + 256 * PAD
FT = 56 * 1024 + 256 * PAD
WS_BU  = 0
WS_H1F = 10 << 20
WS_W2F = 18 << 20
WS_S8X = 20 << 20
WS_E   = 21 << 20
WS_TP  = (21 << 20) + (64 << 10)
WS_TL  = (21 << 20) + (128 << 10)
WS_ST  = (21 << 20) + (192 << 10)
WS_CF  = 22 << 20
WS_FL  = 23 << 20
WS_G   = 26 << 20
WS_DBG = 24 << 20
WS_SIZE = 28 << 20
STAMP = False

PCLK = "s_memrealtime" if os.environ.get("PRT") else "s_memtime"
PROBE = os.environ.get("PROBE")
def probe_end(a):
    if not PROBE: return
    pa, pb, K, w, wg = [int(x) for x in PROBE.split(",")]
    a(f"""
    s_waitcnt vmcnt(0)
    s_cmp_lg_u32 s34, {w}
    s_cbranch_scc1 KF_done
    """)
    if wg >= 0: a(f"s_cmp_lg_u32 s2, {wg}\ns_cbranch_scc1 KF_done")
    if os.environ.get("PWB"): a("s_and_b32 s48, s100, 3\ns_cmp_lg_u32 s48, 0\ns_cbranch_scc1 KF_nwbp\nbuffer_wbl2 sc1\ns_waitcnt vmcnt(0)\nKF_nwbp:")
    if pa == -2:
        a(f"""
        s_mov_b32 s98, {pb}
        KF_prl:
        s_sleep 1
        {PCLK} s[48:49]
        s_waitcnt lgkmcnt(0)
        s_sub_u32 s48, s48, s96
        s_cmp_lt_u32 s48, s98
        s_cbranch_scc1 KF_prl
        """)
        return
    if pa in (-3, -4):
        a(f"""
        s_mov_b64 exec, -1
        v_and_b32 v4, 63, v0
        v_lshlrev_b32 v4, 4, v4
        s_mov_b32 s48, {WS_DBG}
        buffer_load_dwordx4 v[8:11], v4, s[16:19], s48 offen sc1
        s_waitcnt vmcnt(0)
        v_subrev_u32 v8, s96, v8
        v_subrev_u32 v9, s96, v9
        v_subrev_u32 v10, s96, v10
        v_subrev_u32 v11, s96, v11
        v_min_i32 v12, v8, v9
        v_min3_i32 v12, v12, v10, v11
        v_max_i32 v13, v8, v9
        v_max3_i32 v13, v13, v10, v11
        s_mov_b32 s50, 0
        s_mov_b32 s51, 0
        s_nop 4
        """)
        for l in range(64):
            a(f"v_readlane_b32 s48, v12, {l}\nv_readlane_b32 s49, v13, {l}\ns_nop 3\ns_min_i32 s50, s50, s48\ns_max_i32 s51, s51, s49")
        if pa == -3: a("s_sub_u32 s98, s51, s50")
        else: a("s_sub_u32 s98, 0, s50")
        a(f"s_mul_i32 s98, s98, {pb}")
    elif pa < 0: a(f"s_mov_b32 s98, {pb}")
    else: a(f"s_sub_u32 s98, s98, s96\ns_mul_i32 s98, s98, {K}")
    a(f"""
    s_min_u32 s98, s98, {20000 if os.environ.get("PRT") else 400000}
    {PCLK} s[96:97]
    s_waitcnt lgkmcnt(0)
    KF_prl:
    s_sleep 1
    {PCLK} s[48:49]
    s_waitcnt lgkmcnt(0)
    s_sub_u32 s48, s48, s96
    s_cmp_lt_u32 s48, s98
    s_cbranch_scc1 KF_prl
    """)
def stamp(a, i):
    if PROBE:
        pa, pb = [int(x) for x in PROBE.split(",")[:2]]
        if pa in (-2, -3, -4) and i == 30: a(PCLK + " s[96:97]\ns_waitcnt lgkmcnt(0)")
        if pa >= 0 and i == pa: a(PCLK + " s[96:97]\ns_waitcnt lgkmcnt(0)")
        if pa >= 0 and i == pb:
            if i == 53: a("s_waitcnt vmcnt(0)")
            a(PCLK + " s[98:99]\ns_waitcnt lgkmcnt(0)")
        return
    if not STAMP: return
    a(f"""
    s_memtime s[96:97]
    s_waitcnt lgkmcnt(0)
    v_writelane_b32 v255, s96, {i}
    """)

def rstamp(a, i):
    if not STAMP: return
    a(f"""
    s_memrealtime s[96:97]
    s_waitcnt lgkmcnt(0)
    v_writelane_b32 v255, s96, {i}
    """)

def stamp_store(a, srd, k):
    if not STAMP: return
    rstamp(a, 63)
    a(f"""
    s_mov_b64 exec, -1
    v_and_b32 v254, 63, v0
    v_lshlrev_b32 v254, 2, v254
    s_lshl_b32 s96, s2, 3
    s_add_u32 s96, s96, s34
    s_lshl_b32 s96, s96, 8
    s_add_u32 s96, s96, {WS_DBG + k * (1 << 20)}
    buffer_store_dword v255, v254, s[{srd}:{srd+3}], s96 offen
    """)

def srd(a, d, base, nbytes):
    a(f"""
    s_mov_b32 s{d}, s{base}
    s_and_b32 s{d+1}, s{base+1}, 0xffff
    s_mov_b32 s{d+2}, {nbytes}
    s_mov_b32 s{d+3}, 0x00020000
    """)

def f2u(x):
    return struct.unpack("<I", struct.pack("<f", x))[0]

def cplx_sq(a, d, s, t):
    a(f"""
    v_mul_f32 v{t}, v{s+1}, v{s+1}
    v_mul_f32 v{d+1}, v{s}, v{s+1}
    v_fma_f32 v{d}, v{s}, v{s}, -v{t}
    v_add_f32 v{d+1}, v{d+1}, v{d+1}
    """)

def cmul_acc(a, d, x, m, add):
    if add is None:
        a(f"v_pk_mul_f32 v[{d}:{d+1}], v[{x}:{x+1}], v[{m}:{m+1}] op_sel_hi:[1,0]")
    else:
        a(f"v_pk_fma_f32 v[{d}:{d+1}], v[{x}:{x+1}], v[{m}:{m+1}], v[{add}:{add+1}] op_sel_hi:[1,0,1]")
    a(f"v_pk_fma_f32 v[{d}:{d+1}], v[{x}:{x+1}], v[{m}:{m+1}], v[{d}:{d+1}] op_sel:[1,1,0] op_sel_hi:[0,1,1] neg_lo:[0,1,0]")

class Cnt:
    def __init__(self): self.n = 0; self.tags = {}
    def issue(self, tag=None, k=1):
        self.n += k
        if tag is not None: self.tags[tag] = self.n
    def after(self, tag): return self.n - self.tags[tag]
    def copy(self):
        c = Cnt(); c.n = self.n; c.tags = dict(self.tags); return c

def interleave(a, main, fill, lead=0):
    k = 0
    for l in fill[:lead]: a(l)
    k = lead
    n = len(main)
    rest = len(fill) - k
    for i, m in enumerate(main):
        a(m)
        tgt = lead + (rest * (i + 1)) // n
        while k < tgt:
            a(fill[k]); k += 1


def probe_mid(a):
    if not PROBE: return
    pa = int(PROBE.split(",")[0])
    if pa not in (-3, -4): return
    a(f"""
    s_lshl_b32 s48, s2, 2
    s_add_u32 s48, s48, {WS_DBG}
    v_mov_b32 v8, s96
    v_mov_b32 v3, 0
    s_mov_b64 exec, 1
    buffer_store_dword v8, v3, s[16:19], s48 offen sc1
    s_mov_b64 exec, -1
    """)
L_M = 131072
L_TAB, L_ST, L_Z, L_E16, L_HIN, L_CNT = (L_M, L_M + 20480, L_M + 21504, L_M + 23552, L_M + 25600, L_M + 25856)
KF_LDS = 163840
WS_HF = 0
WS_OP = 26 << 20
WS_TK = WS_FL + 65536
WS_SIZE = 40 << 20
SPIN = 0x4000
KNAME = "recurrent_scan__ssm_conv_s5__dense_activation_silu__prompt_kernel"
def env(n, d): return int(os.environ.get(n, str(d)))
FORCE = env("FORCE", 0)
TOUCH = env("TOUCH", 1)

def gen_kf(a):
    X, MR, NM, TM = 16, 80, 84, 88
    ACC, BF = 104, 132
    ACCB, BB = 132, 148
    U, Q, MM, LAM, COEF, L4, L16, G1, GG = 164, 180, 184, 188, 192, 196, 200, 204, 208
    WA, WB = 212, 216
    VF, VW, VC, VW2, VH, VP = 220, 234, 236, 238, 240, 242
    SELR, VA, W2R, CRR, VXS, VXR, VB, VT = 104, 110, 116, 120, 124, 126, 128, 129
    vm = Cnt()
    _af = vm.after
    vm.after = lambda tg: min(63, _af(tg))
    tail = []
    ndual = [0]
    def dual(lines):
        k = ndual[0]; ndual[0] += 1
        a(f"s_cmp_lg_u32 s101, 0\ns_cbranch_scc1 KF_alt{k}")
        for l in lines: a(l + (" " + os.environ.get("HSB", "") if "dwordx" in l else ""))
        a.raw(f"KF_j{k}:")
        tail.append(f"KF_alt{k}:\n    s_nop 7\n    s_nop 7\n" + "".join(f"    {l} sc1\n" for l in lines) + f"    s_nop 7\n    s_branch KF_j{k}")
    a.raw(f".globl {KNAME}\n.p2align 8\n.type {KNAME},@function\n{KNAME}:")
    a("""
    s_cmp_ge_u32 s2, 256
    s_cbranch_scc1 KF_done
    """)
    rstamp(a, 62)
    stamp(a, 30)
    a(f"""
    s_getreg_b32 s3, hwreg(HW_REG_XCC_ID, 0, 3)
    s_mov_b32 s101, 0                       ; mode
    KF_top:
    s_load_dwordx16 s[72:87], s[0:1], 0
    s_load_dwordx4 s[88:91], s[0:1], 80     ; w1 w2
    s_load_dwordx4 s[92:95], s[0:1], 104
    v_lshrrev_b32 v1, 6, v0
    v_and_b32 v2, 63, v0                    ; lane
    v_readfirstlane_b32 s34, v1             ; wave
    v_and_b32 v14, 15, v2                   ; n
    v_lshrrev_b32 v15, 4, v2                ; g
    v_lshlrev_b32 v1, 4, v2                 ; lane*16
    s_and_b32 s35, s34, 3
    s_lshr_b32 s36, s34, 2
    s_lshl_b32 s51, s34, 10                 ; wave*1024
    s_lshl_b32 s52, s34, 14                 ; region
    s_cmp_lg_u32 s34, 2
    s_cbranch_scc1 KF_nz0
    v_mov_b32 v16, 0
    v_mov_b32 v17, 0
    v_mov_b32 v18, 0
    v_mov_b32 v19, 0
    v_add_u32 v9, {L_Z}, v1
    ds_write_b128 v9, v[16:19]
    ds_write_b128 v9, v[16:19] offset:1024
    v_mov_b32 v9, {L_CNT}
    ds_write_b128 v9, v[16:19]
    ds_write_b128 v9, v[16:19] offset:16
    KF_nz0:
    s_and_b32 s63, s3, 1
    s_bfe_u32 s48, s2, 0x10005
    s_cmp_lg_u32 s101, 0
    s_cselect_b32 s63, s48, s63
    s_lshl_b32 s48, s63, 9
    v_lshl_add_u32 v5, v0, 1, s48
    s_lshl_b32 s57, s2, 3
    s_add_u32 s57, s57, s34                 ; b
    s_sub_u32 s48, s57, 256
    s_cmp_ge_u32 s57, 1792
    s_cselect_b32 s57, s48, s57
    s_lshr_b32 s58, s57, 5                  ; kstep
    s_and_b32 s59, s57, 31                  ; dtile
    v_lshrrev_b32 v12, 1, v2
    v_lshlrev_b32 v12, 10, v12
    v_and_b32 v13, 1, v2
    v_lshl_add_u32 v12, v13, 4, v12
    v_lshlrev_b32 v13, 10, v14
    v_lshl_add_u32 v13, v15, 4, v13
    v_mov_b32 v4, 31
    v_mov_b32 v8, 0
    v_lshlrev_b32 v3, 7, v2                 ; lane*128
    v_mov_b32 v244, 0
    v_mov_b32 v245, 0
    v_mov_b32 v246, 0
    v_mov_b32 v247, 0
    s_lshr_b32 s48, s34, 1
    s_mul_i32 s49, s48, 58
    s_add_u32 s49, s49, 37
    s_mul_i32 s49, s49, s2
    s_lshr_b32 s49, s49, 5
    s_lshr_b32 s50, s2, 3
    s_cmp_eq_u32 s48, 0
    s_cselect_b32 s49, s50, s49
    s_and_b32 s49, s49, 31
    s_lshl_b32 s49, s49, 1
    s_and_b32 s48, s34, 1
    s_add_u32 s49, s49, s48
    s_lshl_b32 s60, s49, 13                 ; x group * 8192
    s_lshr_b32 s48, s3, 1
    s_lshl_b32 s48, s48, 19
    s_add_u32 s60, s60, s48
    s_mul_i32 s49, s35, 58
    s_add_u32 s49, s49, 37
    s_mul_i32 s49, s49, s2
    s_lshr_b32 s49, s49, 5
    s_cmp_eq_u32 s35, 0
    s_cselect_b32 s49, s50, s49
    s_and_b32 s49, s49, 31
    s_lshl_b32 s61, s49, 13                 ; B group * 8192
    s_lshl_b32 s48, s63, 18
    s_add_u32 s61, s61, s48
    """)
    if STAMP: a("s_memtime s[98:99]")
    a("s_waitcnt lgkmcnt(0)")
    if STAMP: a("v_writelane_b32 v255, s98, 31")
    WSOFF = env("WSOFF", 0)
    if WSOFF: a(f"s_add_u32 s94, s94, {WSOFF << 20}\ns_addc_u32 s95, s95, 0")
    srd(a, 16, 94, WS_SIZE)
    a(f"""
    s_xor_b32 s48, s34, 4
    s_or_b32 s48, s48, s101
    s_cmp_lg_u32 s48, 0
    s_cbranch_scc1 KF_nt0
    s_lshl_b32 s48, s3, 12
    s_add_u32 s48, s48, {WS_TK}
    s_mov_b64 exec, 1
    buffer_atomic_inc v4, v8, s[16:19], s48 offen sc0 sc1
    s_mov_b64 exec, -1
    KF_nt0:
    s_barrier
    """)
    stamp(a, 0)
    srd(a, 8, 74, 1024)
    srd(a, 12, 76, 1024)
    srd(a, 24, 86, 1024)
    srd(a, 28, 90, 1792 * 1024)
    a(f"""
    s_cmp_lg_u32 s36, 0
    s_cbranch_scc1 KF_np
    buffer_load_ushort v6, v5, s[8:11], 0 offen
    buffer_load_ushort v7, v5, s[12:15], 0 offen
    buffer_load_ushort v11, v5, s[24:27], 0 offen
    KF_np:
    s_lshl_b32 s48, s58, 15
    s_lshl_b32 s49, s59, 5
    s_add_u32 s48, s48, s49
    buffer_load_dwordx4 v[{W2R}:{W2R+3}], v12, s[28:31], s48 offen
    s_bitcmp0_b32 s2, 1
    s_cselect_b32 s48, s82, s84
    s_cselect_b32 s49, s83, s85
    """)
    vm.issue("w2r")
    srd(a, 24, 48, 512 * 1024)
    a(f"""
    s_cmp_eq_u32 s36, 0
    s_cbranch_scc1 KF_nc0
    s_lshr_b32 s48, s2, 6                   ; cq
    s_lshl_b32 s48, s48, 3
    s_and_b32 s49, s2, 1
    s_lshl_b32 s49, s49, 2
    s_add_u32 s48, s48, s49
    s_add_u32 s48, s48, s35                 ; d tile
    s_lshl_b32 s48, s48, 14
    s_bfe_u32 s49, s2, 0x40002
    s_lshl_b32 s49, s49, 6
    s_add_u32 s48, s48, s49
    buffer_load_dwordx4 v[{CRR}:{CRR+3}], v13, s[24:27], s48 offen
    KF_nc0:
    """)
    srd(a, 4, 72, 2048 * 1024)
    srd(a, 20, 92, 256)
    a("""
    s_cmp_lt_u32 s34, 4
    s_cselect_b32 s48, s78, s80
    s_cselect_b32 s49, s79, s81
    """)
    srd(a, 8, 48, 512 * 1024)
    srd(a, 12, 88, 512 * 3584)
    if TOUCH:
        a("buffer_load_dword v16, v3, s[4:7], s60 offen\nbuffer_load_dword v17, v3, s[8:11], s61 offen")
        vm.issue("tch", 2)
    a(f"""
    v_lshrrev_b32 v9, 3, v2                 ; r8
    v_and_b32 v10, 7, v2                    ; slot
    v_lshrrev_b32 v12, 1, v9
    v_xor_b32 v13, v12, v10
    v_lshlrev_b32 v{VXS}, 10, v9
    v_lshl_add_u32 v{VXS}, v13, 4, v{VXS}
    v_xor_b32 v13, 4, v13
    v_lshlrev_b32 v{VXS+1}, 10, v9
    v_lshl_add_u32 v{VXS+1}, v13, 4, v{VXS+1}
    v_add_u32 v{VXS+1}, 8192, v{VXS+1}
    s_and_b32 s48, s34, 1
    s_lshl_b32 s48, s48, 2
    v_or_b32 v12, s48, v12
    v_xor_b32 v12, v12, v10
    s_lshl_b32 s48, s35, 3
    v_add_u32 v13, s48, v9
    v_lshlrev_b32 v13, 10, v13
    v_lshl_add_u32 v{VB}, v12, 4, v13
    v_bfe_u32 v12, v14, 1, 3                ; key = (n>>1)&7
    v_xor_b32 v12, v12, v15                 ; g ^ key
    v_lshlrev_b32 v13, 7, v14
    v_add_u32 v13, s52, v13
    v_lshl_add_u32 v{VXR}, v12, 4, v13
    v_xor_b32 v{VXR+1}, 64, v{VXR}
    v_and_b32 v13, 7, v14
    v_lshlrev_b32 v13, 7, v13
    v_lshrrev_b32 v9, 3, v14
    v_lshl_add_u32 v13, v9, 14, v13
    v_lshl_add_u32 v{VA}, v12, 4, v13
    v_xor_b32 v{VA+1}, 64, v{VA}
    v_add_u32 v{VA+2}, 65536, v{VA}
    v_add_u32 v{VA+3}, 65536, v{VA+1}
    s_and_b32 s48, s34, 1
    s_lshl_b32 s48, s48, 2
    v_or_b32 v13, s48, v15                  ; s(k)
    v_bfe_u32 v9, v2, 1, 3                  ; pair'
    v_xor_b32 v13, v13, v9                  ; pair
    v_lshlrev_b32 v13, 5, v13
    v_and_b32 v9, 1, v2
    v_lshl_add_u32 v13, v9, 4, v13
    s_lshl_b32 s48, s34, 3
    v_add_u32 v12, s48, v15                 ; k local (j=0)
    s_movk_i32 s49, 3584
    v_mul_lo_u32 v12, v12, s49
    v_add_u32 v{VW}, v12, v13
    v_lshrrev_b32 v9, 2, v14                ; m>>2
    v_cmp_eq_u32 vcc, v9, v15
    v_and_b32 v9, 1, v14
    v_lshlrev_b32 v9, 4, v9
    v_mov_b32 v10, 0x3f80
    v_lshlrev_b32 v9, v9, v10
    v_cndmask_b32 v9, 0, v9, vcc
    v_and_b32 v10, 2, v14
    v_cmp_eq_u32 vcc, 0, v10
    v_cndmask_b32 v{SELR+2}, 0, v9, vcc
    v_cndmask_b32 v{SELR+3}, v9, 0, vcc
    v_mov_b32 v{SELR}, 0
    v_mov_b32 v{SELR+1}, 0
    v_mov_b32 v{SELR+4}, 0
    v_mov_b32 v{SELR+5}, 0
    s_cmp_lg_u32 s34, 4
    s_cbranch_scc1 KF_nt1
    s_waitcnt vmcnt({vm.n + 1})
    v_readfirstlane_b32 s48, v4
    s_min_u32 s48, s48, 31
    s_lshl_b32 s49, s3, 5
    s_add_u32 s49, s49, s48
    s_cmp_lg_u32 s101, 0
    s_cselect_b32 s49, s2, s49
    s_add_u32 s49, s49, 1
    v_mov_b32 v4, s49
    v_mov_b32 v8, {L_CNT}
    ds_write_b32 v8, v4
    KF_nt1:
    """)
    a(f"""
    v_add_u32 v8, s52, v1
    v_bfe_u32 v9, v2, 2, 2
    v_lshl_add_u32 v9, v15, 2, v9           ; 4g + r
    v_lshlrev_b32 v9, 5, v9
    v_and_b32 v10, 3, v2
    v_lshl_add_u32 v9, v10, 3, v9
    v_add_u32 v9, s52, v9
    s_waitcnt vmcnt({2 if TOUCH else 0})
    """)
    a(f"""
    ds_write_b128 v8, v[{W2R}:{W2R+3}]
    ds_read_b64_tr_b16 v[{W2R}:{W2R+1}], v9
    ds_read_b64_tr_b16 v[{W2R+2}:{W2R+3}], v9 offset:512
    s_cmp_eq_u32 s36, 0
    s_cbranch_scc1 KF_nc1
    s_lshl_b32 s48, s2, 12
    s_lshl_b32 s49, s35, 10
    s_add_u32 s48, s48, s49
    s_add_u32 s48, s48, {WS_CF}
    buffer_store_dwordx4 v[{CRR}:{CRR+3}], v1, s[16:19], s48 offen sc1
    KF_nc1:
    s_mul_i32 s48, s59, {FT}
    s_lshl_b32 s49, s58, 10
    s_add_u32 s48, s48, s49
    s_add_u32 s48, s48, {WS_W2F}
    v_mov_b32 v20, -1
    v_mov_b32 v21, -1
    v_mov_b32 v22, -1
    v_mov_b32 v23, -1
    s_waitcnt lgkmcnt(0)
    buffer_store_dwordx4 v[{W2R}:{W2R+3}], v1, s[16:19], s48 offen sc1
    s_cmp_lg_u32 s34, 5
    s_cbranch_scc1 KF_nz
    v_mov_b32 v4, 0
    s_and_b32 s48, s2, 15
    s_lshl_b32 s48, s48, 12
    s_lshr_b32 s49, s2, 4
    s_lshl_b32 s49, s49, 8
    s_add_u32 s48, s48, s49
    s_add_u32 s48, s48, {WS_E}
    s_bfe_u32 s50, s2, 0x10003
    s_lshl_b32 s50, s50, 7
    s_add_u32 s49, s49, s50
    s_and_b32 s50, s2, 7
    s_lshl_b32 s50, s50, 2
    s_add_u32 s49, s49, s50
    s_add_u32 s49, s49, {WS_FL}
    s_add_u32 s50, s49, 4096
    s_mov_b64 exec, 0xffff
    buffer_store_dwordx4 v[20:23], v1, s[16:19], s48 offen sc1
    s_mov_b64 exec, 1
    buffer_store_dword v4, v4, s[16:19], s49 offen sc1
    buffer_store_dword v4, v4, s[16:19], s50 offen sc1
    s_lshl_b32 s48, s2, 7
    s_add_u32 s48, s48, {WS_FL + 8192}
    s_mov_b64 exec, 0xff
    v_lshlrev_b32 v8, 2, v2
    buffer_store_dword v4, v8, s[16:19], s48 offen sc1
    s_mov_b64 exec, -1
    KF_nz:
    """)
    vm.issue("sts", 1)
    stamp(a, 1)
    T0 = 136
    def t(i): return T0 + i
    a(f"""
    s_cmp_lg_u32 s36, 0
    s_cbranch_scc1 KF_ntab
    v_lshlrev_b32 v{t(1)}, 16, v7               ; Lim
    v_lshlrev_b32 v{t(0)}, 16, v6               ; Lre
    v_lshlrev_b32 v{t(2)}, 16, v11              ; log_dt
    v_mul_f32 v{t(2)}, {f2u(1.4426950408889634):#x}, v{t(2)}
    v_exp_f32 v{t(2)}, v{t(2)}
    v_cvt_pk_bf16_f32 v{t(2)}, v{t(2)}, v{t(2)}
    v_lshlrev_b32 v{t(2)}, 16, v{t(2)}
    v_mul_f32 v{t(3)}, v{t(2)}, v{t(0)}                 ; a
    v_mul_f32 v{t(4)}, v{t(2)}, v{t(1)}                 ; b
    v_mul_f32 v{t(3)}, {f2u(1.4426950408889634):#x}, v{t(3)}
    v_exp_f32 v{t(3)}, v{t(3)}                      ; e^a
    v_mul_f32 v{t(5)}, {f2u(0.6366197723675814):#x}, v{t(4)}
    v_rndne_f32 v{t(5)}, v{t(5)}                    ; n
    v_mov_b32 v{t(6)}, {f2u(1.5703125):#x}
    v_fma_f32 v{t(4)}, -v{t(5)}, v{t(6)}, v{t(4)}
    v_mov_b32 v{t(6)}, {f2u(4.837512969970703125e-4):#x}
    v_fma_f32 v{t(4)}, -v{t(5)}, v{t(6)}, v{t(4)}
    v_mov_b32 v{t(6)}, {f2u(7.54978995489188216e-8):#x}
    v_fma_f32 v{t(4)}, -v{t(5)}, v{t(6)}, v{t(4)}           ; r
    v_cvt_i32_f32 v{t(5)}, v{t(5)}                  ; q
    v_mul_f32 v{t(6)}, v{t(4)}, v{t(4)}                 ; z
    v_mov_b32 v{t(7)}, {f2u(-1.9515295891e-4):#x}
    v_mov_b32 v{t(8)}, {f2u(8.3321608736e-3):#x}
    v_fma_f32 v{t(7)}, v{t(7)}, v{t(6)}, v{t(8)}
    v_mov_b32 v{t(8)}, {f2u(-1.6666654611e-1):#x}
    v_fma_f32 v{t(7)}, v{t(7)}, v{t(6)}, v{t(8)}
    v_mul_f32 v{t(7)}, v{t(7)}, v{t(6)}
    v_fma_f32 v{t(7)}, v{t(7)}, v{t(4)}, v{t(4)}            ; sin r
    v_mov_b32 v{t(8)}, {f2u(2.443315711809948e-5):#x}
    v_mov_b32 v{t(9)}, {f2u(-1.388731625493765e-3):#x}
    v_fma_f32 v{t(8)}, v{t(8)}, v{t(6)}, v{t(9)}
    v_mov_b32 v{t(9)}, {f2u(4.166664568298827e-2):#x}
    v_fma_f32 v{t(8)}, v{t(8)}, v{t(6)}, v{t(9)}
    v_mul_f32 v{t(8)}, v{t(8)}, v{t(6)}
    v_fma_f32 v{t(8)}, v{t(8)}, v{t(6)}, 1.0
    v_fma_f32 v{t(8)}, v{t(6)}, -0.5, v{t(8)}           ; cos r
    v_and_b32 v{t(9)}, 1, v{t(5)}
    v_cmp_eq_u32 vcc, 1, v{t(9)}
    v_cndmask_b32 v{t(10)}, v{t(7)}, v{t(8)}, vcc
    v_cndmask_b32 v{t(11)}, v{t(8)}, v{t(7)}, vcc
    v_lshlrev_b32 v{t(9)}, 30, v{t(5)}
    v_and_b32 v{t(9)}, 0x80000000, v{t(9)}
    v_xor_b32 v{t(10)}, v{t(10)}, v{t(9)}                 ; sin b
    v_add_u32 v{t(9)}, 1, v{t(5)}
    v_lshlrev_b32 v{t(9)}, 30, v{t(9)}
    v_and_b32 v{t(9)}, 0x80000000, v{t(9)}
    v_xor_b32 v{t(11)}, v{t(11)}, v{t(9)}                 ; cos b
    v_mul_f32 v{t(12)}, v{t(3)}, v{t(11)}
    v_mul_f32 v{t(13)}, v{t(3)}, v{t(10)}
    v_lshrrev_b32 v4, 5, v0
    v_lshlrev_b32 v4, 8, v4
    v_lshl_add_u32 v4, v14, 4, v4
    v_and_b32 v8, 1, v15
    v_lshl_add_u32 v4, v8, 3, v4
    v_add_u32 v4, {L_TAB}, v4
    ds_write_b64 v4, v[{t(12)}:{t(13)}]
    """)
    P = {1: t(12)}
    for k in range(1, 8):
        P[1 << k] = t(14 + 2 * k)
        cplx_sq(a, P[1 << k], P[1 << (k - 1)], t(30))
        ent = {2: 2, 3: 3, 4: 5, 5: 6, 6: 8, 7: 9}.get(k)
        if ent is not None: a(f"ds_write_b64 v4, v[{P[1<<k]}:{P[1<<k]+1}] offset:{ent*2048}")
    cmul_acc(a, t(32), P[4], P[8], None); a(f"ds_write_b64 v4, v[{t(32)}:{t(33)}] offset:{4*2048}")
    cmul_acc(a, t(34), P[16], P[32], None); a(f"ds_write_b64 v4, v[{t(34)}:{t(35)}] offset:{7*2048}")
    a(f"""
    v_add_f32 v{t(4)}, -1.0, v{t(12)}                ; Lr-1
    v_mul_f32 v{t(5)}, v{t(13)}, v{t(1)}
    v_fma_f32 v{t(5)}, v{t(4)}, v{t(0)}, v{t(5)}
    v_mul_f32 v{t(6)}, v{t(4)}, v{t(1)}
    v_fma_f32 v{t(6)}, v{t(13)}, v{t(0)}, -v{t(6)}
    v_mul_f32 v{t(7)}, v{t(1)}, v{t(1)}
    v_fma_f32 v{t(7)}, v{t(0)}, v{t(0)}, v{t(7)}            ; den
    v_rcp_f32 v{t(8)}, v{t(7)}
    v_fma_f32 v{t(9)}, -v{t(7)}, v{t(8)}, 2.0
    v_mul_f32 v{t(8)}, v{t(8)}, v{t(9)}
    v_mul_f32 v{t(14)}, v{t(5)}, v{t(8)}
    v_mul_f32 v{t(15)}, v{t(6)}, v{t(8)}
    ds_write_b64 v4, v[{t(14)}:{t(15)}] offset:2048
    KF_ntab:
    """)
    stamp(a, 28)
    a(f"""
    v_mov_b32 v8, {L_CNT}
    s_mov_b32 s61, 0x100000
    KF_tkl:
    ds_read_b32 v4, v8
    s_waitcnt lgkmcnt(0)
    v_readfirstlane_b32 s100, v4
    s_cmp_lg_u32 s100, 0
    s_cbranch_scc1 KF_tkd
    s_sub_u32 s61, s61, 1
    s_cbranch_scc0 KF_tkl
    KF_tkd:
    s_sub_u32 s100, s100, 1
    s_and_b32 s100, s100, 255               ; slot
    """)
    stamp(a, 29)
    a(f"""
    s_bfe_u32 s32, s100, 0x20006
    s_lshl_b32 s32, s32, 2
    s_and_b32 s48, s100, 3
    s_add_u32 s32, s32, s48
    s_bfe_u32 s33, s100, 0x10005
    s_lshl_b32 s33, s33, 3
    s_bfe_u32 s48, s100, 0x30002
    s_add_u32 s33, s33, s48
    s_lshl_b32 s48, s32, 17
    s_add_u32 s48, s48, s52
    v_add_u32 v{VXS}, s48, v{VXS}
    v_add_u32 v{VXS+1}, s48, v{VXS+1}
    s_and_b32 s48, s32, 3
    s_lshl_b32 s48, s48, 1
    s_add_u32 s50, s33, s48
    """)
    for pos in range(8):
        a(f"s_add_u32 s48, s50, {pos}\ns_and_b32 s48, s48, 7\ns_lshl_b32 s{64+pos}, s48, 7")
        for hh in range(2):
            a(f"""
            s_add_u32 m0, s52, {pos * 2048 + hh * 1024}
            s_nop 0
            buffer_load_dwordx4 v{VXS+hh}, s[4:7], s{64+pos} offen lds
            """)
            vm.issue(("x", pos))
    stamp(a, 16)
    a(f"""
    s_lshl_b32 s48, s33, 15
    v_add_u32 v{VB}, s48, v{VB}
    s_mul_i32 s48, s33, 224
    v_add_u32 v{VW}, s48, v{VW}
    s_lshl_b32 s37, s32, 8
    s_lshl_b32 s48, s63, 7
    s_add_u32 s37, s37, s48
    s_add_u32 s39, s37, {WS_FL}
    s_and_b32 s48, s33, 7
    s_lshl_b32 s48, s48, 2
    s_add_u32 s37, s39, s48
    s_lshl_b32 s38, s32, 4
    s_add_u32 s38, s38, s33
    s_lshl_b32 s47, s33, 12
    s_lshl_b32 s48, s32, 8
    s_add_u32 s47, s47, s48
    s_add_u32 s47, s47, {WS_E}
    s_and_b32 s48, s33, 7
    s_lshl_b32 s48, s48, 8
    s_add_u32 s48, s48, {L_TAB}
    v_lshl_add_u32 v{VT}, v14, 4, s48
    v_bfe_u32 v12, v2, 2, 2                 ; r
    v_and_b32 v13, 1, v15
    v_lshl_or_b32 v13, v13, 2, v12          ; sw
    v_lshlrev_b32 v12, 8, v12
    v_lshl_add_u32 v12, v15, 14, v12        ; g*16384 + r*256
    v_and_b32 v4, 3, v2
    v_lshl_add_u32 v12, v4, 3, v12          ; + c*8
    s_and_b32 s54, s33, 1                   ; par
    s_cmp_lg_u32 s54, 0
    s_cselect_b32 s56, 0, 6
    """)
    for p in range(7):
        if p < 6: a(f"s_add_u32 s48, s54, {p}")
        sreg = "s48" if p < 6 else "s56"
        a(f"v_xor_b32 v4, {sreg}, v13\nv_lshl_add_u32 v{VF+p}, v4, 5, v12\nv_add_u32 v{VF+7+p}, 65536, v{VF+p}")
    def sto(st): return 8192 + st * 2048 if st < 4 else (st - 4) * 2048
    def dma_piece(st, i):
        base = sto(st)
        if i == 0:
            a(f"""
            s_add_u32 m0, s52, {base}
            s_mul_i32 s49, s{64+st}, 1792
            buffer_load_dwordx4 v{VW}, s[12:15], s49 offen lds
            """)
        else:
            a(f"""
            s_mul_i32 s49, s{64+st}, 1792
            s_add_u32 m0, s52, {base + 1024}
            s_add_u32 s49, s49, {4 * 3584}
            buffer_load_dwordx4 v{VW}, s[12:15], s49 offen lds
            """)
        vm.issue(("dma", st), 1)
    def bdma(s):
        a(f"""
        s_add_u32 m0, s52, {s * 1024}
        s_nop 0
        buffer_load_dwordx4 v{VB}, s[8:11], s{64+s} offen lds
        """)
        vm.issue("bdma", 1)
    def arrive(word, reg):
        a(f"""
        v_mov_b32 v8, {L_CNT + word}
        v_mov_b32 v9, 1
        s_mov_b64 exec, 1
        ds_add_rtn_u32 v{reg}, v8, v9
        s_mov_b64 exec, -1
        """)
    S1, S2 = TM, TM + 2
    a("s_mov_b32 s53, 0x3f803f80")
    def xread(c):
        a(f"s_waitcnt vmcnt({vm.after(('x', c))})")
        for h in range(2):
            r = X + (c * 2 + h) * 4
            a(f"ds_read_b128 v[{r}:{r+3}], v{VXR+h} offset:{c*2048}")
    xread(0)
    arrive(8, 10)
    for c in range(8):
        if c < 7: xread(c + 1)
        stamp(a, 20 + c)
        a(f"s_waitcnt lgkmcnt({2 if c < 7 else 0})")
        if c < 4:
            bdma(2 * c); bdma(2 * c + 1)
        else:
            dma_piece(c - 4, 0); dma_piece(c - 4, 1)
        if c == 0:
            a(f"""
            v_readfirstlane_b32 s48, v10
            s_cmp_lg_u32 s48, 7
            s_cbranch_scc1 KF_narr
            s_lshl_b32 s48, s101, 4
            s_add_u32 s48, s48, s3
            {'s_cmp_eq_u32 s2, 0' if FORCE else ''}
            {'s_cselect_b32 s49, 1, 0' if FORCE else ''}
            {'s_xor_b32 s48, s48, s49' if FORCE else ''}
            s_add_u32 s48, s48, 1
            v_mov_b32 v9, s48
            v_mov_b32 v8, s2
            s_mov_b64 exec, 1
            buffer_store_byte v9, v8, s[20:23], 0 offen sc1
            s_mov_b64 exec, -1
            KF_narr:
            """)
        for d in range(8):
            x = X + c * 8 + d
            s1 = S1 + (d & 1); s2 = S2 + (d & 1)
            first = (c == 0 and d < 2)
            a(f"v_dot2_f32_bf16 v{s1}, v{x}, s53, {'0' if first else 'v%d' % s1}")
            a(f"v_dot2_f32_bf16 v{s2}, v{x}, v{x}, {'0' if first else 'v%d' % s2}")
    stamp(a, 2)
    Qs = TM + 8
    a(f"""
    v_add_f32 v{Qs}, v{S1}, v{S1+1}
    v_add_f32 v{Qs+1}, v{S2}, v{S2+1}
    """)
    for op in ("v_permlane16_swap_b32", "v_permlane32_swap_b32"):
        a(f"""
        v_mov_b32 v{Qs+2}, v{Qs}
        v_mov_b32 v{Qs+3}, v{Qs+1}
        {op} v{Qs}, v{Qs+2}
        {op} v{Qs+1}, v{Qs+3}
        v_add_f32 v{Qs}, v{Qs}, v{Qs+2}
        v_add_f32 v{Qs+1}, v{Qs+1}, v{Qs+3}
        """)
    a(f"""
    v_mul_f32 v{Qs}, {f2u(1/512):#x}, v{Qs}
    v_mul_f32 v{Qs+1}, {f2u(1/512):#x}, v{Qs+1}
    v_fma_f32 v{Qs+1}, -v{Qs}, v{Qs}, v{Qs+1}
    v_max_f32 v{Qs+1}, 0, v{Qs+1}
    v_cvt_pk_bf16_f32 v{Qs+2}, v{Qs}, v{Qs+1}
    v_lshlrev_b32 v{MR}, 16, v{Qs+2}
    v_and_b32 v{Qs+1}, 0xffff0000, v{Qs+2}
    v_xor_b32 v{NM}, 0x80000000, v{MR}
    v_add_f32 v{Qs+1}, {f2u(1e-5):#x}, v{Qs+1}
    v_mov_b32 v{NM+1}, v{NM}
    v_cvt_pk_bf16_f32 v{Qs+1}, v{Qs+1}, v{Qs+1}
    v_mov_b32 v{NM+2}, v{NM}
    v_lshlrev_b32 v{Qs+1}, 16, v{Qs+1}
    v_mov_b32 v{NM+3}, v{NM}
    v_sqrt_f32 v{Qs+1}, v{Qs+1}
    v_cvt_pk_bf16_f32 v{Qs+1}, v{Qs+1}, v{Qs+1}
    v_lshlrev_b32 v{Qs+1}, 16, v{Qs+1}
    v_rcp_f32 v{Qs+2}, v{Qs+1}
    v_fma_f32 v{Qs+3}, -v{Qs+1}, v{Qs+2}, 2.0
    v_mul_f32 v{MR+1}, v{Qs+2}, v{Qs+3}
    """)
    def unpack(f):
        x0 = X + f * 4
        T = TM + 8 * (f & 1)
        return [f"v_mfma_f32_16x16x32_bf16 v[{T}:{T+3}], v[{SELR+2}:{SELR+5}], v[{x0}:{x0+3}], v[{NM}:{NM+3}]",
                f"v_mfma_f32_16x16x32_bf16 v[{T+4}:{T+7}], v[{SELR}:{SELR+3}], v[{x0}:{x0+3}], v[{NM}:{NM+3}]"]
    def norm_valu(f):
        x0 = X + f * 4
        T = TM + 8 * (f & 1)
        o = []
        for e in range(8): o.append(f"v_cvt_pk_bf16_f32 v{T+e}, 0, v{T+e}")
        for e in range(8): o.append(f"v_mul_f32 v{T+e}, v{T+e}, v{MR+1}")
        for d in range(4): o.append(f"v_cvt_pk_bf16_f32 v{x0+d}, v{T+2*d}, v{T+2*d+1}")
        return o
    for l in unpack(0) + unpack(1): a(l)
    a(f"""
    s_lshl_b32 s48, s34, 7
    v_lshl_add_u32 v4, v14, 3, s48
    v_add_u32 v4, {L_ST}, v4
    ds_write_b64 v4, v[{MR}:{MR+1}]
    v_lshl_add_u32 v4, v15, 11, v{VT}       ; + g*2048
    s_lshl_b32 s48, s35, 11
    v_add_u32 v5, s48, v{VT}
    """)
    for l in norm_valu(0): a(l)
    for l in unpack(2): a(l)
    stamp(a, 3)
    a(f"s_waitcnt vmcnt({vm.after('bdma')}) lgkmcnt(0)\ns_barrier")
    def breads(j):
        pos, ks = j >> 1, j & 1
        b = BB + (j & 1) * 16
        return [f"ds_read_b128 v[{b+4*q}:{b+4*q+3}], v{VA + ks + 2 * (q >> 1)} offset:{pos * 1024 + (q & 1) * 32768}" for q in range(4)]
    for l in breads(0): a(l)
    lg = Cnt()
    lg.tags[("b", 0)] = 0
    a(f"""
    ds_read_b128 v[{LAM}:{LAM+3}], v{VT}
    ds_read_b128 v[{COEF}:{COEF+3}], v{VT} offset:2048
    ds_read_b128 v[{L4}:{L4+3}], v{VT} offset:4096
    ds_read_b128 v[{L16}:{L16+3}], v{VT} offset:{5*2048}
    ds_read_b128 v[{GG}:{GG+3}], v4 offset:2048
    ds_read_b128 v[{WA}:{WA+3}], v5 offset:{4*2048}
    ds_read_b128 v[{WB}:{WB+3}], v{VT} offset:{8*2048}
    """)
    lg.issue(None, 7)
    for l in norm_valu(1): a(l)
    stamp(a, 4)
    for j in range(16):
        b = BB + (j & 1) * 16
        a(f"s_waitcnt lgkmcnt({lg.after(('b', j))})")
        main = []
        for q in range(4):
            ac = ACCB + 4 * q
            c = "0" if j == 0 else f"v[{ac}:{ac+3}]"
            main.append(f"v_mfma_f32_16x16x32_bf16 v[{ac}:{ac+3}], v[{X+4*j}:{X+4*j+3}], v[{b+4*q}:{b+4*q+3}], {c}")
        if j + 3 < 16:
            un = unpack(j + 3)
            main = [main[0], main[1], main[2], main[3], un[0], un[1]]
        nr = breads(j + 1) if j < 15 else []
        va = norm_valu(j + 2) if j + 2 < 16 else []
        interleave(a, main, nr + va, lead=0)
        lg.issue(("b", j + 1), len(nr))
        if j == 7:
            a("s_barrier")
            dma_piece(4, 0); dma_piece(4, 1)
        if j == 8:
            dma_piece(5, 0); dma_piece(5, 1)
        if j == 11:
            a("s_barrier")
            dma_piece(6, 0); dma_piece(6, 1)
        if j == 15:
            a("s_barrier")
            dma_piece(7, 0); dma_piece(7, 1)
        if j == 13:
            a(f"""
            v_lshlrev_b32 v3, 2, v2
            s_cmp_lg_u32 s34, 7
            s_cbranch_scc1 KF_np0
            buffer_load_dword v13, v3, s[20:23], 0 offen sc1
            KF_np0:
            v_cmp_eq_u32 vcc, 0, v15
            """)
            for e in range(4): a(f"v_cndmask_b32 v{GG+e}, v{GG+e}, {'1.0' if e % 2 == 0 else '0'}, vcc")
            a("v_and_b32 v4, 1, v15\nv_cmp_eq_u32 vcc, 1, v4")
            for e in range(4): a(f"v_cndmask_b32 v{G1+e}, {'1.0' if e % 2 == 0 else '0'}, v{L4+e}, vcc")
            a("s_cmp_eq_u32 s35, 0\ns_cselect_b64 vcc, -1, 0")
            for e in range(4): a(f"v_cndmask_b32 v{WA+e}, v{WA+e}, {'1.0' if e % 2 == 0 else '0'}, vcc")
            a("s_cmp_eq_u32 s36, 0\ns_cselect_b64 vcc, -1, 0")
            for e in range(4): a(f"v_cndmask_b32 v{WB+e}, v{WB+e}, {'1.0' if e % 2 == 0 else '0'}, vcc")
        if j == 14:
            for ct in range(2): cmul_acc(a, Q + 2 * ct, WA + 2 * ct, WB + 2 * ct, None)
            for ct in range(2): cmul_acc(a, MM + 2 * ct, Q + 2 * ct, GG + 2 * ct, None)
    stamp(a, 5)
    for ct in range(2):
        cf = COEF + 2 * ct
        for r in range(4):
            u = U + ct * 8 + 2 * r
            re = ACCB + (0 * 2 + ct) * 4 + r
            im = ACCB + (1 * 2 + ct) * 4 + r
            a(f"""
            v_mul_f32 v{u}, v{cf+1}, v{im}
            v_mul_f32 v{u+1}, v{cf+1}, v{re}
            v_fma_f32 v{u}, v{cf}, v{re}, -v{u}
            v_fma_f32 v{u+1}, v{cf}, v{im}, v{u+1}
            """)
    for r in range(1, 4):
        for ct in range(2):
            c = U + ct * 8 + 2 * r
            cmul_acc(a, c, c - 2, LAM + 2 * ct, c)
    TT, CC, E8, X1, SS = 88, 92, 96, 100, 148
    def e4(i): return U + (i >> 1) * 8 + 6 + (i & 1)
    for i in range(4): a(f"v_mov_b32 v{TT+i}, 0\nv_mov_b32 v{CC+i}, v{e4(i)}")
    for i in range(4): a(f"v_permlane16_swap_b32 v{TT+i}, v{CC+i}")
    for ct in range(2): cmul_acc(a, E8 + 2 * ct, TT + 2 * ct, L4 + 2 * ct, e4(2 * ct))
    for i in range(4): a(f"v_mov_b32 v{X1+i}, v{E8+i}\nv_mov_b32 v{SS+i}, 0")
    for i in range(4): a(f"v_permlane16_swap_b32 v{X1+i}, v{E8+i}")
    for i in range(4): a(f"v_permlane32_swap_b32 v{SS+i}, v{E8+i}")
    for ct in range(2): cmul_acc(a, Q + 2 * ct, SS + 2 * ct, G1 + 2 * ct, TT + 2 * ct)
    for ct in range(2): cmul_acc(a, G1 + 2 * ct, Q + 2 * ct, L4 + 2 * ct, e4(2 * ct))
    E16 = G1
    a(f"""
    s_lshl_b32 s48, s34, 8
    s_add_u32 s48, s48, {L_E16}
    v_lshl_add_u32 v4, v14, 4, s48
    s_mov_b32 s48, 0
    s_mov_b32 s49, 0xffff0000
    s_mov_b64 exec, s[48:49]
    ds_write_b128 v4, v[{E16}:{E16+3}]
    s_mov_b64 exec, -1
    v_subrev_u32 v12, {7 * 256}, v4         ; e16[w-7]
    """)
    stamp(a, 6)
    a(f"""
    s_cmp_lg_u32 s34, 7
    s_cbranch_scc1 KF_nck
    s_movk_i32 s61, {SPIN}
    s_mov_b32 s50, 1
    s_cmp_lg_u32 s101, 0
    s_cselect_b32 s59, 0, 0x0f0f0f0f
    s_mov_b32 s60, 0x10101010
    s_cselect_b32 s58, s60, s59
    s_waitcnt vmcnt(2)
    KF_ckl:
    v_and_b32 v4, s58, v13
    v_add_u32 v4, s59, v4
    v_and_b32 v4, s60, v4
    v_cmp_ne_u32 vcc, s60, v4
    s_cbranch_vccz KF_cka
    s_sub_u32 s61, s61, 1
    s_cbranch_scc1 KF_ckd
    s_sleep 1
    buffer_load_dword v13, v3, s[20:23], 0 offen sc1
    s_waitcnt vmcnt(0)
    s_branch KF_ckl
    KF_cka:
    s_cmp_lg_u32 s101, 0
    s_cbranch_scc1 KF_ckd
    v_mov_b32 v4, 0
    v_mov_b32 v5, 0
    """)
    for j in range(4):
        a(f"""
        v_bfe_u32 v8, v13, {8*j}, 4
        v_lshlrev_b32 v8, 3, v8
        v_subrev_u32 v8, 8, v8
        v_lshlrev_b64 v[6:7], v8, 1
        v_add_u32 v4, v4, v6
        v_add_u32 v5, v5, v7
        """)
    for r in (1, 2, 4, 8):
        a(f"v_add_u32_dpp v4, v4, v4 row_ror:{r} row_mask:0xf bank_mask:0xf\nv_add_u32_dpp v5, v5, v5 row_ror:{r} row_mask:0xf bank_mask:0xf")
    for op in ("v_permlane16_swap_b32", "v_permlane32_swap_b32"):
        a(f"""
        v_mov_b32 v6, v4
        v_mov_b32 v7, v5
        {op} v4, v6
        {op} v5, v7
        v_add_u32 v4, v4, v6
        v_add_u32 v5, v5, v7
        """)
    a(f"""
    v_readfirstlane_b32 s48, v4
    v_readfirstlane_b32 s49, v5
    s_xor_b32 s48, s48, 0x20202020
    s_xor_b32 s49, s49, 0x20202020
    s_or_b32 s48, s48, s49
    s_cmp_lg_u32 s48, 0
    s_cselect_b32 s50, 2, 1
    KF_ckd:
    v_mov_b32 v13, s50
    v_mov_b32 v3, {L_CNT + 4}
    ds_write_b32 v3, v13
    KF_nck:
    v_mov_b32 v3, {L_CNT + 4}
    s_waitcnt vmcnt({vm.after(('dma', 6))}) lgkmcnt(0)
    s_barrier
    ds_read_b32 v3, v3
    """)
    stamp(a, 7)
    EBL = [88, 92, 96, 100, 84, 4, 8]
    for j in range(7): a(f"ds_read_b128 v[{EBL[j]}:{EBL[j]+3}], v12 offset:{j*256}")
    lg = Cnt()
    ord1 = [(k, p) for k in range(16) for p in (0, 1)] + [(k, p) for p in range(2, 7) for k in range(16)]
    def fread(i):
        k, p = ord1[i]
        st, ks = k >> 1, k & 1
        b = BF + (i % 8) * 4
        a(f"ds_read_b64_tr_b16 v[{b}:{b+1}], v{VF+7*ks+p} offset:{sto(st)}")
        a(f"ds_read_b64_tr_b16 v[{b+2}:{b+3}], v{VF+7*ks+p} offset:{sto(st)+1024}")
        lg.issue(("f", i), 2)
    a("s_waitcnt lgkmcnt(7)\nv_readfirstlane_b32 s48, v3\ns_cmp_eq_u32 s48, 2\ns_cbranch_scc1 KF_restart")
    lg.issue("p2b", 7)
    a("s_load_dwordx2 s[88:89], s[0:1], 64     ; Dskip\ns_load_dwordx2 s[90:91], s[0:1], 96     ; out")
    for i in range(4): fread(i)
    class L:
        def __init__(s): s.l = []
        def __call__(s, t_): s.l += [x.strip() for x in t_.strip().split("\n") if x.strip()]
    a(f"s_waitcnt lgkmcnt({min(15, lg.after('p2b'))})")
    for j in range(1, 7):
        for ct in range(2): cmul_acc(a, EBL[j] + 2 * ct, EBL[j - 1] + 2 * ct, L16 + 2 * ct, EBL[j] + 2 * ct)
    for ct in range(2): cmul_acc(a, E16 + 2 * ct, EBL[6] + 2 * ct, L16 + 2 * ct, E16 + 2 * ct)
    a(f"""
    s_cmp_lg_u32 s34, 7
    s_cbranch_scc1 KF_npub
    v_lshlrev_b32 v3, 4, v14
    s_mov_b32 s48, 0
    s_mov_b32 s49, 0xffff0000
    s_mov_b64 exec, s[48:49]
    buffer_store_dwordx4 v[{E16}:{E16+3}], v3, s[16:19], s47 offen sc1
    s_mov_b64 exec, -1
    KF_npub:
    """)
    for i in range(4, 7): fread(i)
    for ct in range(2): cmul_acc(a, Q + 2 * ct, EBL[6] + 2 * ct, GG + 2 * ct, Q + 2 * ct)
    RO, SCB, SHB = 40, 72, 80
    su = L()
    su(f"""
    s_add_u32 s48, s33, s32
    s_lshl_b32 s49, s32, 1
    s_add_u32 s48, s48, s49
    s_and_b32 s62, s48, 7                   ; rot8
    s_cmp_eq_u32 s62, 7
    s_cselect_b32 s59, 3, s62               ; rot7
    s_and_b32 s60, s33, 3                   ; cq
    s_lshl_b32 s61, s60, 18
    s_lshl_b32 s48, s63, 17
    s_add_u32 s61, s61, s48
    s_add_u32 s61, s61, {WS_CF}
    s_lshl_b32 s58, s63, 15
    """)
    for p in range(7):
        su(f"""
        s_add_u32 s48, s59, {p}
        s_sub_u32 s49, s48, 7
        s_cmp_ge_u32 s48, 7
        s_cselect_b32 s48, s49, s48
        s_lshl_b32 s{RO+p}, s48, 12
        """)
    for p in range(8):
        su(f"""
        s_add_u32 s48, s62, {p}
        s_and_b32 s48, s48, 7
        s_lshl_b32 s49, s48, 14
        s_add_u32 s{SCB+p}, s49, s61
        s_lshl_b32 s49, s48, 12
        s_add_u32 s{SHB+p}, s49, s58
        """)
    su(f"""
    s_lshl_b32 s48, s60, 3
    s_add_u32 s48, s48, s34                 ; cq*8 + w
    s_mul_i32 s48, s48, {FT}
    s_mul_i32 s60, s63, {28 * 1024}         ; kh * 28K
    s_add_u32 s48, s48, s60
    s_add_u32 s48, s48, {WS_W2F}
    v_add_u32 v{VW2}, s48, v1
    v_add_u32 v{VC}, s51, v1
    v_add_u32 v{VC+1}, 8192, v{VC}
    s_bfe_u32 s48, s33, 0x10002             ; rh
    s_lshl_b32 s48, s48, 1
    s_add_u32 s62, s48, s63
    s_lshl_b32 s48, s32, 3
    s_add_u32 s48, s48, s34
    s_lshl_b32 s48, s48, 16
    s_lshl_b32 s49, s33, 12
    s_add_u32 s57, s48, s49
    s_add_u32 s55, s39, 4096
    s_lshl_b32 s48, s32, 3
    s_add_u32 s48, s48, s34
    s_mul_i32 s48, s48, {FT}
    s_add_u32 s48, s48, {WS_H1F}
    s_mul_i32 s49, s33, 7
    s_add_u32 s58, s49, s54
    s_lshl_b32 s58, s58, 9
    s_add_u32 s58, s58, s48
    s_add_u32 s59, s49, s56
    s_lshr_b32 s61, s59, 1
    s_lshl_b32 s61, s61, 10
    s_and_b32 s59, s59, 1
    s_lshl_b32 s59, s59, 3
    s_add_u32 s59, s59, s61
    s_add_u32 s59, s59, s48
    s_mov_b32 s53, {f2u(-1.4426950408889634):#x}
    s_bfe_u32 s48, s33, 0x10002             ; rh
    s_lshl_b32 s48, s48, 2
    s_lshl_b32 s49, s32, 3
    s_add_u32 s48, s48, s49
    s_lshr_b32 s49, s34, 1
    s_add_u32 s48, s48, s49
    s_and_b32 s49, s34, 1
    s_lshl_b32 s49, s49, 11
    s_lshl_b32 s50, s48, 16
    s_add_u32 s50, s50, s49
    v_add_u32 v{VH}, s50, v1
    s_mul_i32 s48, s48, {FT}
    s_add_u32 s48, s48, s49
    s_add_u32 s48, s48, s60
    s_add_u32 s48, s48, {WS_H1F}
    v_add_u32 v{VH+1}, s48, v1
    s_lshl_b32 s48, s63, 16
    v_add_u32 v{VP+1}, s48, v1
    v_xor_b32 v{VP}, 65536, v{VP+1}
    """)
    WF, CFR = {}, {}
    def wload(i, q, reg):
        a(f"buffer_load_dwordx4 v[{reg}:{reg+3}], v{VW2}, s[16:19], s{RO+i} offen offset:{q*1024}")
        vm.issue(("w", i)); WF[(i, q)] = reg
    def cload(b, ri, reg):
        a(f"buffer_load_dwordx4 v[{reg}:{reg+3}], v{VC+ri}, s[16:19], s{SCB+b} offen")
        vm.issue(("c", b)); CFR[(b, ri)] = reg
    PC, PH, PL, PT = 104, 112, 120, 128
    def psf_valu():
        o = L()
        for ct in range(2): cmul_acc(o, PC + 2 * ct, PT + 2 * ct, MM + 2 * ct, Q + 2 * ct)
        for r in range(4):
            for ct in range(2):
                src = PC + (r & 1) * 4 + 2 * ct; dst = PC + ((r + 1) & 1) * 4 + 2 * ct
                cmul_acc(o, dst, src, LAM + 2 * ct, None)
                u = U + ct * 8 + 2 * r
                o(f"v_pk_add_f32 v[{u}:{u+1}], v[{u}:{u+1}], v[{dst}:{dst+1}]")
        return o.l
    def psf_split(ri):
        o = L(); ng = "-" if ri else ""
        for ct in range(2):
            h = PH + ri * 4 + ct * 2; l = PL + ri * 4 + ct * 2
            u = lambda r: U + ct * 8 + 2 * r + ri
            for pr in range(2):
                o(f"v_cvt_pk_bf16_f32 v{h+pr}, {ng}v{u(2*pr)}, {ng}v{u(2*pr+1)}")
            for pr in range(2):
                o(f"v_lshlrev_b32 v{PT+2*pr}, 16, v{h+pr}\nv_and_b32 v{PT+2*pr+1}, 0xffff0000, v{h+pr}")
            o(f"ds_write_b64 v3, v[{h}:{h+1}] offset:{ct*512}")
            for r in range(4): o(f"v_sub_f32 v{PT+r}, {ng}v{u(r)}, v{PT+r}")
            for pr in range(2): o(f"v_cvt_pk_bf16_f32 v{l+pr}, v{PT+2*pr}, v{PT+2*pr+1}")
            o(f"ds_write_b64 v3, v[{l}:{l+1}] offset:{1024 + ct*512}")
        return o.l
    HO = [PC, PC + 4, U, U + 4]
    def psf_tr(ri):
        o = []
        for hl in range(2):
            d = HO[ri * 2 + hl]
            o.append(f"ds_read_b64_tr_b16 v[{d}:{d+1}], v12 offset:{hl*1024}")
            o.append(f"ds_read_b64_tr_b16 v[{d+2}:{d+3}], v13 offset:{hl*1024}")
        return o
    def psf_addr():
        o = L()
        o(f"""
        s_lshl_b32 s48, s34, 11
        s_add_u32 s48, s48, {L_TAB}
        v_lshrrev_b32 v3, 2, v14
        v_xor_b32 v3, v3, v15
        v_lshlrev_b32 v3, 3, v3
        v_lshl_add_u32 v3, v14, 5, v3
        v_add_u32 v3, s48, v3
        v_bfe_u32 v12, v2, 2, 2
        v_lshl_add_u32 v12, v15, 3, v12
        v_lshlrev_b32 v13, 1, v15
        v_and_b32 v13, 3, v13
        v_and_b32 v4, 3, v2
        v_xor_b32 v13, v13, v4
        v_lshlrev_b32 v13, 3, v13
        v_lshl_add_u32 v12, v12, 5, v13
        v_add_u32 v12, s48, v12
        v_add_u32 v13, 128, v12
        v_xor_b32 v13, 8, v13
        v_lshlrev_b32 v4, 4, v14
        v_add_u32 v4, {L_HIN}, v4
        v_and_b32 v5, 7, v2
        v_lshlrev_b32 v5, 2, v5
        """)
        return o.l
    EL, R7, L128, L512, HG = 132, 208, 4, 212, 216
    def w7_eloads():
        return "\n".join(f"buffer_load_dwordx4 v[{EL+4*j}:{EL+4*j+3}], v{244+j}, s[16:19], s47 offen sc1" for j in range(4))
    def w7_prep():
        a(f"""
        s_cmp_lg_u32 s34, 7
        s_cbranch_scc1 KF_nel
        s_and_b32 s48, s33, 7
        s_lshl_b32 s48, s48, 8
        s_add_u32 s48, s48, {L_TAB + 9 * 2048}
        v_lshl_add_u32 v8, v14, 4, s48
        ds_read_b128 v[{L128}:{L128+3}], v8
        s_sub_u32 s48, s32, 1
        v_sub_u32 v8, s48, v15                  ; rt - 1 - g
        """)
        for j in range(4):
            a(f"""
            v_subrev_u32 v9, {4*j}, v8
            v_cmp_gt_i32 vcc, 0, v9
            v_lshlrev_b32 v9, 8, v9
            v_lshl_add_u32 v9, v14, 4, v9
            v_mov_b32 v10, {WS_SIZE}
            v_cndmask_b32 v{244+j}, v9, v10, vcc
            """)
        a(f"""
        s_lshl_b32 s47, s33, 12
        s_add_u32 s47, s47, {WS_E}
        s_waitcnt lgkmcnt(0)
        """)
        for ct in range(2): cplx_sq(a, R7 + 2 * ct, L128 + 2 * ct, 3)
        for ct in range(2): cplx_sq(a, L512 + 2 * ct, R7 + 2 * ct, 3)
        a("v_and_b32 v3, 1, v15\nv_cmp_eq_u32 vcc, 1, v3")
        for e in range(4): a(f"v_cndmask_b32 v{L128+e}, {'1.0' if e % 2 == 0 else '0'}, v{L128+e}, vcc")
        a("v_cmp_lt_u32 vcc, 1, v15")
        for e in range(4): a(f"v_cndmask_b32 v{R7+e}, {'1.0' if e % 2 == 0 else '0'}, v{R7+e}, vcc")
        for ct in range(2): cmul_acc(a, HG + 2 * ct, L128 + 2 * ct, R7 + 2 * ct, None)
        a("KF_nel:")
    def w7_horner():
        a(f"""
        s_movk_i32 s61, {SPIN}
        s_waitcnt vmcnt(0)
        KF_hol:
        """)
        a(f"v_cmp_eq_u32 vcc, -1, v{EL}")
        for i in range(1, 16):
            a(f"v_cmp_eq_u32 s[48:49], -1, v{EL+i}\ns_or_b64 vcc, vcc, s[48:49]")
        a(f"""
        s_cmp_eq_u64 vcc, 0
        s_cbranch_scc1 KF_hod
        s_sub_u32 s61, s61, 1
        s_cbranch_scc1 KF_hod
        s_sleep 1
        {w7_eloads()}
        s_waitcnt vmcnt(0)
        s_branch KF_hol
        KF_hod:
        """)
        for j in (2, 1, 0):
            for ct in range(2): cmul_acc(a, EL + 4 * j + 2 * ct, EL + 4 * (j + 1) + 2 * ct, L512 + 2 * ct, EL + 4 * j + 2 * ct)
        R = R7
        for ct in range(2): cmul_acc(a, R + 2 * ct, EL + 2 * ct, HG + 2 * ct, None)
        for op in ("v_permlane16_swap_b32", "v_permlane32_swap_b32"):
            for i in range(4): a(f"v_mov_b32 v{R+4+i}, v{R+i}")
            for i in range(4): a(f"{op} v{R+i}, v{R+4+i}")
            for i in range(4): a(f"v_add_f32 v{R+i}, v{R+i}, v{R+4+i}")
        a(f"""
        v_add_u32 v8, {L_HIN}, v1
        s_mov_b64 exec, 0xffff
        ds_write_b128 v8, v[{R}:{R+3}]
        s_mov_b64 exec, -1
        """)
    def signal(reg, sreg, label):
        a(f"""
        v_readfirstlane_b32 s48, v{reg}
        s_cmp_lg_u32 s48, 7
        s_cbranch_scc1 {label}
        v_mov_b32 v9, 1
        v_mov_b32 v8, 0
        s_mov_b64 exec, 1
        """)
        dual([f"buffer_store_dword v9, v8, s[16:19], {sreg} offen"])
        a(f"s_mov_b64 exec, -1\n{label}:")
    def poll(reg, addr, sreg, label, tag):
        a(f"""
        s_movk_i32 s61, {SPIN}
        s_waitcnt vmcnt({vm.after(tag)})
        {label}l:
        v_cmp_ne_u32 vcc, 1, v{reg}
        s_cbranch_vccz {label}d
        s_sub_u32 s61, s61, 1
        s_cbranch_scc1 {label}d
        s_sleep 1
        buffer_load_dword v{reg}, v{addr}, s[16:19], {sreg} offen sc1
        s_waitcnt vmcnt(0)
        s_branch {label}l
        {label}d:
        """)
    H1O, STK, STE = 192, 200, 204
    def silu_items(p):
        ac = ACC + p * 4
        o = L()
        tk = STK + 2 * (p & 1)
        dst = H1O + 4 * ((p >> 1) & 1) + 2 * (p & 1)
        o(f"""
        v_cvt_pk_bf16_f32 v{tk}, v{ac}, v{ac+1}
        v_cvt_pk_bf16_f32 v{tk+1}, v{ac+2}, v{ac+3}
        v_lshlrev_b32 v{ac}, 16, v{tk}
        v_and_b32 v{ac+1}, 0xffff0000, v{tk}
        v_lshlrev_b32 v{ac+2}, 16, v{tk+1}
        v_and_b32 v{ac+3}, 0xffff0000, v{tk+1}
        """)
        for r in range(4): o(f"v_mul_f32 v{STE+r}, s53, v{ac+r}")
        for r in range(4): o(f"v_exp_f32 v{STE+r}, v{STE+r}")
        for r in range(4): o(f"v_add_f32 v{STE+r}, 1.0, v{STE+r}")
        for r in range(4): o(f"v_rcp_f32 v{STE+r}, v{STE+r}")
        for r in range(4): o(f"v_mul_f32 v{ac+r}, v{ac+r}, v{STE+r}")
        o(f"""
        v_cvt_pk_bf16_f32 v{dst}, v{ac}, v{ac+1}
        v_cvt_pk_bf16_f32 v{dst+1}, v{ac+2}, v{ac+3}
        """)
        return o.l
    def h1store(pr):
        d = H1O + 4 * (pr & 1)
        if pr < 3: dual([f"buffer_store_dwordx4 v[{d}:{d+3}], v1, s[16:19], s58 offen offset:{pr*1024}"])
        else: dual([f"buffer_store_dwordx2 v[{d}:{d+1}], v1, s[16:19], s59 offen"])
        vm.issue("h1s")
    ev = {}
    def add(i, f): ev.setdefault(i, []).append(f)
    SUN = env("SUN", 22)
    for k, l in enumerate(su.l): add((k * SUN) // len(su.l), l)
    W01 = [80, 84, 88, 92, 96, 100, 248, 192]
    W0P, W0S = env("W0P", 23), env("W0S", 4)
    for q in range(7): add(W0P + W0S * q, (lambda q=q: wload(q >> 2, q & 3, W01[q])))
    add(env("W7P", 26), w7_prep)
    XP2 = env("XP2", 0)
    def wtouch():
        a(f"""
        v_lshlrev_b32 v9, 6, v2
        buffer_load_dword v239, v9, s[16:19], s58 offen
        buffer_load_dword v239, v9, s[16:19], s57 offen
        """)
        vm.issue("wt", 2)
    if XP2: add(SUN, wtouch)
    pa_ = psf_addr()
    for k, l in enumerate(pa_): add(28 + (k * 6) // len(pa_), l)
    for p in range(6):
        it = silu_items(p)
        for k, l in enumerate(it): add(34 + 13 * p + (k * 13) // len(it), l)
        if p & 1: add(34 + 13 * p + 12, (lambda p=p: h1store(p >> 1)))
    bars = {21: ("dma", 7)}
    for i in range(112):
        k, p = ord1[i]
        if i % 16 == 0: stamp(a, 8 + i // 16)
        b = BF + (i % 8) * 4
        ac = ACC + p * 4
        a(f"s_waitcnt lgkmcnt({min(15, lg.after(('f', i)))})")
        c = "0" if k == 0 else f"v[{ac}:{ac+3}]"
        a(f"v_mfma_f32_16x16x32_bf16 v[{ac}:{ac+3}], v[{b}:{b+3}], v[{X+4*k}:{X+4*k+3}], {c}")
        if i in bars: a(f"s_waitcnt vmcnt({vm.after(bars[i])})\ns_barrier")
        if i + 7 < 112: fread(i + 7)
        for f in ev.get(i, []):
            if callable(f): f()
            else: a(f)
    stamp(a, 17)
    a("s_barrier")
    for l in silu_items(6): a(l)
    h1store(3)
    NA = env("NA", 9)
    wa_ = [(1, 3, 192)] + [(i, q, X + 16 * (i - 2) + 4 * q) for i in range(2, 6) for q in range(4)] \
        + [(6, q, 196 + 4 * q) for q in range(3)] + [(6, 3, 244)]
    a("s_cmp_eq_u32 s34, 7\ns_cbranch_scc1 KF_w7a")
    save = a.lines; a.lines = []
    vsave = (vm.n, dict(vm.tags))
    a("KF_w7a:")
    a(w7_eloads())
    a("s_waitcnt vmcnt(4)")
    arrive(16, 10)
    a("s_waitcnt lgkmcnt(0)")
    signal(10, "s37", "KF_nf1b")
    w7_horner()
    for (i, q, r) in wa_[:NA]: wload(i, q, r)
    a("s_branch KF_w7b")
    ool = a.lines; a.lines = save
    vm.n, vm.tags = vsave
    for (i, q, r) in wa_[:NA]: wload(i, q, r)
    a(f"s_waitcnt vmcnt({vm.after('h1s')})")
    arrive(16, 10)
    a("s_waitcnt lgkmcnt(0)")
    signal(10, "s37", "KF_nf1")
    a("KF_w7b:")
    stamp(a, 18)
    a("buffer_load_dword v11, v5, s[16:19], s39 offen sc1"); vm.issue("p1")
    poll(11, 5, "s39", "KF_p1", "p1")
    stamp(a, 19)
    def ypos(s): return sto(7) if s == 0 else sto(s - 1)
    def hdma(s, j):
        if j == 0: a(f"s_add_u32 m0, s52, {ypos(s)}\ns_nop 0")
        a(f"buffer_load_dwordx4 v{VH}, s[16:19], s{SHB+s} offen offset:{j*1024} lds")
        vm.issue(("hd", s))
    def h1dma(i, j):
        if j == 0: a(f"s_add_u32 m0, s52, {sto(i)}\ns_nop 0")
        a(f"buffer_load_dwordx4 v{VH+1}, s[16:19], s{RO+i} offen offset:{j*1024} lds")
        vm.issue(("h1d", i))
    for i in range(7): h1dma(i, 0); h1dma(i, 1)
    stamp(a, 15)
    XP1 = env("XP1", 0)
    if XP1:
        a("s_waitcnt vmcnt(0)\ns_barrier")
        stamp(a, 56)
        for i in range(7):
            for j in range(2):
                if XP1 == 1: h1dma(i, j)
                else: a(f"buffer_load_dwordx4 v[{104+8*i+4*j}:{104+8*i+4*j+3}], v{VH+1}, s[16:19], s{RO+i} offen offset:{j*1024}")
        stamp(a, 57)
        a("s_waitcnt vmcnt(0)")
        stamp(a, 58)
        a("s_barrier")
        stamp(a, 59)
    a(f"s_waitcnt lgkmcnt(0)\ns_barrier\nds_read_b128 v[{PT}:{PT+3}], v4\ns_waitcnt lgkmcnt(0)")
    stamp(a, 54)
    for l in psf_valu() + psf_split(0) + psf_tr(0) + psf_split(1) + psf_tr(1): a(l)
    a("s_waitcnt lgkmcnt(0)")
    dual([f"buffer_store_dwordx4 v[{HO[kk]}:{HO[kk]+3}], v1, s[16:19], s57 offen offset:{kk*1024}" for kk in range(4)])
    vm.issue("hst", 4)
    stamp(a, 55)
    YA, OA, HB = 104, 220, BF
    seq = []
    for i in range(7):
        for q in range(4):
            for tp in range(2):
                for tq in range(2): seq.append(("o", i, tp, tq, q >> 1, q & 1))
    for tp in range(2):
        for s in range(8):
            for ri in range(2):
                for tq in range(2):
                    for hl in range(2): seq.append(("y", s, tp, tq, ri, hl))
    N = len(seq)
    lg = Cnt()
    def bread(n):
        kind, i, tp, tq, hi, lo = seq[n]
        b = HB + (n % 8) * 4
        pos = sto(i) if kind == "o" else ypos(i)
        a(f"ds_read_b128 v[{b}:{b+3}], v{VP+tp} offset:{(2*tq+hi)*16384 + pos + lo*1024}")
        lg.issue(("f", n))
    ev = {}
    later = [(lambda i=i, q=q, r=r: wload(i, q, r)) for (i, q, r) in wa_[NA:]] \
          + [(lambda b=b, ri=ri: cload(b, ri, 164 + 8 * b + 4 * ri)) for b in range(3) for ri in range(2)]
    NB = env("NB", 8)
    for f in later[:NB]: f()
    LP, LS = env("LP", 1), env("LS", 2)
    for k, f in enumerate(later[NB:]): add(LP + LS * k, f)
    CR2 = {3: (80, 84, 16), 4: (88, 92, 16), 5: (96, 100, 32), 6: (248, 192, 32), 7: (16, 20, 48)}
    cpos = LP + LS * len(later[NB:])
    for b in range(3, 8):
        for ri in range(2):
            cpos = max(cpos, CR2[b][2] + 1)
            add(cpos, (lambda b=b, ri=ri: cload(b, ri, CR2[b][ri]))); cpos += LS
    A4, P4I, P4C = env("A4", 4), env("P4I", 24), env("P4C", 40)
    def h_arrive():
        a(f"s_waitcnt vmcnt({vm.after('hst')})"); arrive(12, 10); lg.issue("ar4")
    add(A4, h_arrive)
    def h_signal():
        a(f"s_waitcnt lgkmcnt({min(15, lg.after('ar4'))})\ns_add_u32 s49, s37, 4096"); signal(10, "s49", "KF_nf4")
    add(A4 + 5, h_signal)
    def p4_issue():
        a("buffer_load_dword v11, v5, s[16:19], s55 offen sc1"); vm.issue("p4")
    add(P4I, p4_issue)
    add(P4C, lambda: poll(11, 5, "s55", "KF_p4", "p4"))
    nxt = P4C + 1
    for s in range(8):
        nxt = max(nxt, 16 * s + 1 if s < 7 else 113)
        add(nxt, (lambda s=s: (hdma(s, 0), hdma(s, 1)))); nxt += 3
    XR, DR, ST, PR = 32, 36, 40, 48
    def o_send():
        a(f"""
        s_lshl_b32 s48, s38, 15
        s_lshl_b32 s49, s34, 12
        s_add_u32 s48, s48, s49
        s_add_u32 s58, s48, {WS_OP}
        s_xor_b32 s57, s58, {8 << 15}
        s_lshl_b32 s48, s38, 7
        s_lshl_b32 s49, s34, 2
        s_add_u32 s48, s48, s49
        s_add_u32 s54, s48, {WS_FL + 8192}
        s_xor_b32 s55, s54, {8 << 7}
        buffer_store_dwordx4 v[{OA}:{OA+3}], v1, s[16:19], s57 offen offset:2048 sc1
        buffer_store_dwordx4 v[{OA+4}:{OA+7}], v1, s[16:19], s57 offen offset:3072 sc1
        """)
        vm.issue("os", 2)
    add(112 + 4, o_send)
    def y_send():
        a(f"""
        buffer_store_dwordx4 v[{YA}:{YA+3}], v1, s[16:19], s57 offen sc1
        buffer_store_dwordx4 v[{YA+4}:{YA+7}], v1, s[16:19], s57 offen offset:1024 sc1
        """)
        vm.issue("ys", 2)
    add(176 + 3, y_send)
    def fin_addr():
        a(f"""
        s_lshl_b32 s48, s32, 7
        s_lshl_b32 s49, s62, 5
        s_add_u32 s48, s48, s49
        v_add_u32 v12, s48, v14
        v_lshlrev_b32 v12, 10, v12
        s_and_b32 s48, s33, 3
        s_lshl_b32 s48, s48, 8
        s_lshl_b32 s49, s34, 5
        s_add_u32 s48, s48, s49
        v_lshl_add_u32 v13, v15, 3, s48
        v_add_u32 v12, v12, v13
        s_movk_i32 s48, 16384
        buffer_load_dwordx2 v[{XR}:{XR+1}], v12, s[4:7], 0 offen
        buffer_load_dwordx2 v[{XR+2}:{XR+3}], v12, s[4:7], s48 offen
        v_lshlrev_b32 v12, 1, v12
        s_lshl_b32 s48, s62, 8
        v_lshl_add_u32 v4, v14, 3, s48
        v_add_u32 v4, {L_ST}, v4
        """)
        vm.issue("x", 2)
        srd(a, 12, 88, 1024)
        srd(a, 8, 90, 2048 * 2048)
        a(f"""
        buffer_load_dwordx2 v[{DR}:{DR+1}], v13, s[12:15], 0 offen
        ds_read_b64 v[{ST}:{ST+1}], v4
        ds_read_b64 v[{ST+2}:{ST+3}], v4 offset:128
        """)
        vm.issue("x"); lg.issue(None, 2)
    add(176 + 10, fin_addr)
    def pr_loads():
        return "\n".join(f"buffer_load_dwordx4 v[{PR+4*k}:{PR+4*k+3}], v1, s[16:19], s58 offen offset:{k*1024} sc1" for k in (2, 3, 0, 1))
    F3, PRI = env("F3", 28), env("PRI", 56)
    def f3_send():
        a(f"""
        v_mov_b32 v9, 1
        v_mov_b32 v8, 0
        s_waitcnt vmcnt({vm.after('ys')})
        s_mov_b64 exec, 1
        buffer_store_dword v9, v8, s[16:19], s55 offen sc1
        s_mov_b64 exec, -1
        """)
        vm.issue("f3")
    add(176 + F3, f3_send)
    def pr_issue():
        a("buffer_load_dword v11, v8, s[16:19], s54 offen sc1"); vm.issue("p3")
    add(176 + PRI, pr_issue)
    a(f"s_waitcnt vmcnt({vm.after(('h1d', 0))})\ns_barrier")
    stamp(a, 32)
    for n in range(7): bread(n)
    for n in range(N):
        kind, i, tp, tq, hi, lo = seq[n]
        if n < 112 and n % 16 == 0:
            if n: stamp(a, 32 + n // 16)
            w_ = [vm.after(("w", n // 16))]
            if n < 96: w_.append(vm.after(("h1d", n // 16 + 1)))
            a(f"s_waitcnt vmcnt({min(w_)})\ns_barrier")
        if n + 7 >= 112 and n + 7 < 176 and (n + 7 - 112) % 8 == 0:
            s_ = (n + 7 - 112) // 8
            a(f"s_waitcnt vmcnt({vm.after(('hd', s_))})\ns_barrier")
        if n >= 112 and n < 176 and (n - 112) % 8 == 0:
            s_ = (n - 112) // 8
            stamp(a, 39 + s_)
            a(f"s_waitcnt vmcnt({vm.after(('c', s_))})")
        if n == 176: stamp(a, 47)
        b = HB + (n % 8) * 4
        a(f"s_waitcnt lgkmcnt({min(15, lg.after(('f', n)))})")
        if kind == "y":
            ac = YA + (tp * 2 + tq) * 4; af = CFR[(i, hi)]
        else:
            ac = OA + (tp * 2 + tq) * 4; af = WF[(i, 2 * hi + lo)]
        first = (i == 0 and hi == 0 and lo == 0)
        c = "0" if first else f"v[{ac}:{ac+3}]"
        a(f"v_mfma_f32_16x16x32_bf16 v[{ac}:{ac+3}], v[{af}:{af+3}], v[{b}:{b+3}], {c}")
        if n + 7 < N: bread(n + 7)
        for f in ev.get(n, []): f()
    stamp(a, 50)
    OP = OA + 8
    M, XF, XN, DU, TMP, T2 = 64, 72, 120, 128, 132, 136
    def rnd(base, n, tmp):
        for e in range(n // 2): a(f"v_cvt_pk_bf16_f32 v{tmp+e}, v{base+2*e}, v{base+1+2*e}")
        for e in range(n // 2): a(f"v_lshlrev_b32 v{base+2*e}, 16, v{tmp+e}\nv_and_b32 v{base+1+2*e}, 0xffff0000, v{tmp+e}")
    poll(11, 8, "s54", "KF_p3", "p3")
    stamp(a, 52)
    a(pr_loads()); vm.issue("pr", 4)
    a(f"s_waitcnt vmcnt({vm.after('x')}) lgkmcnt(0)")
    for e in range(4):
        a(f"v_lshlrev_b32 v{XF+2*e}, 16, v{XR+e}\nv_and_b32 v{XF+1+2*e}, 0xffff0000, v{XR+e}")
    for e in range(2):
        a(f"v_lshlrev_b32 v{DU+2*e}, 16, v{DR+e}\nv_and_b32 v{DU+1+2*e}, 0xffff0000, v{DR+e}")
    for e in range(8): a(f"v_sub_f32 v{XN+e}, v{XF+e}, v{ST+2*(e>>2)}")
    rnd(XN, 8, TMP)
    for e in range(8): a(f"v_mul_f32 v{XN+e}, v{XN+e}, v{ST+1+2*(e>>2)}")
    rnd(XN, 8, TMP)
    for e in range(8): a(f"v_mul_f32 v{XN+e}, v{XN+e}, v{DU+(e&3)}")
    rnd(XN, 8, TMP)
    a("s_waitcnt vmcnt(0)")
    stamp(a, 51)
    for e in range(8): a(f"v_add_f32 v{OP+e}, v{OP+e}, v{PR+8+e}")
    rnd(OP, 8, TMP)
    for e in range(8): a(f"v_mul_f32 v{T2+e}, s53, v{OP+e}")
    for e in range(8): a(f"v_exp_f32 v{T2+e}, v{T2+e}")
    for e in range(8): a(f"v_add_f32 v{M+e}, v{YA+8+e}, v{PR+e}")
    for e in range(8): a(f"v_add_f32 v{T2+e}, 1.0, v{T2+e}")
    for e in range(8): a(f"v_rcp_f32 v{T2+e}, v{T2+e}")
    for e in range(8): a(f"v_fma_f32 v{M+e}, v{M+e}, 2.0, v{XN+e}")
    for e in range(8): a(f"v_mul_f32 v{OP+e}, v{OP+e}, v{T2+e}")
    rnd(OP, 8, TMP)
    for e in range(8): a(f"v_mul_f32 v{M+e}, v{M+e}, v{OP+e}")
    for e in range(8): a(f"v_add_f32 v{M+e}, v{M+e}, v{XF+e}")
    a(f"""
    s_mov_b32 s48, 32768
    buffer_store_dwordx4 v[{M}:{M+3}], v12, s[8:11], 0 offen {os.environ.get("OSB", "")}
    buffer_store_dwordx4 v[{M+4}:{M+7}], v12, s[8:11], s48 offen {os.environ.get("OSB", "")}
    """)
    if STAMP: a("s_waitcnt vmcnt(0)")
    stamp(a, 53)
    stamp_store(a, 16, 0)
    probe_end(a)
    a("s_endpgm")
    a.lines += ool
    a("""
    KF_done:
    s_endpgm
    KF_restart:
    s_mov_b32 s101, 1
    s_waitcnt vmcnt(0) lgkmcnt(0)
    s_barrier
    s_branch KF_top
    """)
    for t_ in tail: a.raw(t_)

HEADER = open("recurrent_scan__ssm_conv_s5__dense_activation_silu__prompt.s.ref").read().split("; Override launch")[0]

def build():
    a = Asm()
    a.raw(HEADER.rstrip("\n"))
    a.raw(f"; @launch grid=(256,1,1) block=(512,1,1) lds={KF_LDS}")
    a.raw('.amdgcn_target "amdgcn-amd-amdhsa--gfx950"\n.text')
    gen_kf(a)
    a.raw('.section .rodata,"a"\n.p2align 6')
    a.raw(kd(KNAME, 256))
    return a.text()

if __name__ == "__main__":
    STAMP = len(sys.argv) > 2 and "stamp" in sys.argv[2]
    open(sys.argv[1], "w").write(build())
```
